```python
import torch

def _softmax(x, axis=-1):
    return torch.softmax(x, dim=axis)

def _gelu(x):
    return torch.nn.functional.gelu(x, approximate='tanh')

def _silu(x):
    return torch.nn.functional.silu(x)

def _sigmoid(x):
    return torch.sigmoid(x)

def _layernorm(x, axis=-1, eps=1e-05):
    m = x.mean(dim=axis, keepdim=True)
    v = x.var(dim=axis, keepdim=True, unbiased=False)
    return (x - m) / torch.sqrt(v + eps)

def _scatter_add(tgt, idx, src, axis=0):
    return tgt.clone().index_add_(axis, idx, src)

def _segment_sum(src, seg, n):
    out = torch.zeros((n,) + src.shape[1:], dtype=src.dtype)
    return out.index_add_(0, seg, src)

def _pad(x, pw):
    flat = tuple((v for pair in reversed(pw) for v in pair))
    return torch.nn.functional.pad(x, flat)
kernel_name = 'interleave_layers__memory_aug_recurrent_mem_tr__glu_gated_swiglu__prompt'

def setup_inputs():

    _w = lambda a: (lambda t: t.to(torch.bfloat16) if t.is_floating_point() else t)(torch.as_tensor(a))

    def _A_setup():
        B, S, Dm = (1, 2048, 512)
        H, Dh = (32, 128)
        M, seg = (8, 32)
        seg = min(seg, S)
        S = S // seg * seg
        return {'x': _w((lambda *s: torch.randn(*s, dtype=torch.bfloat16) * 0.05)(B, S, Dm)), 'mem0': _w((lambda *s: torch.randn(*s, dtype=torch.bfloat16) * 0.2)(B, M, Dm)), 'Wq': _w((lambda *s: torch.randn(*s, dtype=torch.bfloat16) * 1.6)(Dm, H, Dh) * Dm ** (-0.5)), 'Wk': _w((lambda *s: torch.randn(*s, dtype=torch.bfloat16) * 1.6)(Dm, H, Dh) * Dm ** (-0.5)), 'Wv': _w((lambda *s: torch.randn(*s, dtype=torch.bfloat16) * 0.2)(Dm, H, Dh) * Dm ** (-0.5)), 'Wo': _w((lambda *s: torch.randn(*s, dtype=torch.bfloat16) * 0.2)(H, Dh, Dm) * (H * Dh) ** (-0.5)), 'seg_len': seg}
    _A_in = _A_setup()

    def _B_setup():
        B, S, D, F = (1, 2048, 512, 1792)
        return {'x': _w((lambda *s: torch.randn(*s, dtype=torch.bfloat16) * 0.05)(B, S, D)), 'w1': _w((lambda *s: torch.randn(*s, dtype=torch.bfloat16) * 0.2)(D, F) * (2.0 / D) ** 0.5), 'w3': _w((lambda *s: torch.randn(*s, dtype=torch.bfloat16) * 0.2)(D, F) * (2.0 / D) ** 0.5), 'w2': _w((lambda *s: torch.randn(*s, dtype=torch.bfloat16) * 0.2)(F, D) * (2.0 / F) ** 0.5)}
    _B_in = _B_setup()
    return {'A_x': _A_in['x'], 'A_mem0': _A_in['mem0'], 'A_Wq': _A_in['Wq'], 'A_Wk': _A_in['Wk'], 'A_Wv': _A_in['Wv'], 'A_Wo': _A_in['Wo'], 'A_seg_len': _A_in['seg_len'], 'B_x': _B_in['x'], 'B_w1': _B_in['w1'], 'B_w3': _B_in['w3'], 'B_w2': _B_in['w2']}

def reference(A_x, A_mem0, A_Wq, A_Wk, A_Wv, A_Wo, A_seg_len, B_x, B_w1, B_w3, B_w2):

    def _A_ref(x, mem0, Wq, Wk, Wv, Wo, seg_len):
        B, S, Dm = x.shape
        H, Dh = (Wq.shape[1], Wq.shape[2])
        M = mem0.shape[1]
        scale = Dh ** (-0.5)
        n_seg = S // seg_len
        L = M + seg_len
        idx = torch.arange(L)
        mask = (idx[:, None] < M) | (idx[:, None] >= idx[None, :])
        mem = mem0
        outs = []
        for s in range(n_seg):
            xs = x[:, s * seg_len:(s + 1) * seg_len, :].clone()
            h = torch.concatenate([mem, xs], axis=1)
            q = torch.einsum('btd,dhe->bhte', h, Wq)
            k = torch.einsum('btd,dhe->bhte', h, Wk)
            v = torch.einsum('btd,dhe->bhte', h, Wv)
            scores = torch.einsum('bhqe,bhke->bhqk', q, k) * scale
            scores = torch.where(mask[None, None], scores, -1000000000.0)
            p = _softmax(scores, axis=-1)
            o = torch.einsum('bhqk,bhke->bhqe', p, v)
            o = torch.einsum('bhte,hed->btd', o, Wo)
            mem = o[:, :M, :].clone()
            outs.append(o[:, M:, :])
        return torch.concatenate(outs, axis=1)

    def _B_ref(x, w1, w3, w2):
        gate = torch.einsum('bsd,df->bsf', x, w1)
        up = torch.einsum('bsd,df->bsf', x, w3)
        h = _silu(gate) * up
        out = torch.einsum('bsf,fd->bsd', h, w2)
        return out
    x = A_x
    x = x + _A_ref(_layernorm(x, axis=-1), A_mem0, A_Wq, A_Wk, A_Wv, A_Wo, A_seg_len)
    x = x + _B_ref(_layernorm(x, axis=-1), B_w1, B_w3, B_w2)
    x = x + _A_ref(_layernorm(x, axis=-1), A_mem0, A_Wq, A_Wk, A_Wv, A_Wo, A_seg_len)
    x = x + _B_ref(_layernorm(x, axis=-1), B_w1, B_w3, B_w2)
    return x
```

```python
import re

class Ins:
    __slots__ = ("text", "op", "kind", "vr", "vw", "sr", "sw", "label", "target", "mfma_c", "mfma_ab", "passes", "dpp", "nstates")

REG_RE = re.compile(r"\b([vas])(\d+)\b|\b([vas])\[(\d+):(\d+)\]")

def regs_of(tok):
    tok = tok.strip()
    out = []
    neg = tok.lstrip("-")
    if neg.startswith("abs(") or neg.startswith("|"):
        neg = neg.replace("abs(", "").replace(")", "").replace("|", "")
    m = re.fullmatch(r"([vas])(\d+)", neg)
    if m: return [(m.group(1), int(m.group(2)))]
    m = re.fullmatch(r"([vas])\[(\d+):(\d+)\]", neg)
    if m: return [(m.group(1), i) for i in range(int(m.group(2)), int(m.group(3)) + 1)]
    if neg == "vcc": return [("s", "vcc_lo"), ("s", "vcc_hi")]
    if neg in ("vcc_lo", "vcc_hi", "m0", "exec_lo", "exec_hi"): return [("s", neg)]
    if neg == "exec": return [("s", "exec_lo"), ("s", "exec_hi")]
    return out

TRANS = ("v_exp_f32", "v_log_f32", "v_rcp_f32", "v_rsq_f32", "v_sqrt_f32", "v_sin_f32", "v_cos_f32")

def parse(text):
    I = Ins(); I.text = text; I.label = None; I.target = None
    I.vr = set(); I.vw = set(); I.sr = set(); I.sw = set(); I.mfma_c = set(); I.mfma_ab = set(); I.passes = 0; I.dpp = False
    I.nstates = 1
    t = text.split(";")[0].strip()
    if t.endswith(":"):
        I.kind = "label"; I.label = t[:-1]; I.op = ""; I.nstates = 0; return I
    if t == "" or t.startswith("."):
        I.kind = "dir"; I.op = ""; I.nstates = 0; return I
    parts = t.split(None, 1)
    op = parts[0]; I.op = op
    rest = parts[1] if len(parts) > 1 else ""
    ops = [o.strip() for o in rest.split(",")] if rest else []
    mods = ""
    if ops:
        l = ops[-1].split(None, 1)
        ops[-1] = l[0]; mods = l[1] if len(l) > 1 else ""
    def R(tok):
        for r in regs_of(tok): (I.sr if r[0] == "s" else I.vr).add(r)
    def W(tok):
        for r in regs_of(tok): (I.sw if r[0] == "s" else I.vw).add(r)
    if op.startswith("v_mfma") or op.startswith("v_smfmac"):
        I.kind = "mfma"
        W(ops[0]); R(ops[1]); R(ops[2]); R(ops[3])
        I.mfma_ab = set(regs_of(ops[1])) | set(regs_of(ops[2]))
        I.mfma_c = set(r for r in regs_of(ops[3]) if r[0] != "s")
        if op.startswith("v_smfmac"):
            I.mfma_ab |= I.mfma_c; I.mfma_c = set(regs_of(ops[0])); R(ops[0])
        I.passes = 8 if "32x32" in op else 4
    elif op.startswith("v_"):
        I.kind = "valu"
        base = op.replace("_e32", "").replace("_e64", "").replace("_dpp", "").replace("_sdwa", "")
        if "row_" in mods or "quad_perm" in mods or "_dpp" in op: I.dpp = True
        if base.startswith("v_cmp"):
            W(ops[0]); [R(o) for o in ops[1:]]
            if base.startswith("v_cmpx"): W("exec")
        elif base in ("v_readfirstlane_b32", "v_readlane_b32"):
            W(ops[0]); [R(o) for o in ops[1:]]
        elif base.startswith("v_permlane") and "swap" in base:
            W(ops[0]); W(ops[1]); R(ops[0]); R(ops[1])
        elif base in ("v_add_co_u32", "v_sub_co_u32", "v_addc_co_u32", "v_subb_co_u32"):
            W(ops[0]); W(ops[1]); [R(o) for o in ops[2:]]
        elif base == "v_nop":
            pass
        else:
            W(ops[0]); [R(o) for o in ops[1:]]
            if base in ("v_fmac_f32", "v_pk_fmac_f16", "v_writelane_b32"): R(ops[0])
            if I.dpp: R(ops[0])
            if base == "v_cndmask_b32" and len(ops) == 3: R("vcc")
    elif op.startswith("buffer_") or op.startswith("global_"):
        I.kind = "vmem"
        if op in ("buffer_wbl2", "buffer_inv"): pass
        elif "load" in op:
            if " lds" in (" " + mods) :
                [R(o) for o in ops]; R("m0")
            else:
                W(ops[0]); [R(o) for o in ops[1:]]
        elif "atomic" in op:
            [R(o) for o in ops]
            if "sc0" in mods: W(ops[0])
        else:
            [R(o) for o in ops]
    elif op.startswith("ds_"):
        I.kind = "ds"
        if op.startswith("ds_read") or op.startswith("ds_bpermute") or op.startswith("ds_swizzle") or op.startswith("ds_permute"):
            W(ops[0]); [R(o) for o in ops[1:]]
        else:
            [R(o) for o in ops]
    elif op.startswith("s_"):
        I.kind = "salu"
        if op == "s_nop":
            I.nstates = int(ops[0], 0) + 1
        elif op in ("s_branch",) or op.startswith("s_cbranch"):
            I.kind = "branch"; I.target = ops[0]
        elif op in ("s_waitcnt", "s_barrier", "s_endpgm", "s_sleep", "s_setprio"):
            pass
        elif op.startswith("s_cmp") or op.startswith("s_bitcmp"):
            [R(o) for o in ops]
        elif op.startswith("s_load") or op.startswith("s_memtime") or op.startswith("s_memrealtime"):
            W(ops[0]); [R(o) for o in ops[1:]]
        elif op.startswith("s_getreg"):
            W(ops[0])
        elif "saveexec" in op:
            W(ops[0]); W("exec"); R(ops[1]); R("exec")
        else:
            W(ops[0]); [R(o) for o in ops[1:]]
    else:
        raise ValueError("unknown op: " + text)
    return I

def need_states(P, C):
    n = 0
    if P.kind == "valu":
        if C.kind == "mfma" and (P.vw & C.vr): n = max(n, 2)
        if C.kind == "mfma" and (("s", "exec_lo") in P.sw): n = max(n, 4)
        if C.kind == "valu":
            cb = C.op.replace("_e32", "").replace("_e64", "")
            if C.dpp and (P.vw & C.vr): n = max(n, 2)
            if C.dpp and (("s", "exec_lo") in P.sw): n = max(n, 5)
            if cb.startswith("v_permlane") and (P.vw & C.vr): n = max(n, 2)
            if cb in ("v_readfirstlane_b32", "v_readlane_b32") and (P.vw & C.vr): n = max(n, 1)
            if cb in ("v_readlane_b32", "v_writelane_b32") and (P.sw & C.sr): n = max(n, 4)
            if P.sw & C.sr: n = max(n, 2)
            if P.op.replace("_e32", "").replace("_e64", "") in TRANS and (P.vw & C.vr): n = max(n, 1)
            if (("s", "exec_lo") in P.sw) and (cb.startswith("v_permlane") or cb.startswith("v_read")): n = max(n, 4)
        if C.kind == "vmem" and (P.sw & C.sr): n = max(n, 5)
        if C.kind in ("salu", "branch") and (P.sw & C.sr): n = max(n, 1)
    if P.kind == "mfma":
        big = {4: 8, 8: 12}[P.passes]
        if C.kind == "mfma":
            if P.vw & C.mfma_ab: n = max(n, big)
            ov = P.vw & C.mfma_c
            if ov and not (P.vw == C.mfma_c and P.op == C.op): n = max(n, {4: 6, 8: 10}[P.passes])
            if (P.vw & C.vw) and not ov: n = max(n, big)
        elif C.kind in ("valu", "vmem", "ds"):
            if P.vw & (C.vr | C.vw): n = max(n, big)
            if C.kind == "valu" and (P.mfma_c & C.vw): n = max(n, {4: 3, 8: 7}[P.passes])
    if P.kind == "vmem" and ("store" in P.op or "atomic" in P.op) and ("x3" in P.op or "x4" in P.op):
        if C.kind in ("valu", "mfma") and (P.vr & C.vw): n = max(n, 2)
        elif C.kind in ("ds", "vmem") and (P.vr & C.vw): n = max(n, 1)
    if P.kind == "salu" and ("s", "m0") in P.sw and C.kind == "vmem" and ("s", "m0") in C.sr: n = max(n, 1)
    return n

MAXW = 12

def pad_hazards(lines):
    ins = [parse(l) for l in lines]
    total = 0
    for _round in range(50):
        lab = {I.label: i for i, I in enumerate(ins) if I.kind == "label"}
        jumps = {}
        for i, I in enumerate(ins):
            if I.kind == "branch" and I.target in lab: jumps.setdefault(lab[I.target], []).append(i)
        def walk(i, dist, C, seen):
            worst = 0
            j = i - 1
            while j >= 0 and dist < MAXW:
                P = ins[j]
                if P.kind == "label":
                    for b in jumps.get(j, []):
                        if (b, dist) not in seen:
                            seen.add((b, dist))
                            worst = max(worst, walk(b, dist + 1, C, seen))
                    j -= 1; continue
                if P.kind == "dir": j -= 1; continue
                if (P.op == "s_branch" or P.op == "s_endpgm") : return worst
                need = need_states(P, C)
                if need > dist: worst = max(worst, need - dist)
                dist += P.nstates
                j -= 1
            return worst
        new = []; changed = False
        for i, C in enumerate(ins):
            if C.kind in ("valu", "mfma", "vmem", "ds", "salu", "branch"):
                d = walk(i, 0, C, set())
                if d > 0:
                    new.append(parse(f"    s_nop {d-1}   ; pad")); changed = True; total += 1
            new.append(C)
            if changed:
                new.extend(ins[i+1:]); break
        if not changed: break
        ins = new
        _round = 0
    return [I.text for I in ins]

def pad_hazards_fast(lines):
    ins = [parse(l) for l in lines]
    for _ in range(20):
        lab = {I.label: i for i, I in enumerate(ins) if I.kind == "label"}
        jumps = {}
        for i, I in enumerate(ins):
            if I.kind == "branch" and I.target in lab: jumps.setdefault(lab[I.target], []).append(i)
        pads = {}
        def states(j): return ins[j].nstates + 0
        def walk(i, dist, C, seen):
            worst = 0
            j = i - 1
            dist += pads.get(i, 0) if False else 0
            while j >= 0 and dist < MAXW:
                P = ins[j]
                if P.kind == "label":
                    for b in jumps.get(j, []):
                        if (b, dist) not in seen:
                            seen.add((b, dist))
                            worst = max(worst, walk(b, dist + 1 + pads.get(b, 0), C, seen))
                    j -= 1; continue
                if P.kind == "dir": j -= 1; continue
                if P.op in ("s_branch", "s_endpgm", "s_setpc_b64"): return worst
                need = need_states(P, C)
                if need > dist: worst = max(worst, need - dist)
                dist += P.nstates + pads.get(j, 0)
                j -= 1
            return worst
        for i, C in enumerate(ins):
            if C.kind in ("valu", "mfma", "vmem", "ds", "salu", "branch"):
                d = walk(i, 0, C, set())
                if d > 0: pads[i] = d
        if not pads: return [I.text for I in ins]
        new = []
        for i, C in enumerate(ins):
            if i in pads: new.append(parse(f"    s_nop {pads[i]-1}   ; pad"))
            new.append(C)
        ins = new
    raise RuntimeError("hazard padding did not converge")

class Counter:
    def __init__(self, asm, name, maxn):
        self.a = asm; self.name = name; self.maxn = maxn; self.q = []
    def issue(self, tag): self.q.append(tag)
    def wait(self, tag):
        idx = max((i for i, t in enumerate(self.q) if t == tag), default=None)
        if idx is None: return
        n = len(self.q) - 1 - idx
        assert n <= self.maxn, (self.name, n)
        self.a.e(f"s_waitcnt {self.name}({n})")
        self.q = self.q[idx + 1:]
    def wait_all(self):
        self.a.e(f"s_waitcnt {self.name}(0)"); self.q = []
    def set(self, q): self.q = list(q)

class Asm:
    def __init__(self):
        self.lines = []; self.nl = 0
        self.vm = Counter(self, "vmcnt", 63); self.lg = Counter(self, "lgkmcnt", 15)
    def e(self, s):
        for l in s.split("\n"):
            l = l.strip()
            if not l: continue
            self.lines.append(l if l.split(";")[0].strip().endswith(":") or l.startswith(".") or l.startswith(";") else "    " + l)
    def lab(self, base="L"):
        self.nl += 1; return f"{base}_{self.nl}"
    def text(self): return "\n".join(pad_hazards_fast(self.lines)) + "\n"

def vr(b, n=1, c="v"): return f"{c}{b}" if n == 1 else f"{c}[{b}:{b+n-1}]"
def ar(b, n=1): return vr(b, n, "a")
def sr(b, n=1): return vr(b, n, "s")
```

```python
from asmlib import *
from gen import *
MF = "v_mfma_f32_16x16x32_bf16"
WS = f"s[{S_WS}:{S_WS+3}]"
sS, sL, sSLOT, sXI, sXO, sNO, sFO, sPEND = 37, 38, 39, 28, 29, 30, 31, 76
vRHO, vG, vRd, vXo, vNo, vPs, vZERO, vONE, vST = 3, 4, 5, 6, 7, 8, 9, 10, 11
SEL, POI = 12, 16
RL, RD, XR, T = 192, 224, 228, 232
STATS = 163840 - 64

def setup(G, m, gi_expr_shift):
    e = G.e
    e(f"""
    v_and_b32 v{vRHO}, 15, v{vLANE}
    v_lshrrev_b32 v{vG}, 4, v{vLANE}
    s_sub_u32 s{sT0}, s{sGRP}, 4
    s_lshl_b32 s{sT0}, s{sT0}, 21
    s_add_u32 s{sSLOT}, s{sT0}, {APART}
    s_lshl_b32 s{sT0}, s{sRANK}, 15
    s_lshl_b32 s{sT1}, s{sW}, 8
    s_add_u32 s{sT0}, s{sT0}, s{sT1}
    v_lshlrev_b32 v{T}, 4, v{vRHO}
    v_lshl_add_u32 v{T+1}, v{vG}, 10, v{T}
    v_add_u32 v{vRd}, s{sT0}, v{T+1}
    v_and_b32 v{T+1}, 1, v{vG}
    v_lshlrev_b32 v{T+1}, 3, v{T+1}
    s_lshl_b32 s{sT0}, s{sRANK}, 10
    s_add_u32 s{sT0}, s{sT0}, s{sT1}
    v_add3_u32 v{vXo}, v{T}, v{T+1}, s{sT0}
    s_lshr_b32 s{sT2}, s{sRANK}, 1
    s_and_b32 s{sT2}, s{sT2}, 15
    v_xor_b32 v{T}, s{sT2}, v{vRHO}
    v_lshlrev_b32 v{T}, 4, v{T}
    v_add3_u32 v{vNo}, v{T}, v{T+1}, s{sT0}
    v_mov_b32 v{vZERO}, 0
    v_mov_b32 v{vONE}, 1
    s_lshl_b32 s{sT0}, s{sW}, 3
    s_add_u32 s{sT0}, s{sT0}, {STATS}
    v_mov_b32 v{vST}, s{sT0}
    s_mov_b32 s{sS}, 0
    s_mov_b32 s{sPEND}, 0
    v_and_b32 v{T}, 7, v{vRHO}""")
    for p in range(4):
        e(f"""v_mov_b32 v{SEL+p}, 0
        v_cmp_eq_u32 vcc, {2*p}, v{T}
        v_mov_b32 v{T+1}, 0x3f80
        v_cndmask_b32 v{SEL+p}, v{SEL+p}, v{T+1}, vcc
        v_cmp_eq_u32 vcc, {2*p+1}, v{T}
        v_mov_b32 v{T+1}, 0x3f800000
        v_cndmask_b32 v{SEL+p}, v{SEL+p}, v{T+1}, vcc
        v_mov_b32 v{POI+p}, -1""")

def poison(G, m):
    LS = "" if m == "L" else " sc1"
    for j in range(8):
        G.e(f"s_add_u32 s{sT0}, s{sSLOT}, {j*4096}\nbuffer_store_dwordx4 {vr(POI,4)}, v{vRd}, {WS}, s{sT0} offen{LS}")

def ring_init(G, m):
    e = G.e
    poison(G, m); e(f"s_xor_b32 s{sSLOT}, s{sSLOT}, {MB}"); poison(G, m); e(f"s_xor_b32 s{sSLOT}, s{sSLOT}, {MB}")
    e("s_waitcnt vmcnt(0)\ns_barrier"); G.ready_add(T); G.ready_wait(T)

def flush_pend(G):
    L = G.a.lab("L_np")
    G.e(f"""s_cmp_eq_u32 s{sPEND}, 0
    s_cbranch_scc1 {L}
    s_mov_b64 s[{sT0}:{sT0+1}], exec
    s_mov_b64 exec, 1
    buffer_store_dword v{vONE}, v{vZERO}, {WS}, s{sPEND} offen sc1
    s_mov_b64 exec, s[{sT0}:{sT0+1}]
    s_mov_b32 s{sPEND}, 0
    {L}:""")

def x_load(G, srd):
    G.e(f"buffer_load_dwordx2 v[{XR}:{XR+1}], v{vXo}, s[{srd}:{srd+3}], s{sXI} offen sc1")

def out_pack(G, m, acc, r, imm, soff_extra, pk):
    LS = "" if m == "L" else " sc1"
    e = G.e
    for p in range(4): e(f"v_cvt_pk_bf16_f32 v{pk+p}, v{acc+8*p+r}, v{acc+8*p+4+r}")
    for p in range(4): e(f"v_min_u32 v{pk+p}, -2, v{pk+p}")
    e(f"s_add_u32 s{sT0}, s{sSLOT}, {r*65536 + soff_extra}\nbuffer_store_dwordx4 {vr(pk,4)}, v{vPs}, {WS}, s{sT0} offen offset:{imm}{LS}")

def reduce_row(G, m, final_label=None):
    e = G.e; a = G.a
    L = a.lab("L_red")
    e(f"{L}:")
    for j in range(8):
        e(f"s_add_u32 s{sT0}, s{sSLOT}, {j*4096}\nbuffer_load_dwordx4 {vr(RL+4*j,4)}, v{vRd}, {WS}, s{sT0} offen sc1")
    G.timeout()
    for j in range(8):
        e(f"s_waitcnt vmcnt({7-j})\n{MF} {vr(RD,4)}, {vr(SEL,4)}, {vr(RL+4*j,4)}, {'0' if j == 0 else vr(RD,4)}")
        if j == 0: e(f"v_max3_u32 v{T}, v{RL}, v{RL+1}, v{RL+2}\nv_max_u32 v{T}, v{T}, v{RL+3}")
        else: e(f"v_max3_u32 v{T}, v{T}, v{RL+4*j}, v{RL+4*j+1}\nv_max3_u32 v{T}, v{T}, v{RL+4*j+2}, v{RL+4*j+3}")
    e(f"v_cmp_eq_u32 vcc, -1, v{T}\ns_cbranch_vccnz {L}")
    Y = T + 4
    e(f"""v_lshlrev_b32 v{Y}, 16, v{XR}
    v_and_b32 v{Y+1}, 0xffff0000, v{XR}
    v_lshlrev_b32 v{Y+2}, 16, v{XR+1}
    v_and_b32 v{Y+3}, 0xffff0000, v{XR+1}""")
    for r in range(4): e(f"v_add_f32 v{Y+r}, v{Y+r}, v{RD+r}")
    e(f"v_cvt_pk_bf16_f32 v{XR}, v{Y}, v{Y+1}\nv_cvt_pk_bf16_f32 v{XR+1}, v{Y+2}, v{Y+3}")
    if final_label: e(f"s_cmp_eq_u32 s{sL}, 1\ns_cbranch_scc1 {final_label}")
    e(f"""s_mov_b64 exec, 0xffffffff
    buffer_store_dwordx2 v[{XR}:{XR+1}], v{vXo}, {WS}, s{sXO} offen sc1
    s_mov_b64 exec, -1
    v_lshlrev_b32 v{Y}, 16, v{XR}
    v_and_b32 v{Y+1}, 0xffff0000, v{XR}
    v_lshlrev_b32 v{Y+2}, 16, v{XR+1}
    v_and_b32 v{Y+3}, 0xffff0000, v{XR+1}
    v_add_f32 v{T}, v{Y}, v{Y+1}
    v_add_f32 v{T+1}, v{Y+2}, v{Y+3}
    v_add_f32 v{T}, v{T}, v{T+1}""")
    G.row_sum(T); G.x16(T, T + 1)
    e(f"v_mul_f32 v{T}, 0x3c000000, v{T}")
    for r in range(4): e(f"v_sub_f32 v{Y+r}, v{Y+r}, v{T}")
    e(f"v_mul_f32 v{T+1}, v{Y}, v{Y}")
    for r in range(1, 4): e(f"v_fmac_f32 v{T+1}, v{Y+r}, v{Y+r}")
    G.row_sum(T + 1); G.x16(T + 1, T + 2)
    Z = RL
    e(f"""s_mov_b64 exec, 1
    ds_write_b64 v{vST}, v[{T}:{T+1}]
    s_mov_b64 exec, -1
    v_mov_b32 v{T+2}, {STATS}
    s_waitcnt lgkmcnt(0)
    s_barrier
    ds_read_b128 {vr(Z,4)}, v{T+2}
    ds_read_b128 {vr(Z+4,4)}, v{T+2} offset:16
    s_waitcnt lgkmcnt(0)
    v_add_f32 v{T+2}, v{Z}, v{Z+2}
    v_add_f32 v{T+3}, v{Z+4}, v{Z+6}
    v_add_f32 v{T+2}, v{T+2}, v{T+3}
    v_mul_f32 v{T+2}, 0x3e800000, v{T+2}
    v_add_f32 v{T+1}, v{Z+1}, v{Z+3}
    v_add_f32 v{T+3}, v{Z+5}, v{Z+7}
    v_add_f32 v{T+1}, v{T+1}, v{T+3}""")
    for k in range(4): e(f"v_sub_f32 v{Z+2*k}, v{Z+2*k}, v{T+2}")
    e(f"v_mul_f32 v{T+3}, v{Z}, v{Z}")
    for k in range(1, 4): e(f"v_fmac_f32 v{T+3}, v{Z+2*k}, v{Z+2*k}")
    e(f"""v_fmac_f32 v{T+1}, 0x43000000, v{T+3}
    v_mov_b32 v{T+3}, 0x3727c5ac
    v_fmac_f32 v{T+3}, 0x3b000000, v{T+1}
    v_rsq_f32 v{T+3}, v{T+3}
    v_sub_f32 v{T}, v{T}, v{T+2}""")
    for r in range(4): e(f"v_add_f32 v{Y+r}, v{Y+r}, v{T}")
    for r in range(4): e(f"v_mul_f32 v{Y+r}, v{Y+r}, v{T+3}")
    e(f"""v_cvt_pk_bf16_f32 v{Z}, v{Y}, v{Y+1}
    v_cvt_pk_bf16_f32 v{Z+1}, v{Y+2}, v{Y+3}
    s_mov_b64 exec, 0xffffffff
    buffer_store_dwordx2 v[{Z}:{Z+1}], v{vNo}, {WS}, s{sNO} offen sc1
    s_mov_b64 exec, -1
    s_mov_b32 s{sPEND}, s{sFO}""")

def advance(G, m):
    poison(G, m)
    G.e(f"""s_xor_b32 s{sSLOT}, s{sSLOT}, {MB}
    s_add_u32 s{sXI}, s{sXI}, 32768
    s_add_u32 s{sXO}, s{sXO}, 32768
    s_add_u32 s{sNO}, s{sNO}, 32768
    s_add_u32 s{sFO}, s{sFO}, 512
    s_add_u32 s{sS}, s{sS}, 1""")

def wide_blocks(G, blocks, st0, depth):
    e = G.e; n = len(blocks); Tm = st0 + 32 * depth
    for b in range(n + depth - 1):
        if b < n:
            srd, addrs, so, _ = blocks[b]; st = st0 + 32 * (b % depth)
            e(so)
            for i, (va, imm) in enumerate(addrs):
                e(f"buffer_load_dwordx4 {vr(st+4*i,4)}, v{va}, s[{srd}:{srd+3}], s{sT5} offen" + (f" offset:{imm}" if imm else ""))
        c = b - (depth - 1)
        if c >= 0:
            e(f"s_waitcnt vmcnt({8*(min(n-1, b) - c)})")
            st = st0 + 32 * (c % depth); ab = blocks[c][3]
            for j in range(8):
                for p in range(4):
                    t = Tm + (j * 4 + p) % 8
                    e(f"v_perm_b32 v{t}, v{st+4*(2*p+1)+(j>>1)}, v{st+4*(2*p)+(j>>1)}, s{sPHI if j & 1 else sPLO}")
                    e(f"v_accvgpr_write_b32 a{ab+4*j+p}, v{t}")
```

```python
from asmlib import *
from gen import *
import red
from red import *

def emit(G, m):
    e = G.e; a = G.a; lg = a.lg
    sQ, sKM, sFL, sBUF, sC = 77, 78, 79, 80, 81
    sMK = 82
    vQA, vKMA, vVMA, vDK, vFA, vFv, vNEG = 20, 21, 22, 23, 24, 25, 26
    ONES, PZ, P = 28, 34, 40
    Q, K, KM, V, VM, S, O, SU, OF, PK = 44, 60, 92, 108, 140, 156, 168, 200, 204, 220
    KMB = 49152
    e(f"s_sub_u32 s{sL}, s{sGRP}, 4\ns_lshr_b32 s{sL}, s{sL}, 1")
    setup(G, m, 0)
    G.srd(S_D, P_WO, 4*MB)
    e(f"""
    s_lshl_b32 s{sT0}, s{sRANK}, 17
    s_lshr_b32 s{sT1}, s{sW}, 1
    s_lshl_b32 s{sT1}, s{sT1}, 9
    s_add_u32 s{sT0}, s{sT0}, s{sT1}
    v_lshlrev_b32 v20, 4, v{vRHO}
    v_lshl_add_u32 v20, v{vG}, 13, v20
    v_add_u32 v20, s{sT0}, v20
    v_add_u32 v21, 4096, v20""")
    blocks = [(S_D, [(20 + (i >> 2), (i & 3) * 1024) for i in range(8)], f"s_mov_b32 s{sT5}, {kd*32768 + gr*256}", (gr*4 + kd) * 32)
              for gr in range(2) for kd in range(4)]
    wide_blocks(G, blocks, 32, 4)
    if m == "L":
        G.census_issue(32); G.census_check(32, "L_fb_att")
    ring_init(G, m)
    e(f"""
    s_cmp_eq_u32 s{sL}, 0
    s_cselect_b32 s{S_B}, s{P_X}, s{P_WSP}
    s_cselect_b32 s{S_B+1}, s{P_X+1}, s{P_WSP+1}
    s_cselect_b32 s{S_B+2}, {2*MB}, s{S_WS+2}
    s_mov_b32 s{S_B+3}, 0x20000
    s_cselect_b32 s{sXI}, 0, {XB + 2*MB}
    s_cselect_b32 s{sXO}, {XB}, s{sXI}
    s_cselect_b32 s{sNO}, {NB + 2*MB}, s{sXI}
    s_cselect_b32 s{sFO}, {FN}, s{sXI}
    s_cbranch_scc1 L_att_l0_{m}
    s_mov_b32 s{sXO}, {XB + 4*MB}
    s_mov_b32 s{sNO}, {NB + 6*MB}
    s_mov_b32 s{sFO}, {FN + 64*KB}
    L_att_l0_{m}:
    s_lshl_b32 s{sT0}, s{sRANK}, 4
    s_lshl_b32 s{sT1}, s{sW}, 2
    s_add_u32 s{sT0}, s{sT0}, s{sT1}
    s_add_u32 s{sFO}, s{sFO}, s{sT0}
    s_lshl_b32 s{sT0}, s{sL}, 24
    s_lshl_b32 s{sT1}, s{sRANK}, 13
    s_add_u32 s{sT0}, s{sT0}, s{sT1}
    s_lshl_b32 s{sT1}, s{sW}, 11
    s_add_u32 s{sT0}, s{sT0}, s{sT1}
    s_add_u32 s{sQ}, s{sT0}, {QKV}
    s_lshl_b32 s{sT0}, s{sL}, 23
    s_lshl_b32 s{sT1}, s{sRANK}, 12
    s_add_u32 s{sT0}, s{sT0}, s{sT1}
    s_lshl_b32 s{sT1}, s{sW}, 9
    s_add_u32 s{sT0}, s{sT0}, s{sT1}
    s_add_u32 s{sKM}, s{sT0}, {KMVM}
    s_lshl_b32 s{sT0}, s{sL}, 17
    s_lshl_b32 s{sT1}, s{sRANK}, 6
    s_add_u32 s{sT0}, s{sT0}, s{sT1}
    s_lshl_b32 s{sT1}, s{sW}, 2
    s_add_u32 s{sT0}, s{sT0}, s{sT1}
    s_add_u32 s{sFL}, s{sT0}, {FQ}
    s_mov_b32 s{sBUF}, 0
    s_mov_b32 s{sC}, 0x3e0293ee
    v_mov_b32 v{vFA}, v{vL16}
    v_mov_b32 v{vNEG}, 0xff800000
    s_and_b32 s{sT0}, s{sW}, 1
    s_lshl_b32 s{sT1}, s{sT0}, 10
    v_add_u32 v{vQA}, s{sT1}, v{vL16}
    v_and_b32 v{T}, 7, v{vRHO}
    v_lshlrev_b32 v{T}, 4, v{T}
    v_lshl_add_u32 v{vKMA}, v{vG}, 7, v{T}
    v_and_b32 v{T}, 1, v{vG}
    v_lshlrev_b32 v{T}, 8, v{T}
    v_lshl_add_u32 v{vVMA}, v{vRHO}, 4, v{T}
    v_lshrrev_b32 v{T}, 5, v{vLANE}
    v_mul_u32_u24 v{T}, {2048 - 512}, v{T}
    v_add_u32 v{vDK}, v{T}, v{vL16}
    s_lshl_b32 s{sT1}, s{sT0}, 15
    s_lshl_b32 s{sT2}, s{sRANK}, 10
    s_add_u32 s{sT1}, s{sT1}, s{sT2}
    s_lshr_b32 s{sT2}, s{sW}, 1
    s_lshl_b32 s{sT2}, s{sT2}, 9
    s_add_u32 s{sT1}, s{sT1}, s{sT2}
    v_lshlrev_b32 v{T}, 4, v{vRHO}
    v_lshl_add_u32 v{T}, v{vG}, 18, v{T}
    v_add_u32 v{vPs}, s{sT1}, v{T}
    v_lshl_add_u32 v{T}, v{vRHO}, 1, s{sT0}
    v_lshlrev_b32 v{T+1}, 3, v{vG}
    v_sub_u32 v{T}, v{T}, v{T+1}""")
    for t in range(2):
        for r in range(4): e(f"v_cmp_le_i32 s[{sMK+2*(t*4+r)}:{sMK+2*(t*4+r)+1}], {2*r+t}, v{T}")
    for r in range(4): e(f"v_mov_b32 v{ONES+r}, 0x3f803f80")
    for r in range(32, 38): e(f"v_mov_b32 v{r}, 0")
    def spin(mask, off, pend=False):
        L = a.lab("L_sp"); Lo = a.lab("L_spo")
        e(f"s_mov_b64 exec, {mask}\nbuffer_load_dword v{vFv}, v{vFA}, {WS}, s{sFL} offen offset:{off} sc1\ns_waitcnt vmcnt(0)")
        if pend: flush_pend(G)
        e(f"{L}:\nv_cmp_eq_u32 vcc, 0, v{vFv}\ns_cbranch_vccz {Lo}")
        G.timeout()
        e(f"buffer_load_dword v{vFv}, v{vFA}, {WS}, s{sFL} offen offset:{off} sc1\ns_waitcnt vmcnt(0)\ns_branch {L}\n{Lo}:\ns_mov_b64 exec, -1")
    def qkv_dma():
        e(f"s_lshl_b32 s{sT0}, s{sW}, 11\ns_add_u32 s{sT0}, s{sT0}, s{sBUF}\ns_mov_b32 s{sT1}, s{sQ}")
        for wh in range(3):
            for t in range(2):
                e(f"s_mov_b32 m0, s{sT0}\ns_add_u32 s{sT0}, s{sT0}, {1024 if t == 0 else 8192 - 1024}")
                e(f"buffer_load_dwordx4 v{vL16}, {WS}, s{sT1} offen sc1 lds\ns_add_u32 s{sT1}, s{sT1}, {1024 if t == 0 else 32*MB - 1024}")
        e(f"s_add_u32 s{sQ}, s{sQ}, 262144")
    spin(7, 0); qkv_dma()
    e(f"L_att_loop_{m}:")
    spin(8, 0, pend=True)
    e(f"""s_lshl_b32 s{sT0}, s{sW}, 10
    s_add_u32 s{sT0}, s{sT0}, {KMB}
    s_mov_b32 m0, s{sT0}
    s_add_u32 s{sFL}, s{sFL}, 2048
    buffer_load_dwordx4 v{vDK}, {WS}, s{sKM} offen sc1 lds
    s_add_u32 s{sKM}, s{sKM}, 131072""")
    x_load(G, S_B)
    e(f"""v_add_u32 v{T}, s{sBUF}, v{vL16}
    v_add_u32 v{T+1}, s{sBUF}, v{vQA}
    s_xor_b32 s{sBUF}, s{sBUF}, 24576
    s_waitcnt vmcnt(1)
    s_barrier""")
    lg.set([])
    def rd(dst, va, off, tag):
        e(f"ds_read_b128 {vr(dst,4)}, v{va} offset:{off}"); lg.issue(tag)
    for w in range(4):
        rd(Q + 4*w, T + 1, w*2048, ("q", w))
        rd(K + 8*w, T, 8192 + w*2048, ("k", w)); rd(K + 8*w + 4, T, 8192 + w*2048 + 1024, ("k", w))
        if w < 3: rd(KM + 4*w, vKMA, KMB + w*1024, ("k", w))
    S0, S1, S2 = S + 8, S, S + 4
    for w in range(4):
        if w == 1: rd(KM + 12, vKMA, KMB + 3072, ("k", 3))
        lg.wait(("k", w))
        for D, A in ((S1, K + 8*w), (S2, K + 8*w + 4), (S0, KM + 4*w)):
            e(f"{MF} {vr(D,4)}, {vr(A,4)}, {vr(Q+4*w,4)}, {'0' if w == 0 else vr(D,4)}")
    for w in range(4):
        rd(V + 8*w, T, 16384 + w*2048, ("v", w)); rd(V + 8*w + 4, T, 16384 + w*2048 + 1024, ("v", w))
        rd(VM + 4*w, vVMA, KMB + 512 + w*1024, ("v", w))
    for t, D in enumerate((S1, S2)):
        for r in range(4): e(f"v_cndmask_b32 v{D+r}, v{vNEG}, v{D+r}, s[{sMK+2*(t*4+r)}:{sMK+2*(t*4+r)+1}]")
    mx, t0 = PK, PK + 1
    e(f"""v_max3_f32 v{mx}, v{S1}, v{S1+1}, v{S1+2}
    v_max3_f32 v{t0}, v{S1+3}, v{S2}, v{S2+1}
    v_max3_f32 v{mx}, v{mx}, v{S2+2}, v{S2+3}
    s_mov_b64 exec, 0xffffffff
    v_max3_f32 v{t0}, v{t0}, v{S0}, v{S0+1}
    v_max3_f32 v{mx}, v{mx}, v{S0+2}, v{S0+3}
    s_mov_b64 exec, -1
    v_max_f32 v{mx}, v{mx}, v{t0}""")
    G.x16(mx, t0, "v_max_f32"); G.x32(mx, t0, "v_max_f32")
    e(f"v_mul_f32 v{mx}, s{sC}, v{mx}")
    for r in range(12): e(f"v_fma_f32 v{S+r}, v{S+r}, s{sC}, -v{mx}")
    for r in range(12): e(f"v_exp_f32 v{S+r}, v{S+r}")
    for r in range(4): e(f"v_cvt_pk_bf16_f32 v{P+r}, v{S1+r}, v{S2+r}")
    e(f"s_mov_b64 exec, 0xffffffff\nv_cvt_pk_bf16_f32 v{PZ}, v{S0}, v{S0+1}\nv_cvt_pk_bf16_f32 v{PZ+1}, v{S0+2}, v{S0+3}\ns_mov_b64 exec, -1")
    e(f"{MF} {vr(SU,4)}, {vr(ONES,4)}, {vr(P,4)}, 0\n{MF} {vr(SU,4)}, {vr(ONES,4)}, {vr(PZ,4)}, {vr(SU,4)}")
    for w in range(4):
        lg.wait(("v", w))
        for j in range(2): e(f"{MF} {vr(O+8*w+4*j,4)}, {vr(V+8*w+4*j,4)}, {vr(P,4)}, 0")
        for j in range(2): e(f"{MF} {vr(O+8*w+4*j,4)}, {vr(VM+4*w,4)}, {vr(PZ-2*j,4)}, {vr(O+8*w+4*j,4)}")
        if w == 1: e(f"v_rcp_f32 v{SU}, v{SU}")
    for w in range(4):
        for r in range(4):
            e(f"v_mul_f32 v{O+8*w+r}, v{O+8*w+r}, v{SU}\nv_mul_f32 v{O+8*w+4+r}, v{O+8*w+4+r}, v{SU}\nv_cvt_pk_bf16_f32 v{OF+4*w+r}, v{O+8*w+r}, v{O+8*w+4+r}")
    ACC = [44, 76]
    for gr in range(2):
        for kd in range(4):
            for j in range(8):
                D = vr(ACC[gr] + 4*j, 4)
                e(f"{MF} {D}, {vr(OF+4*kd,4)}, {ar((gr*4+kd)*32+4*j,4)}, {'0' if kd == 0 else D}")
            if gr == 1: out_pack(G, m, ACC[0], kd, 0, 0, PK)
            if gr == 0 and kd == 0:
                Ln = a.lab("L_nonext")
                e(f"s_cmp_eq_u32 s{sS}, 63\ns_cbranch_scc1 {Ln}")
                spin(7, 0); qkv_dma(); e(f"{Ln}:")
    for r in range(4): out_pack(G, m, ACC[1], r, 256, 0, PK)
    reduce_row(G, m)
    advance(G, m)
    e(f"s_cmp_lt_u32 s{sS}, 64\ns_cbranch_scc1 L_att_loop_{m}\ns_waitcnt vmcnt(0)")
    flush_pend(G)
    e("s_endpgm")
    if m == "L": G.far_fallback("L_fb_att")
```

```python
from asmlib import *
from gen import *

MF = "v_mfma_f32_16x16x32_bf16"
MF16 = "v_mfma_f32_16x16x16_bf16"

def emit(G, m):
    e = G.e; a = G.a; vm = a.vm; lg = a.lg
    LAG = G.LAG; NI = 64 + LAG if LAG < 64 else 64
    LS = "" if m == "L" else " sc1"
    WS = f"s[{S_WS}:{S_WS+3}]"
    sI, sK1, sK2, sF1, sF2, sF1c, sF2c = 37, 38, 39, 28, 29, 30, 31
    sPs, sRs, sMr, sMp, sC, sKB, sOVI = 76, 77, 78, 79, 80, 81, 82
    sMA, sMB, sMM, sPM, sKMm, sVMm = 84, 86, 88, 90, 92, 94
    vLW, vLM, vXW, vST, vPst, vPub, vKM, vVM, vFl, vTS, vFv = 3, 4, 5, 6, 7, 8, 9, 10, 11, 12, 0
    PM, SEL, ONES, Q1, Q2, P1, P2, KX, VX = 16, 20, 24, 28, 32, 36, 40, 44, 60
    sM0 = 83
    MR, WR, AQ, AK, AV, KBF = 76, 88, 100, 108, 116, 124
    WQ0, WO0 = 128, 192
    MEMF, SX, OX = 0, 16384, 28672

    def stamp(k):
        if not G.ts: return
        e(f"s_memtime s[{50+2*k}:{51+2*k}]")

    G.srd(S_A, P_WQ, 4*MB); G.srd(S_B, P_WK, 4*MB); G.srd(S_C, P_WV, 4*MB); G.srd(S_D, P_WO, 4*MB)
    vW = 80
    e(f"""
    v_and_b32 v90, 15, v{vLANE}              ; rho
    v_lshrrev_b32 v91, 4, v{vLANE}           ; g
    s_lshl_b32 s{sT0}, s{sRANK}, 8
    s_lshl_b32 s{sT1}, s{sW}, 6
    s_add_u32 s{sT0}, s{sT0}, s{sT1}
    v_lshlrev_b32 v92, 2, v90
    v_lshl_add_u32 v93, v91, 16, v92
    v_add_u32 v{vW}, s{sT0}, v93
    s_lshl_b32 s{sT0}, s{sRANK}, 17
    s_add_u32 s{sT0}, s{sT0}, s{sT1}
    v_lshl_add_u32 v93, v91, 13, v92
    v_add_u32 v88, s{sT0}, v93
    v_add_u32 v89, 4096, v88
    s_lshl_b32 s{sT0}, s{sW}, 15
    v_add_u32 v{vLW}, s{sT0}, v{vL16}""")
    for i in range(1, 8): e(f"v_add_u32 v{vW+i}, {8192*i}, v{vW}")
    A8 = [(vW + i, 0) for i in range(8)]
    blocks = []
    for k in range(16): blocks.append((S_A, A8, f"s_mov_b32 s{sT5}, {k*262144}", G.sink_v(WQ0 + 4*k), G.sink_lds(vLW, k*1024)))
    for k in range(16): blocks.append((S_B, A8, f"s_mov_b32 s{sT5}, {k*262144}", G.sink_a(8*k), G.sink_a(8*k + 4)))
    for k in range(16): blocks.append((S_C, A8, f"s_mov_b32 s{sT5}, {k*262144}", G.sink_a(128 + 8*k), G.sink_a(128 + 8*k + 4)))
    for q in range(4):
        for kd in range(4):
            blocks.append((S_D, [(88 + (i >> 2), (i & 3) * 1024) for i in range(8)], f"s_mov_b32 s{sT5}, {kd*32768 + q*256}",
                           G.sink_v(WO0 + 4*(q*4 + kd)), G.sink_lds(vLW, 16384 + (q*4 + kd)*1024)))
    e(f"""
    s_lshl_b32 s{sT0}, s{sW}, 17
    s_lshl_b32 s{sT1}, s{sRANK}, 12
    s_add_u32 s{sT0}, s{sT0}, s{sT1}
    s_add_u32 s{sRs}, s{sT0}, {CPART}
    s_mov_b32 s{sPs}, {CPART}
    s_lshl_b32 s{sT0}, s{sW}, 12
    s_add_u32 s{sMr}, s{sT0}, {MEMR + 16384}
    s_lshr_b32 s{sT1}, s{sRANK}, 3
    s_lshl_b32 s{sT1}, s{sT1}, 10
    s_add_u32 s{sT0}, s{sT0}, s{sT1}             ; kappa*1024
    s_and_b32 s{sT1}, s{sRANK}, 7
    s_lshl_b32 s{sT1}, s{sT1}, 7
    s_add_u32 s{sT0}, s{sT0}, s{sT1}
    s_add_u32 s{sMp}, s{sT0}, {MEMR + 16384}
    v_and_b32 v93, 7, v90
    v_lshlrev_b32 v93, 4, v93
    v_and_b32 v94, 1, v91
    v_lshl_add_u32 v{vPub}, v94, 3, v93
    s_mov_b32 s{sPM}, 0x00ff00ff
    s_mov_b32 s{sPM+1}, 0""")
    def h_issue():
        if m == "L": G.census_issue(96)
    def h_poison():
        if m == "L": G.census_check(96, "L_fb_chain", waited=True)
        for r in range(4): e(f"v_mov_b32 v{100+r}, -1")
        for sl in range(2):
            e(f"s_xor_b32 s{sT0}, s{sRs}, {sl*0x80000}")
            for i in range(4): e(f"buffer_store_dwordx4 v[100:103], v{vL16}, {WS}, s{sT0} offen offset:{i*1024}{LS}")
            e(f"s_xor_b32 s{sT0}, s{sMp}, {sl*0x4000}\ns_mov_b64 exec, s[{sPM}:{sPM+1}]")
            e(f"buffer_store_dwordx2 v[100:101], v{vPub}, {WS}, s{sT0} offen{LS}\ns_mov_b64 exec, -1")
    def h_ready():
        e("s_barrier"); G.ready_add(100)
    G.wstream(blocks, 16, 7, {30: h_issue, 38: h_poison, 50: h_ready})
    if G.ts: e("s_memrealtime s[100:101]")
    G.ready_wait(100)
    G.srd(S_A, P_MEM0, 8192)
    e(f"""
    v_add_u32 v{vLM}, 131072, v{vL16}
    s_lshl_b32 s{sT0}, s{sW}, 10
    v_add_u32 v{vXW}, s{sT0}, v{vLM}
    s_lshl_b32 s{sT0}, s{sW}, 12
    v_add_u32 v{vST}, s{sT0}, v{vLM}
    v_lshrrev_b32 v94, 3, v90
    v_lshl_add_u32 v94, v91, 1, v94
    v_lshlrev_b32 v94, 12, v94
    s_lshl_b32 s{sT0}, s{sW}, 15
    s_lshl_b32 s{sT1}, s{sRANK}, 7
    s_add_u32 s{sT0}, s{sT0}, s{sT1}
    v_add3_u32 v{vPst}, v94, v93, s{sT0}
    s_lshl_b32 s{sT0}, s{sRANK}, 12
    s_lshl_b32 s{sT1}, s{sW}, 9
    s_add_u32 s{sT0}, s{sT0}, s{sT1}
    s_add_u32 s{sT0}, s{sT0}, {KMVM}
    s_mov_b32 s{sT2}, {(64 - LAG) * 131072 if LAG < 64 else 0}
    v_lshrrev_b32 v94, 3, v90
    v_mul_lo_u32 v94, v94, s{sT2}
    v_lshl_add_u32 v95, v91, 7, v93
    v_add3_u32 v{vKM}, v94, v95, s{sT0}
    v_lshrrev_b32 v94, 1, v91
    v_mul_lo_u32 v94, v94, s{sT2}
    v_and_b32 v95, 1, v91
    v_lshlrev_b32 v95, 8, v95
    v_lshl_add_u32 v95, v90, 4, v95
    s_add_u32 s{sT0}, s{sT0}, 2048
    v_add3_u32 v{vVM}, v94, v95, s{sT0}
    v_and_b32 v94, 1, v{vLANE}
    v_add_u32 v94, 1, v94
    v_cmp_eq_u32 vcc, 4, v{vLANE}
    v_cndmask_b32 v94, v94, 3, vcc
    s_lshl_b32 s{sT0}, s{sRANK}, 6
    s_lshl_b32 s{sT1}, s{sW}, 2
    s_add_u32 s{sT0}, s{sT0}, s{sT1}
    s_add_u32 s{sT0}, s{sT0}, {FQ}
    v_lshl_add_u32 v{vFl}, v94, 4, s{sT0}
    s_lshl_b32 s{sT0}, s{sRANK}, 13
    s_lshl_b32 s{sT1}, s{sW}, 11
    s_add_u32 s{sT0}, s{sT0}, s{sT1}
    s_add_u32 s{sKB}, s{sT0}, {QKV + 32*MB}
    s_mov_b32 s{sC}, 0x3e0293ee
    s_mov_b32 s{sMA}, 0x00ff00ff
    s_mov_b32 s{sMA+1}, 0x00ff00ff
    s_mov_b32 s{sMB}, 0xff00ff00
    s_mov_b32 s{sMB+1}, 0xff00ff00
    s_mov_b32 s{sMM}, 0x00ff00ff
    s_mov_b32 s{sMM+1}, 0xff00ff00
    s_and_b32 s{sT0}, s{sRANK}, 1
    s_cmp_eq_u32 s{sT0}, 1
    s_cselect_b32 s{sOVI}, {LAG - 1}, -1
    v_and_b32 v94, 7, v90""")
    for p in range(4):
        e(f"""v_mov_b32 v{SEL+p}, 0
        v_cmp_eq_u32 vcc, {2*p}, v94
        v_mov_b32 v95, 0x3f80
        v_cndmask_b32 v{SEL+p}, v{SEL+p}, v95, vcc
        v_cmp_eq_u32 vcc, {2*p+1}, v94
        v_mov_b32 v95, 0x3f800000
        v_cndmask_b32 v{SEL+p}, v{SEL+p}, v95, vcc
        v_mov_b32 v{ONES+p}, 0x3f803f80""")
    for r in list(range(Q1, KX)) + list(range(12, 20)): e(f"v_mov_b32 v{r}, 0")
    e(f"""
    v_and_b32 v94, 7, v90
    v_lshlrev_b32 v94, 10, v94
    v_lshl_add_u32 v95, v91, 4, v94
    s_lshl_b32 s{sT0}, s{sW}, 8""")
    for i in range(4): e(f"buffer_load_dwordx4 v[{VX+4*i}:{VX+4*i+3}], v95, s[{S_A}:{S_A+3}], s{sT0} offen offset:{i*64}")
    e(f"""
    s_lshr_b32 s{sT1}, s{sRANK}, 3
    s_lshl_b32 s{sT1}, s{sT1}, 6
    s_add_u32 s{sT0}, s{sT0}, s{sT1}
    s_lshr_b32 s{sT1}, s{sRANK}, 1
    s_and_b32 s{sT1}, s{sT1}, 3
    s_lshl_b32 s{sT1}, s{sT1}, 4
    s_add_u32 s{sM0}, s{sT0}, s{sT1}
    s_mov_b32 s{sI}, 0
    s_mov_b32 s{sF1}, 0
    s_mov_b32 s{sF2}, {64*2048 if LAG == 0 else 0}
    s_mov_b32 s{sK1}, s{sKB}
    s_mov_b32 s{sK2}, s{sKB}""")
    def fl_issue():
        e(f"""s_mov_b64 exec, 3
        buffer_load_dword v{vFv}, v{vFl}, {WS}, s{sF1} offen sc1
        s_mov_b64 exec, 12
        buffer_load_dword v{vFv}, v{vFl}, {WS}, s{sF2} offen sc1
        s_mov_b64 exec, -1""")
        vm.issue("fl"); vm.issue("fl")
    def fl_check():
        L = a.lab("L_fl"); Lo = a.lab("L_flo")
        e(f"{L}:\nv_cmp_eq_u32 vcc, 0, v{vFv}\ns_and_b32 s{sT0}, vcc_lo, 15\ns_cbranch_scc0 {Lo}")
        G.timeout()
        q = list(vm.q); fl_issue(); vm.set(q)
        e(f"s_waitcnt vmcnt(0)\ns_branch {L}\n{Lo}:")
    def kx_issue():
        for c, s in enumerate((sK1, sK2)):
            for t in range(2):
                e(f"buffer_load_dwordx4 v[{KX+8*c+4*t}:{KX+8*c+4*t+3}], v{vL16}, {WS}, s{s} offen offset:{t*1024} sc1"); vm.issue("kx")
    def vx_issue():
        for c, s in enumerate((sK1, sK2)):
            e(f"s_add_u32 s{sT0}, s{s}, {32*MB}")
            for t in range(2):
                e(f"buffer_load_dwordx4 v[{VX+8*c+4*t}:{VX+8*c+4*t+3}], v{vL16}, {WS}, s{sT0} offen offset:{t*1024} sc1"); vm.issue("vx")
    vm.set([])
    fl_issue(); e("s_waitcnt vmcnt(0)"); vm.set([]); fl_check(); kx_issue()
    for r in range(VX, VX + 16): e(f"v_min_u32 v{r}, -2, v{r}")
    for i in range(4): e(f"ds_write_b128 v{vST}, v[{VX+4*i}:{VX+4*i+3}] offset:{MEMF + i*1024}")
    e(f"s_waitcnt vmcnt(0) lgkmcnt(0)\ns_barrier")
    if G.ts: e("s_memrealtime s[96:97]\ns_memtime s[72:73]\ns_waitcnt lgkmcnt(0)\ns_mov_b32 s99, s100\ns_mov_b32 s97, s72")
    e(f"s_cmp_ge_u32 s{sW}, 2\ns_cbranch_scc1 L_ch_first_B_{m}")

    def next_offsets():
        e(f"""s_cmp_lt_u32 s{sI}, 64
        s_cselect_b32 s{sF1c}, s{sF1}, {128*2048}
        s_cselect_b32 s{sT4}, 0x00ff00ff, 0
        s_cselect_b32 s{sVMm}, -1, 0
        s_cmp_ge_u32 s{sI}, {LAG}
        s_cselect_b32 s{sF2c}, s{sF2}, {128*2048}
        s_cselect_b32 s{sT5}, 0xff00ff00, 0
        s_cselect_b32 s{sVMm+1}, -1, 0
        s_or_b32 s{sKMm}, s{sT4}, s{sT5}
        s_mov_b32 s{sKMm+1}, s{sKMm}
        s_add_u32 s{sT0}, s{sI}, 1
        s_add_u32 s{sT1}, s{sI}, {65 - LAG if LAG < 64 else 1}
        s_cmp_lt_u32 s{sT0}, 64
        s_cselect_b32 s{sT2}, s{sT0}, s{sT1}
        s_cmp_ge_u32 s{sT0}, {LAG}
        s_cselect_b32 s{sT3}, s{sT1}, s{sT0}
        s_lshl_b32 s{sF1}, s{sT2}, 11
        s_lshl_b32 s{sF2}, s{sT3}, 11
        s_lshl_b32 s{sT2}, s{sT2}, 18
        s_lshl_b32 s{sT3}, s{sT3}, 18
        s_add_u32 s{sK1}, s{sKB}, s{sT2}
        s_add_u32 s{sK2}, s{sKB}, s{sT3}""")
    def poll4(sbase):
        for i in range(4): e(f"buffer_load_dwordx4 v[{VX+4*i}:{VX+4*i+3}], v{vL16}, {WS}, s{sbase} offen offset:{i*1024} sc1")
    def check16(t):
        e(f"v_max3_u32 v{t}, v{VX}, v{VX+1}, v{VX+2}")
        for r in range(3, 15, 2): e(f"v_max3_u32 v{t}, v{t}, v{VX+r}, v{VX+r+1}")
        e(f"v_max_u32 v{t}, v{t}, v{VX+15}\nv_cmp_eq_u32 vcc, -1, v{t}")
    def stage():
        for i in range(4):
            e(f"ds_write_b128 v{vST}, v[{VX+4*i}:{VX+4*i+3}] offset:{MEMF + i*1024}"); lg.issue("st")

    def late_stores(POI):
        for i in range(4): e(f"buffer_store_dwordx4 {vr(POI,4)}, v{vL16}, {WS}, s{sRs} offen offset:{i*1024}{LS}")
        e(f"s_xor_b32 s{sRs}, s{sRs}, 0x80000\ns_xor_b32 s{sPs}, s{sPs}, 0x80000\ns_mov_b64 exec, 16")
        for sc in (sF1c, sF2c): e(f"buffer_store_dword v{ONES}, v{vFl}, {WS}, s{sc} offen sc1")
        e("s_mov_b64 exec, -1")
    for var in ("A", "B"):
        T = f"{var}_{m}"
        e(f"L_ch_loop_{T}:")
        vm.set([]); lg.set([])
        if var == "B":
            poll4(sMr)
            e(f"s_branch L_ch_qk_{T}\nL_ch_first_B_{m}:\ns_xor_b32 s{sMr}, s{sMr}, 0x4000\ns_xor_b32 s{sRs}, s{sRs}, 0x80000\ns_xor_b32 s{sPs}, s{sPs}, 0x80000\ns_mov_b32 s{sF1c}, {128*2048}\ns_mov_b32 s{sF2c}, {128*2048}")
            e(f"L_ch_qk_{T}:")
        stamp(0)
        def rd(k):
            e(f"ds_read_b128 v[{MR+4*(k%3)}:{MR+4*(k%3)+3}], v{vLM} offset:{MEMF + (k%16)*1024}"); lg.issue(("m", k))
        def rdw(k):
            e(f"ds_read_b128 v[{WR+4*(k%3)}:{WR+4*(k%3)+3}], v{vLW} offset:{k*1024}"); lg.issue(("w", k))
        def mq(k):
            M = vr(MR + 4*(k%3), 4)
            lg.wait(("m", k))
            e(f"{MF} {vr(AQ,4)}, {vr(WQ0+4*k,4)}, {M}, {'0' if k == 0 else vr(AQ,4)}")
            lg.wait(("w", k))
            e(f"{MF} {vr(AQ+4,4)}, {vr(WR+4*(k%3),4)}, {M}, {'0' if k == 0 else vr(AQ+4,4)}")
        def mk(k):
            M = vr(MR + 4*(k%3), 4)
            for j in range(2): e(f"{MF} {vr(AK+4*j,4)}, {ar(8*k+4*j,4)}, {M}, {'0' if k == 0 else vr(AK+4*j,4)}")
        rd(0); rdw(0); rd(1); rdw(1)
        if var == "A":
            vx_issue(); next_offsets(); fl_issue()
        for k in range(13):
            if k == 6:
                lg.wait("st"); e("s_barrier"); stamp(1)
            rd(k + 2); rdw(k + 2)
            mq(k)
            if var == "B" and k == 4:
                L = a.lab("L_g1"); Lo = a.lab("L_g1o")
                e(f"s_waitcnt vmcnt(0)\n{L}:"); check16(AV)
                e(f"s_cbranch_vccz {Lo}"); G.timeout(); poll4(sMr); e(f"s_waitcnt vmcnt(0)\ns_branch {L}\n{Lo}:")
                stage(); e(f"s_xor_b32 s{sMr}, s{sMr}, 0x4000")
            mk(k)
            if var == "B" and k == 6:
                for r in range(4): e(f"v_mov_b32 v{AV+r}, -1")
                late_stores(AV)
                vx_issue(); next_offsets(); fl_issue()
        rd(15); rdw(15)
        mq(13); mq(14); mq(15); mk(13); mk(14); mk(15)
        stamp(2)
        vs = {"k": 0, "j": 0, "rd": 0}
        def vrd():
            if vs["rd"] < 16:
                k = vs["rd"]; rd(16 + k); vs["rd"] += 1
        def vstep(n):
            for _ in range(n):
                k, j = vs["k"], vs["j"]
                if k >= 16: return
                if j == 0:
                    lg.wait(("m", 16 + k))
                e(f"{MF} {vr(AV+4*j,4)}, {vr(MR+4*((16+k)%3),4)}, {ar(128+8*k+4*j,4)}, {'0' if k == 0 else vr(AV+4*j,4)}")
                if j == 1:
                    vs["k"] += 1; vs["j"] = 0; vrd()
                else: vs["j"] = 1
        vrd(); vrd()
        e(f"s_mov_b64 exec, s[{sMA}:{sMA+1}]")
        for r in range(4): e(f"v_cvt_pk_bf16_f32 v{Q1+r}, v{AQ+r}, v{AQ+4+r}")
        e(f"s_mov_b64 exec, s[{sMB}:{sMB+1}]")
        for r in range(4): e(f"v_cvt_pk_bf16_f32 v{Q2+r}, v{AQ+r}, v{AQ+4+r}")
        e("s_mov_b64 exec, -1")
        vrd()
        S1, S2, S0 = AQ, AQ + 4, AK
        e(f"{MF} {vr(S1,4)}, {vr(KX,4)}, {vr(Q1,4)}, 0")
        e(f"v_cvt_pk_bf16_f32 v{KBF}, v{AK}, v{AK+4}\nv_cvt_pk_bf16_f32 v{KBF+1}, v{AK+1}, v{AK+5}")
        e(f"{MF} {vr(S2,4)}, {vr(KX+4,4)}, {vr(Q1,4)}, 0")
        e(f"v_cvt_pk_bf16_f32 v{KBF+2}, v{AK+2}, v{AK+6}\nv_cvt_pk_bf16_f32 v{KBF+3}, v{AK+3}, v{AK+7}")
        e(f"{MF} {vr(S1,4)}, {vr(KX+8,4)}, {vr(Q2,4)}, {vr(S1,4)}")
        e(f"{MF} {vr(S2,4)}, {vr(KX+12,4)}, {vr(Q2,4)}, {vr(S2,4)}")
        e(f"{MF} {vr(S0,4)}, {vr(KBF,4)}, {vr(Q1,4)}, 0")
        e(f"{MF} {vr(S0,4)}, {vr(KBF,4)}, {vr(Q2,4)}, {vr(S0,4)}")
        e(f"s_mov_b64 exec, s[{sKMm}:{sKMm+1}]\nbuffer_store_dwordx4 {vr(KBF,4)}, v{vKM}, {WS}, 0 offen sc1\ns_mov_b64 exec, -1")
        vm.issue("km")
        vstep(1)
        X1, X2, X3 = KBF, KBF + 1, KBF + 2
        e(f"v_xor_b32 v{X1}, 1024, v{vXW}\nv_xor_b32 v{X2}, 2048, v{vXW}\nv_xor_b32 v{X3}, 3072, v{vXW}")
        e(f"ds_write_b128 v{vXW}, {vr(S1,4)} offset:{SX+4096}"); lg.issue("sw")
        e(f"ds_write_b128 v{vXW}, {vr(S2,4)} offset:{SX+8192}"); lg.issue("sw")
        e(f"ds_write_b128 v{vXW}, {vr(S0,4)} offset:{SX}"); lg.issue("sw")
        vstep(3)
        Lk = a.lab("L_nok")
        e(f"s_cmp_eq_u32 s{sI}, {NI-1}\ns_cbranch_scc1 {Lk}")
        vm.wait("fl"); fl_check(); kx_issue()
        e(f"{Lk}:")
        lg.wait("sw"); e("s_barrier")
        stamp(3)
        TS = [WR, WR + 4, WR + 8, AK + 4]
        reads = [(d, t) for d in (X1, X2, X3) for t in (1, 2, 0)]
        dst = {1: S1, 2: S2, 0: S0}
        def prd(n):
            d, t = reads[n]
            e(f"ds_read_b128 {vr(TS[n%4],4)}, v{d} offset:{SX + t*4096}"); lg.issue(("p", n))
        for n in range(4): prd(n)
        vstep(4)
        for n in range(9):
            lg.wait(("p", n))
            D = dst[reads[n][1]]
            for r in range(4): e(f"v_add_f32 v{D+r}, v{D+r}, v{TS[n%4]+r}")
            if n + 4 < 9: prd(n + 4)
            vstep(1)
        G.dump(AQ, 12, 0, sI, 0)
        mx, t0 = WR, WR + 1
        e(f"v_max3_f32 v{mx}, v{S1}, v{S1+1}, v{S1+2}\nv_max3_f32 v{t0}, v{S1+3}, v{S2}, v{S2+1}")
        vstep(1)
        e(f"v_max3_f32 v{mx}, v{mx}, v{S2+2}, v{S2+3}")
        e(f"s_mov_b64 exec, s[{sMM}:{sMM+1}]\nv_max3_f32 v{t0}, v{t0}, v{S0}, v{S0+1}\nv_max3_f32 v{mx}, v{mx}, v{S0+2}, v{S0+3}\ns_mov_b64 exec, -1")
        e(f"v_max_f32 v{mx}, v{mx}, v{t0}\nv_mov_b32 v{t0}, v{mx}")
        vstep(2)
        e(f"v_permlane16_swap_b32 v{mx}, v{t0}\nv_max_f32 v{mx}, v{mx}, v{t0}\nv_mov_b32 v{t0}, v{mx}")
        vstep(2)
        e(f"v_permlane32_swap_b32 v{mx}, v{t0}\nv_max_f32 v{mx}, v{mx}, v{t0}\nv_mul_f32 v{mx}, s{sC}, v{mx}")
        order = [S1, S2, S1 + 1, S2 + 1, S1 + 2, S2 + 2, S1 + 3, S2 + 3, S0, S0 + 1, S0 + 2, S0 + 3]
        for n, r in enumerate(order):
            e(f"v_fma_f32 v{r}, v{r}, s{sC}, -v{mx}")
            if n % 3 == 2: vstep(1)
        for n, r in enumerate(order):
            e(f"v_exp_f32 v{r}, v{r}")
            if n % 2 == 1: vstep(1)
        vstep(32)
        stamp(4)
        e(f"s_mov_b64 exec, s[{sMA}:{sMA+1}]")
        for r in range(4): e(f"v_cvt_pk_bf16_f32 v{P1+r}, v{S1+r}, v{S2+r}")
        e(f"s_mov_b64 exec, s[{sMB}:{sMB+1}]")
        for r in range(4): e(f"v_cvt_pk_bf16_f32 v{P2+r}, v{S1+r}, v{S2+r}")
        e(f"s_mov_b64 exec, s[{sMM}:{sMM+1}]")
        e(f"v_cvt_pk_bf16_f32 v{PM}, v{S0}, v{S0+1}\nv_cvt_pk_bf16_f32 v{PM+1}, v{S0+2}, v{S0+3}\ns_mov_b64 exec, -1")
        O0, O1, SU, VB, OB = WR, WR + 4, WR + 8, AK + 4, AQ
        e(f"{MF} {vr(SU,4)}, {vr(ONES,4)}, {vr(P1,4)}, 0")
        e(f"v_cvt_pk_bf16_f32 v{VB}, v{AV}, v{AV+1}\nv_cvt_pk_bf16_f32 v{VB+1}, v{AV+2}, v{AV+3}")
        e(f"{MF} {vr(SU,4)}, {vr(ONES,4)}, {vr(P2,4)}, {vr(SU,4)}")
        e(f"v_cvt_pk_bf16_f32 v{VB+2}, v{AV+4}, v{AV+5}\nv_cvt_pk_bf16_f32 v{VB+3}, v{AV+6}, v{AV+7}")
        e(f"{MF} {vr(SU,4)}, {vr(ONES,4)}, {vr(PM,4)}, {vr(SU,4)}")
        e(f"s_mov_b64 exec, s[{sVMm}:{sVMm+1}]\nbuffer_store_dwordx4 {vr(VB,4)}, v{vVM}, {WS}, 0 offen sc1\ns_mov_b64 exec, -1")
        vm.issue("vmst")
        e(f"s_cmp_eq_u32 s{sI}, {NI-1}\ns_cbranch_scc1 L_ch_last_{m}")
        for j, O in enumerate((O0, O1)): e(f"{MF} {vr(O,4)}, {vr(VX+4*j,4)}, {vr(P1,4)}, 0")
        for j, O in enumerate((O0, O1)): e(f"{MF} {vr(O,4)}, {vr(VX+8+4*j,4)}, {vr(P2,4)}, {vr(O,4)}")
        for j, O in enumerate((O0, O1)): e(f"{MF} {vr(O,4)}, {vr(VB,4)}, {vr(PM-2*j,4)}, {vr(O,4)}")
        G.dump(WR, 12, 2, sI, 0)
        WOR = 104
        def wro(n):
            e(f"ds_read_b128 {vr(WOR+4*(n%4),4)}, v{vLW} offset:{16384 + n*1024}"); lg.issue(("o", n))
        e(f"v_rcp_f32 v{SU}, v{SU}")
        e(f"v_add_u32 v{vKM}, 131072, v{vKM}\nv_add_u32 v{vVM}, 131072, v{vVM}")
        wro(0); wro(1)
        for r in range(4):
            e(f"v_mul_f32 v{O0+r}, v{O0+r}, v{SU}\nv_mul_f32 v{O1+r}, v{O1+r}, v{SU}\nv_cvt_pk_bf16_f32 v{OB+r}, v{O0+r}, v{O1+r}")
        e(f"ds_write_b128 v{vXW}, {vr(OB,4)} offset:{OX}"); lg.issue("ow")
        wro(2); wro(3)
        lg.wait("ow"); e("s_barrier")
        stamp(5)
        OF = MR
        for kd in range(4):
            e(f"ds_read_b128 {vr(OF+4*kd,4)}, v{vLM} offset:{OX + kd*1024}"); lg.issue(("f", kd))
        ACC = [92, 120]; PK = 100
        def wo_out(q):
            A0 = ACC[q % 2]
            for r in range(4): e(f"v_cvt_pk_bf16_f32 v{PK+r}, v{A0+r}, v{A0+4+r}")
            for r in range(4): e(f"v_min_u32 v{PK+r}, -2, v{PK+r}")
            e(f"s_add_u32 s{sT0}, s{sPs}, {q*131072}\nbuffer_store_dwordx4 {vr(PK,4)}, v{vPst}, {WS}, s{sT0} offen{LS}")
        for q in range(4):
            A0 = ACC[q % 2]
            for kd in range(4):
                n = q * 4 + kd
                lg.wait(("f", kd))
                e(f"{MF} {vr(A0,4)}, {vr(WO0+4*n,4)}, {vr(OF+4*kd,4)}, {'0' if kd == 0 else vr(A0,4)}")
                lg.wait(("o", n))
                e(f"{MF} {vr(A0+4,4)}, {vr(WOR+4*(n%4),4)}, {vr(OF+4*kd,4)}, {'0' if kd == 0 else vr(A0+4,4)}")
                if n + 4 < 16: wro(n + 4)
                if q > 0 and kd == 1: wo_out(q - 1)
        wo_out(3)
        stamp(6)
        RD, POI = 76, 80
        L = a.lab("L_red"); Lm = a.lab("L_m0")
        e(f"""s_cmp_lg_u32 s{sI}, s{sOVI}
        s_cbranch_scc1 {Lm}
        v_lshrrev_b32 v86, 4, v{vPub}
        v_and_b32 v87, 8, v{vPub}
        v_lshl_add_u32 v88, v86, 10, v87
        buffer_load_dwordx2 v[86:87], v88, s[{S_A}:{S_A+3}], s{sM0} offen
        {Lm}:""")
        e(f"{L}:"); poll4(sRs)
        for r in range(4): e(f"v_mov_b32 v{POI+r}, -1")
        G.timeout()
        for i in range(4):
            e(f"s_waitcnt vmcnt({3-i})\n{MF} {vr(RD,4)}, {vr(SEL,4)}, {vr(VX+4*i,4)}, {'0' if i == 0 else vr(RD,4)}")
        check16(84)
        e(f"s_cbranch_vccnz {L}")
        G.dump(VX, 20, 3, sI, 0)
        stamp(7)
        for r in range(4): e(f"v_add_f32_dpp v{RD+r}, v{RD+r}, v{RD+r} row_ror:8 row_mask:0xf bank_mask:0xf")
        e(f"v_cvt_pk_bf16_f32 v84, v{RD}, v{RD+1}\nv_cvt_pk_bf16_f32 v85, v{RD+2}, v{RD+3}\nv_min_u32 v84, -2, v84\nv_min_u32 v85, -2, v85")
        Lp = a.lab("L_pub")
        e(f"""s_cmp_lg_u32 s{sI}, s{sOVI}
        s_cbranch_scc1 {Lp}
        v_min_u32 v84, -2, v86
        v_min_u32 v85, -2, v87
        {Lp}:
        s_mov_b64 exec, s[{sPM}:{sPM+1}]
        buffer_store_dwordx2 v[84:85], v{vPub}, {WS}, s{sMp} offen{LS}
        s_xor_b32 s{sMp}, s{sMp}, 0x4000
        buffer_store_dwordx2 v[{POI}:{POI+1}], v{vPub}, {WS}, s{sMp} offen{LS}""")
        e("s_mov_b64 exec, -1")
        stamp(8)
        if var == "A":
            L = a.lab("L_g0")
            e(f"{L}:"); poll4(sMr); G.timeout()
            e("s_waitcnt vmcnt(0)"); check16(84)
            e(f"s_cbranch_vccnz {L}")
            stamp(9)
            stage(); e(f"s_xor_b32 s{sMr}, s{sMr}, 0x4000")
            late_stores(POI)
        e(f"s_add_u32 s{sI}, s{sI}, 1")
        if var == "A": lg.wait("st")
        stamp(10)
        if G.ts:
            e("s_waitcnt lgkmcnt(0)")
            for k in range(11): e(f"v_writelane_b32 v{vTS}, s{50+2*k}, {k}")
            e(f"""s_lshl_b32 s{sT0}, s{sI}, 7
            s_add_u32 s{sT0}, s{sT0}, s{sRANK}
            s_lshl_b32 s{sT0}, s{sT0}, 2
            s_add_u32 s{sT0}, s{sT0}, s{sW}
            s_lshl_b32 s{sT0}, s{sT0}, 6
            s_add_u32 s{sT0}, s{sT0}, {TSB}
            v_lshlrev_b32 v84, 2, v{vLANE}
            s_mov_b64 exec, 0xffff
            buffer_store_dword v{vTS}, v84, {WS}, s{sT0} offen
            s_mov_b64 exec, -1""")
        e(f"s_barrier\ns_branch L_ch_loop_{T}")
    e(f"L_ch_last_{m}:\ns_waitcnt vmcnt(0)\ns_mov_b64 exec, 16\nbuffer_store_dword v{ONES}, v{vFl}, {WS}, s{sF2c if LAG < 64 else sF1c} offen sc1")
    if G.ts:
        e(f"""s_memrealtime s[100:101]
        s_memtime s[72:73]
        s_waitcnt lgkmcnt(0)
        s_mov_b64 exec, -1
        v_mov_b32 v76, s98
        v_mov_b32 v77, s99
        v_mov_b32 v78, s96
        v_mov_b32 v79, s100
        s_sub_u32 s72, s72, s97
        v_mov_b32 v80, s72
        s_lshl_b32 s{sT0}, s{sRANK}, 2
        s_add_u32 s{sT0}, s{sT0}, s{sW}
        s_lshl_b32 s{sT0}, s{sT0}, 6
        s_add_u32 s{sT0}, s{sT0}, {TSB}
        v_mov_b32 v84, 0
        buffer_store_dwordx4 v[76:79], v84, {WS}, s{sT0} offen
        buffer_store_dword v80, v84, {WS}, s{sT0} offen offset:16""")
    e("s_endpgm")
    if m == "L": G.far_fallback("L_fb_chain")
```

```python
from asmlib import *
from gen import *
import red
from red import *

def emit(G, m):
    e = G.e; a = G.a; lg = a.lg
    LS = "" if m == "L" else " sc1"
    sNI, sFI, sLG = 77, 78, 79
    vA, vFA, vFv, vH = 20, 24, 25, 26
    R0, AG, HT, HF, ACC, PK = 32, 64, 80, 96, 112, 220
    HB = 32768
    e(f"s_sub_u32 s{sL}, s{sGRP}, 5\ns_lshr_b32 s{sL}, s{sL}, 1")
    setup(G, m, 0)
    G.srd(S_A, P_W1, 512*1792*2); G.srd(S_C, P_W3, 512*1792*2); G.srd(S_D, P_W2, 512*1792*2)
    e(f"s_cmp_ge_u32 s{sRANK}, 28\ns_cbranch_scc1 L_ffn_now_{m}")
    e(f"""
    s_lshl_b32 s{sT0}, s{sRANK}, 7
    s_lshl_b32 s{sT1}, s{sW}, 5
    s_add_u32 s{sT0}, s{sT0}, s{sT1}
    v_mul_u32_u24 v20, 28672, v{vG}
    v_lshl_add_u32 v20, v{vRHO}, 1, v20
    v_add_u32 v20, s{sT0}, v20""")
    for i in range(1, 4): e(f"v_add_u32 v{20+i}, {7168*i}, v20")
    n = 32; depth = 7
    for b in range(n + depth - 1):
        if b < n:
            k, srd = b >> 1, (S_A, S_C)[b & 1]; st = 32 + 8 * (b % depth)
            e(f"s_mov_b32 s{sT5}, {k*114688}")
            for i in range(8):
                e(f"buffer_load_ushort v{st+i}, v{20+(i>>1)}, s[{srd}:{srd+3}], s{sT5} offen" + (" offset:3584" if i & 1 else ""))
        c = b - (depth - 1)
        if c >= 0:
            e(f"s_waitcnt vmcnt({8*(min(n-1, b) - c)})"); st = 32 + 8 * (c % depth)
            for p in range(4):
                e(f"v_perm_b32 v{96+p}, v{st+2*p+1}, v{st+2*p}, s{sPLO}\nv_accvgpr_write_b32 a{(c&1)*64 + (c>>1)*4 + p}, v{96+p}")
    e(f"""
    s_lshl_b32 s{sT0}, s{sRANK}, 16
    s_lshl_b32 s{sT1}, s{sW}, 8
    s_add_u32 s{sT0}, s{sT0}, s{sT1}
    v_lshlrev_b32 v20, 4, v{vRHO}
    v_lshl_add_u32 v20, v{vG}, 12, v20
    v_add_u32 v20, s{sT0}, v20
    v_add_u32 v21, 16384, v20""")
    wide_blocks(G, [(S_D, [(20 + (i >> 2), (i & 3) * 1024) for i in range(8)], f"s_mov_b32 s{sT5}, {kf*32768}", 128 + kf*32) for kf in range(2)], 32, 2)
    e(f"L_ffn_now_{m}:")
    if m == "L":
        G.census_issue(32); G.census_check(32, "L_fb_ffn")
    ring_init(G, m)
    G.srd(S_B, P_OUT, 2*MB)
    for kl in range(4):
        e(f"v_add_u32 v{T}, {4*kl}, v{vG}\nv_xor_b32 v{T}, v{T}, v{vRHO}\nv_lshlrev_b32 v{T}, 4, v{T}\nv_lshl_add_u32 v{vA+kl}, v{vRHO}, 11, v{T}")
    e(f"""
    s_lshl_b32 s{sT0}, s{sL}, 22
    s_add_u32 s{sXI}, s{sT0}, {XB}
    s_lshl_b32 s{sT1}, s{sW}, 13
    s_add_u32 s{sT0}, s{sT0}, s{sT1}
    s_add_u32 s{sNI}, s{sT0}, {NB + 2*MB}
    s_cmp_eq_u32 s{sL}, 0
    s_cselect_b32 s{sXO}, {XB + 2*MB}, 0
    s_mov_b32 s{sNO}, {NB + 4*MB}
    s_lshl_b32 s{sT0}, s{sRANK}, 4
    s_lshl_b32 s{sT1}, s{sW}, 2
    s_add_u32 s{sT0}, s{sT0}, s{sT1}
    s_add_u32 s{sFO}, s{sT0}, {FN + 32*KB}
    s_lshl_b32 s{sT2}, s{sL}, 16
    s_add_u32 s{sT2}, s{sT2}, {FN}
    s_lshl_b32 s{sT1}, s{sW}, 7
    s_cmp_ge_u32 s{sRANK}, 28
    s_cselect_b32 s{sT1}, s{sT0}, s{sT1}
    s_add_u32 s{sFI}, s{sT2}, s{sT1}
    s_mov_b32 s{sLG}, 0xbfb8aa3b
    v_lshlrev_b32 v{vFA}, 2, v{vLANE}
    s_and_b32 s{sT0}, s{sW}, 1
    s_lshl_b32 s{sT0}, s{sT0}, 3
    s_lshr_b32 s{sT1}, s{sW}, 1
    s_lshl_b32 s{sT1}, s{sT1}, 10
    s_add_u32 s{sT0}, s{sT0}, s{sT1}
    s_add_u32 s{sT0}, s{sT0}, {HB}
    v_add_u32 v{vH}, s{sT0}, v{vL16}
    s_lshl_b32 s{sT1}, s{sRANK}, 10
    s_lshl_b32 s{sT2}, s{sW}, 8
    s_add_u32 s{sT1}, s{sT1}, s{sT2}
    v_lshlrev_b32 v{T}, 4, v{vRHO}
    v_lshl_add_u32 v{T}, v{vG}, 18, v{T}
    v_add_u32 v{vPs}, s{sT1}, v{T}""")
    def spin(mask):
        L = a.lab("L_sp"); Lo = a.lab("L_spo")
        e(f"s_mov_b64 exec, {mask}\nbuffer_load_dword v{vFv}, v{vFA}, {WS}, s{sFI} offen sc1\ns_waitcnt vmcnt(0)")
        flush_pend(G)
        e(f"{L}:\nv_cmp_eq_u32 vcc, 0, v{vFv}\ns_cbranch_vccz {Lo}")
        G.timeout()
        e(f"buffer_load_dword v{vFv}, v{vFA}, {WS}, s{sFI} offen sc1\ns_waitcnt vmcnt(0)\ns_branch {L}\n{Lo}:\ns_mov_b64 exec, -1\ns_add_u32 s{sFI}, s{sFI}, 512")
    e(f"L_ffn_loop_{m}:\ns_cmp_ge_u32 s{sRANK}, 28\ns_cbranch_scc1 L_ffn_idle_{m}")
    spin("0xffffffff")
    e(f"s_lshl_b32 s{sT0}, s{sW}, 13\ns_mov_b32 s{sT1}, s{sNI}")
    for r in range(8):
        e(f"s_mov_b32 m0, s{sT0}\ns_add_u32 s{sT0}, s{sT0}, 1024")
        e(f"buffer_load_dwordx4 v{vL16}, {WS}, s{sT1} offen sc1 lds\ns_add_u32 s{sT1}, s{sT1}, 1024")
    e(f"s_add_u32 s{sNI}, s{sNI}, 32768\ns_waitcnt vmcnt(0)\ns_barrier")
    x_load(G, S_WS)
    D_, NS = 3, 4
    def rd(k):
        for t in range(2):
            e(f"ds_read_b128 {vr(R0+(k%NS)*8+4*t,4)}, v{vA+(k&3)} offset:{t*1024 + (k>>2)*256}"); lg.issue(("n", k, t))
    lg.set([])
    for k in range(D_): rd(k)
    for k in range(16):
        if k + D_ < 16: rd(k + D_)
        for t in range(2):
            lg.wait(("n", k, t))
            for u in range(2):
                acc = vr(AG + (t*2 + u)*4, 4)
                e(f"{MF} {acc}, {ar(u*64 + k*4, 4)}, {vr(R0+(k%NS)*8+4*t,4)}, {'0' if k == 0 else acc}")
    for t in range(2):
        g_, u_ = AG + 8*t, AG + 8*t + 4; h = HT + 4*t
        for r in range(4): e(f"v_mul_f32 v{h+r}, s{sLG}, v{g_+r}")
        for r in range(4): e(f"v_exp_f32 v{h+r}, v{h+r}")
        for r in range(4): e(f"v_mul_f32 v{g_+r}, v{g_+r}, v{u_+r}")
        for r in range(4): e(f"v_add_f32 v{h+r}, 1.0, v{h+r}")
        for r in range(4): e(f"v_rcp_f32 v{h+r}, v{h+r}")
        for r in range(4): e(f"v_mul_f32 v{h+r}, v{h+r}, v{g_+r}")
        e(f"v_cvt_pk_bf16_f32 v{h}, v{h}, v{h+1}\nv_cvt_pk_bf16_f32 v{h+1}, v{h+2}, v{h+3}")
        e(f"ds_write_b64 v{vH}, v[{h}:{h+1}] offset:{t*2048}")
    e("s_waitcnt lgkmcnt(0)\ns_barrier")
    for t in range(2):
        for kf in range(2):
            e(f"ds_read_b128 {vr(HF+8*t+4*kf,4)}, v{vL16} offset:{HB + t*2048 + kf*1024}"); lg.issue(("h", t, kf))
    for t in range(2):
        for kf in range(2):
            lg.wait(("h", t, kf))
            for j in range(8):
                D = vr(ACC + 32*t + 4*j, 4)
                e(f"{MF} {D}, {vr(HF+8*t+4*kf,4)}, {ar(128 + kf*32 + 4*j, 4)}, {'0' if kf == 0 else D}")
            if t == 1:
                for r in (2*kf, 2*kf + 1): out_pack(G, m, ACC, r, 0, 0, PK)
    for r in range(4): out_pack(G, m, ACC + 32, r, 0, 32768, PK)
    e(f"s_branch L_ffn_red_{m}")
    e(f"L_ffn_idle_{m}:")
    spin(1)
    e("s_barrier")
    x_load(G, S_WS)
    for p in range(4): e(f"v_mov_b32 v{PK+p}, 0")
    for t in range(2):
        for r in range(4):
            e(f"s_add_u32 s{sT0}, s{sSLOT}, {r*65536 + t*32768}\nbuffer_store_dwordx4 {vr(PK,4)}, v{vPs}, {WS}, s{sT0} offen{LS}")
    e(f"L_ffn_red_{m}:")
    reduce_row(G, m, f"L_ffn_fin_{m}")
    e(f"s_branch L_ffn_adv_{m}\nL_ffn_fin_{m}:")
    e(f"s_mov_b64 exec, 0xffffffff\nbuffer_store_dwordx2 v[{XR}:{XR+1}], v{vXo}, s[{S_B}:{S_B+3}], s{sXO} offen\ns_mov_b64 exec, -1")
    e(f"L_ffn_adv_{m}:")
    advance(G, m)
    e(f"s_cmp_lt_u32 s{sS}, 64\ns_cbranch_scc1 L_ffn_loop_{m}\ns_waitcnt vmcnt(0)")
    flush_pend(G)
    e("s_endpgm")
    if m == "L": G.far_fallback("L_fb_ffn")
```

```python
from asmlib import *
from gen import *

def emit(G, m):
    e = G.e; a = G.a
    P = min(G.LAG + 2, 64)
    sWH, sU, sN1, sN2, sO1, sO2, sF1, sF2, sFN, sPEND = 37, 38, 39, 28, 29, 30, 31, 76, 77, 78
    vA = 4
    vFO, vONE, vFL, vFA = 8, 9, 10, 11
    vW = 12
    R0, ACC, PK = 32, 64, 80
    e(f"""
    s_sub_u32 s{sWH}, s{sGRP}, 1
    s_cmp_eq_u32 s{sWH}, 1
    s_cselect_b32 s{S_B}, s{P_WK}, s{P_WQ}
    s_cselect_b32 s{S_B+1}, s{P_WK+1}, s{P_WQ+1}
    s_cmp_eq_u32 s{sWH}, 2
    s_cselect_b32 s{S_B}, s{P_WV}, s{S_B}
    s_cselect_b32 s{S_B+1}, s{P_WV+1}, s{S_B+1}
    s_mov_b32 s{S_B+2}, {4*MB}
    s_mov_b32 s{S_B+3}, 0x20000
    v_and_b32 v20, 15, v{vLANE}              ; rho
    v_lshrrev_b32 v21, 4, v{vLANE}           ; g
    s_lshl_b32 s{sT0}, s{sRANK}, 8
    s_lshl_b32 s{sT1}, s{sW}, 6
    s_add_u32 s{sT0}, s{sT0}, s{sT1}
    v_lshlrev_b32 v22, 2, v20
    v_lshl_add_u32 v22, v21, 16, v22
    v_add_u32 v{vW}, s{sT0}, v22""")
    for i in range(1, 8): e(f"v_add_u32 v{vW+i}, {8192*i}, v{vW}")
    blocks = []
    for k in range(16):
        blocks.append((S_B, [(vW + i, 0) for i in range(8)], f"s_mov_b32 s{sT5}, {k*262144}",
                       G.sink_a(k * 8), G.sink_a(k * 8 + 4)))
    G.wstream(blocks, 32, 7)
    if m == "L":
        G.census_issue(24); G.census_check(24, f"L_fb_qkv")
    for kl in range(4):
        e(f"v_add_u32 v23, {4*kl}, v21\nv_xor_b32 v23, v23, v20\nv_lshlrev_b32 v23, 4, v23\nv_lshl_add_u32 v{vA+kl}, v20, 11, v23")
    e(f"""
    v_mov_b32 v{vONE}, 1
    v_mov_b32 v{vFO}, 0
    v_lshlrev_b32 v{vFA}, 2, v{vLANE}
    s_lshl_b32 s{sT0}, s{sW}, 13
    s_add_u32 s{sN1}, s{sT0}, {NB}
    s_add_u32 s{sN2}, s{sT0}, {NB + 4*MB}          ; N2
    s_lshl_b32 s{sT0}, s{sWH}, 25
    s_lshl_b32 s{sT1}, s{sRANK}, 13
    s_add_u32 s{sT0}, s{sT0}, s{sT1}
    s_lshl_b32 s{sT1}, s{sW}, 11
    s_add_u32 s{sT0}, s{sT0}, s{sT1}
    s_add_u32 s{sO1}, s{sT0}, {QKV}
    s_add_u32 s{sO2}, s{sT0}, {QKV + 16*MB}
    s_lshl_b32 s{sT0}, s{sRANK}, 6
    s_lshl_b32 s{sT1}, s{sWH}, 4
    s_add_u32 s{sT0}, s{sT0}, s{sT1}
    s_lshl_b32 s{sT1}, s{sW}, 2
    s_add_u32 s{sT0}, s{sT0}, s{sT1}
    s_add_u32 s{sF1}, s{sT0}, {FQ}
    s_add_u32 s{sF2}, s{sT0}, {FQ + 128*KB}
    s_lshl_b32 s{sT0}, s{sW}, 7
    s_add_u32 s{sFN}, s{sT0}, {FN + 32*KB}
    s_mov_b32 s{sU}, 0
    s_mov_b32 s{sPEND}, 0""")
    def flag(sreg):
        e(f"s_mov_b64 exec, 1\nbuffer_store_dword v{vONE}, v{vFO}, s[{S_WS}:{S_WS+3}], s{sreg} offen sc1\ns_mov_b64 exec, -1")
    def dma(sN, buf):
        e(f"s_lshl_b32 s{sT0}, s{sW}, 13\ns_add_u32 s{sT0}, s{sT0}, {buf}\ns_mov_b32 s{sT1}, s{sN}")
        for r in range(8):
            e(f"s_mov_b32 m0, s{sT0}\ns_add_u32 s{sT0}, s{sT0}, 1024")
            e(f"buffer_load_dwordx4 v{vL16}, s[{S_WS}:{S_WS+3}], s{sT1} offen sc1 lds\ns_add_u32 s{sT1}, s{sT1}, 1024")
    def compute(buf, isv, sO, hook=None):
        D = 3
        NS = 4
        def rd(k):
            for t in range(2):
                e(f"ds_read_b128 v[{R0+(k%NS)*8+4*t}:{R0+(k%NS)*8+4*t+3}], v{vA+(k&3)} offset:{buf + t*1024 + (k>>2)*256}")
                a.lg.issue(("n", k, t))
        a.lg.set([])
        for k in range(D): rd(k)
        for k in range(16):
            if k + D < 16: rd(k + D)
            if hook and k == 10: hook()
            for t in range(2):
                a.lg.wait(("n", k, t))
                nf = vr(R0 + (k % NS) * 8 + 4 * t, 4)
                for j in range(2):
                    acc = vr(ACC + (t * 2 + j) * 4, 4); wf = ar(k * 8 + j * 4, 4)
                    c = "0" if k == 0 else acc
                    if isv: e(f"v_mfma_f32_16x16x32_bf16 {acc}, {nf}, {wf}, {c}")
                    else:   e(f"v_mfma_f32_16x16x32_bf16 {acc}, {wf}, {nf}, {c}")
        for x in range(2):
            for r in range(4):
                if isv: lo, hi = ACC + (0 * 2 + x) * 4 + r, ACC + (1 * 2 + x) * 4 + r
                else:   lo, hi = ACC + (x * 2 + 0) * 4 + r, ACC + (x * 2 + 1) * 4 + r
                e(f"v_cvt_pk_bf16_f32 v{PK+4*x+r}, v{lo}, v{hi}")
            e(f"buffer_store_dwordx4 v[{PK+4*x}:{PK+4*x+3}], v{vL16}, s[{S_WS}:{S_WS+3}], s{sO} offen offset:{x*1024} sc1")
    e(f"s_cmp_eq_u32 s{sWH}, 2\ns_cbranch_scc1 L_qkv_v_{m}")
    for isv in (False, True):
        T = f"{'v' if isv else 'qk'}_{m}"
        if isv: e(f"L_qkv_v_{m}:")
        BA, BB = 0, 32768
        e(f"""L_qkv_loop_{T}:
        s_barrier
        s_cmp_ge_u32 s{sU}, {P}
        s_cbranch_scc1 L_qkv_has2_{T}""")
        dma(sN1, BB)
        e(f"""s_waitcnt vmcnt(8)
        s_cmp_eq_u32 s{sPEND}, 0
        s_cbranch_scc1 L_qkv_np1_{T}""")
        flag(sPEND)
        e(f"L_qkv_np1_{T}:\ns_waitcnt vmcnt(0)\ns_barrier")
        compute(BB, isv, sO1)
        e(f"s_branch L_qkv_adv1_{T}")
        e(f"""L_qkv_has2_{T}:
        s_mov_b64 exec, 0xffffffff
        buffer_load_dword v{vFL}, v{vFA}, s[{S_WS}:{S_WS+3}], s{sFN} offen sc1
        s_waitcnt vmcnt(0)
        s_cmp_eq_u32 s{sPEND}, 0
        s_cbranch_scc1 L_qkv_chk_{T}
        s_mov_b64 exec, 1
        buffer_store_dword v{vONE}, v{vFO}, s[{S_WS}:{S_WS+3}], s{sPEND} offen sc1
        s_mov_b64 exec, 0xffffffff
        s_mov_b32 s{sPEND}, 0
        L_qkv_chk_{T}:
        v_cmp_eq_u32 vcc, 0, v{vFL}
        s_cbranch_vccz L_qkv_rdy_{T}""")
        G.timeout()
        e(f"""buffer_load_dword v{vFL}, v{vFA}, s[{S_WS}:{S_WS+3}], s{sFN} offen sc1
        s_waitcnt vmcnt(0)
        s_branch L_qkv_chk_{T}
        L_qkv_rdy_{T}:
        s_mov_b64 exec, -1""")
        dma(sN2, BA)
        e(f"s_cmp_ge_u32 s{sU}, 64\ns_cbranch_scc1 L_qkv_only2_{T}")
        dma(sN1, BB)
        e(f"s_waitcnt vmcnt(8)\ns_branch L_qkv_c2_{T}\nL_qkv_only2_{T}:\ns_waitcnt vmcnt(0)\nL_qkv_c2_{T}:\ns_barrier")
        compute(BA, isv, sO2)
        e(f"""s_mov_b32 s{sPEND}, s{sF2}
        s_add_u32 s{sN2}, s{sN2}, 32768
        s_add_u32 s{sO2}, s{sO2}, 262144
        s_add_u32 s{sF2}, s{sF2}, 2048
        s_add_u32 s{sFN}, s{sFN}, 512
        s_cmp_ge_u32 s{sU}, 64
        s_cbranch_scc1 L_qkv_next_{T}
        s_waitcnt vmcnt(2)
        s_barrier""")
        compute(BB, isv, sO1, hook=lambda: (e("s_waitcnt vmcnt(0)"), flag(sPEND)))
        e(f"""L_qkv_adv1_{T}:
        s_mov_b32 s{sPEND}, s{sF1}
        s_add_u32 s{sN1}, s{sN1}, 32768
        s_add_u32 s{sO1}, s{sO1}, 262144
        s_add_u32 s{sF1}, s{sF1}, 2048
        L_qkv_next_{T}:
        s_add_u32 s{sU}, s{sU}, 1
        s_cmp_lt_u32 s{sU}, {64 + P if G.LAG < 64 else 64}
        s_cbranch_scc1 L_qkv_loop_{T}
        s_waitcnt vmcnt(0)""")
        flag(sPEND)
        e("s_endpgm")
    if m == "L": G.far_fallback("L_fb_qkv")
```

```python
import sys
from asmlib import *

KNAME = "interleave_layers__memory_aug_recurrent_mem_tr__glu_gated_swiglu__prompt_kernel"
KB = 1024; MB = 1 << 20
FN    = 16 * KB
FQ    = 128 * KB
MEMR  = 512 * KB
CPART = 1 * MB
APART = 2 * MB
NB    = 10 * MB
XB    = 18 * MB
KMVM  = 24 * MB
QKV   = 40 * MB
TSB   = 140 * MB
WS_BYTES = 268435456

S_WS, S_DBG, S_A, S_B, S_C, S_D = 4, 8, 12, 16, 20, 24
sW, sXCC, sRANK, sGRP, sTO = 32, 33, 34, 35, 36
P_X, P_MEM0, P_WQ, P_WK, P_WV, P_WO = 48, 50, 52, 54, 56, 58
P_W1, P_W3, P_W2, P_OUT, P_DBG, P_WSP = 64, 66, 68, 70, 72, 74
sT0, sT1, sT2, sT3, sT4, sT5 = 40, 41, 42, 43, 44, 45
sPLO, sPHI = 46, 47
vTID, vLANE, vL16 = 0, 1, 2

class Gen:
    def __init__(self, LAG=7, roles="cqaf", force_fallback=False, ts=False, emit_global=True, dbgdump=False):
        self.a = Asm(); self.LAG = LAG; self.roles = roles; self.ff = force_fallback; self.ts = ts
        self.emit_global = emit_global; self.endlab = 'L_end0'; self.dbgdump = dbgdump
    def e(self, s): self.a.e(s)
    def srd(self, d, p, nbytes):
        self.e(f"s_mov_b32 s{d}, s{p}\ns_mov_b32 s{d+1}, s{p+1}\ns_mov_b32 s{d+2}, {nbytes}\ns_mov_b32 s{d+3}, 0x20000")
    def timeout(self):
        self.e(f"s_sub_u32 s{sTO}, s{sTO}, 1\ns_cbranch_scc1 {self.endlab}")
    def row_sum(self, v, op="v_add_f32"):
        for r in (8, 4, 2, 1):
            self.e(f"{op}_dpp v{v}, v{v}, v{v} row_ror:{r} row_mask:0xf bank_mask:0xf")
    def x16(self, v, t, op="v_add_f32"):
        self.e(f"v_mov_b32 v{t}, v{v}\nv_permlane16_swap_b32 v{v}, v{t}\n{op} v{v}, v{v}, v{t}")
    def x32(self, v, t, op="v_add_f32"):
        self.e(f"v_mov_b32 v{t}, v{v}\nv_permlane32_swap_b32 v{v}, v{t}\n{op} v{v}, v{v}, v{t}")

    def prologue(self):
        e = self.e
        e(f"""
        s_cmp_ge_u32 s2, 256
        s_cbranch_scc1 L_end0
        s_load_dwordx16 s[48:63], s[0:1], 0
        s_load_dwordx8 s[64:71], s[0:1], 64
        s_load_dwordx4 s[72:75], s[0:1], 96
        s_getreg_b32 s{sXCC}, hwreg(HW_REG_XCC_ID, 0, 4)
        v_lshrrev_b32 v3, 6, v0
        v_and_b32 v{vLANE}, 63, v0
        v_readfirstlane_b32 s{sW}, v3
        v_lshlrev_b32 v{vL16}, 4, v{vLANE}
        s_and_b32 s{sXCC}, s{sXCC}, 7
        s_mov_b32 s{sTO}, 0x100000
        s_mov_b32 s{sPLO}, 0x05040100
        s_mov_b32 s{sPHI}, 0x07060302
        s_waitcnt lgkmcnt(0)""")
        self.srd(S_WS, P_WSP, WS_BYTES); self.srd(S_DBG, P_DBG, 256); self.srd(S_A, P_X, 2 * MB)
        if self.ts:
            e("s_memrealtime s[98:99]")
        e(f"""
        s_lshl_b32 s{sT0}, s2, 2
        s_add_u32 s{sT0}, s{sT0}, s{sW}
        s_lshl_b32 s{sT1}, s{sT0}, 10
        s_add_u32 s{sT2}, s{sT1}, {1*MB}         ; row W+1024
        s_cmp_lg_u32 s{sW}, 0
        s_cbranch_scc1 L_noatom
        v_mov_b32 v4, 1
        s_lshl_b32 s{sT3}, s{sXCC}, 5
        v_mov_b32 v5, s{sT3}
        s_mov_b64 exec, 1
        buffer_atomic_add v4, v5, s[{S_DBG}:{S_DBG+3}], 0 offen sc0
        s_mov_b64 exec, -1
        L_noatom:
        buffer_load_dwordx4 v[8:11], v{vL16}, s[{S_A}:{S_A+3}], s{sT1} offen
        buffer_load_dwordx4 v[12:15], v{vL16}, s[{S_A}:{S_A+3}], s{sT2} offen
        v_mov_b32 v6, 0
        v_mov_b32 v7, 0
        v_lshlrev_b32 v5, 3, v{vLANE}
        s_lshl_b32 s{sT3}, s{sT0}, 9
        buffer_store_dwordx2 v[6:7], v5, s[{S_WS}:{S_WS+3}], s{sT3} offen sc1
        s_lshr_b32 s{sT3}, s{sT0}, 1
        s_and_b32 s{sT3}, s{sT3}, 15
        v_xor_b32 v3, s{sT3}, v{vLANE}
        v_lshlrev_b32 v3, 4, v3
        s_add_u32 s{sT1}, s{sT1}, {NB}
        s_add_u32 s{sT2}, s{sT2}, {NB}
        s_waitcnt vmcnt(2)
        s_cmp_lg_u32 s{sW}, 0
        s_cbranch_scc1 L_norank
        v_mov_b32 v5, 0
        s_mov_b64 exec, 1
        ds_write_b32 v5, v4
        s_mov_b64 exec, -1
        L_norank:""")
        for k, (src, so) in enumerate(((8, sT1), (12, sT2))):
            if k == 1: e("s_waitcnt vmcnt(2)")
            d = 16
            for i in range(4):
                e(f"v_lshlrev_b32 v{d+2*i}, 16, v{src+i}\nv_and_b32 v{d+2*i+1}, 0xffff0000, v{src+i}")
            e(f"v_add_f32 v24, v{d}, v{d+1}")
            for i in range(2, 8): e(f"v_add_f32 v24, v24, v{d+i}")
            self.row_sum(24); self.x16(24, 25); self.x32(24, 25)
            e("v_mul_f32 v24, 0x3b000000, v24")
            for i in range(8): e(f"v_sub_f32 v{d+i}, v{d+i}, v24")
            e(f"v_mul_f32 v26, v{d}, v{d}")
            for i in range(1, 8): e(f"v_fmac_f32 v26, v{d+i}, v{d+i}")
            self.row_sum(26); self.x16(26, 25); self.x32(26, 25)
            e("v_mov_b32 v25, 0x3727c5ac\nv_fmac_f32 v25, 0x3b000000, v26\nv_rsq_f32 v25, v25")
            for i in range(8): e(f"v_mul_f32 v{d+i}, v{d+i}, v25")
            o = 28 + 4 * k
            for i in range(4): e(f"v_cvt_pk_bf16_f32 v{o+i}, v{d+2*i}, v{d+2*i+1}")
            e(f"buffer_store_dwordx4 v[{o}:{o+3}], v3, s[{S_WS}:{S_WS+3}], s{so} offen sc1")
        e(f"""
        s_waitcnt lgkmcnt(0)
        s_barrier
        v_mov_b32 v5, 0
        ds_read_b32 v4, v5
        s_waitcnt lgkmcnt(0)
        v_readfirstlane_b32 s{sRANK}, v4
        s_mov_b32 s{sGRP}, s{sXCC}
        s_waitcnt vmcnt(0)
        s_barrier
        s_cmp_lg_u32 s{sW}, 0
        s_cbranch_scc1 L_nodone
        v_mov_b32 v4, 1
        s_lshl_b32 s{sT3}, s{sXCC}, 5
        v_mov_b32 v5, s{sT3}
        s_mov_b64 exec, 1
        buffer_atomic_add v4, v5, s[{S_DBG}:{S_DBG+3}], 0 offen offset:4
        s_mov_b64 exec, -1
        L_nodone:
        s_cmp_ge_u32 s{sRANK}, 32
        s_cbranch_scc1 L_wait_fallback""")
        if self.ff: e("s_branch L_wait_fallback")
        self.dispatch("L")
        e("L_wait_fallback:")
        self.census_issue(4); self.census_check(4, None)
        e("L_fallback:")
        if self.emit_global:
            e(f"""s_waitcnt vmcnt(0) lgkmcnt(0)
            s_barrier
            s_lshr_b32 s{sGRP}, s2, 5
            s_and_b32 s{sRANK}, s2, 31""")
            self.dispatch("G")
        else:
            e("s_endpgm")
    def dispatch(self, m):
        e = self.e
        e(f"s_cmp_eq_u32 s{sGRP}, 0\ns_cbranch_scc1 L_go_chain_{m}")
        e(f"s_cmp_le_u32 s{sGRP}, 3\ns_cbranch_scc1 L_go_qkv_{m}")
        if self.LAG >= 64: e(f"s_cmp_ge_u32 s{sGRP}, 6\ns_cbranch_scc1 L_end0")
        e(f"s_bitcmp1_b32 s{sGRP}, 0\ns_cbranch_scc1 L_go_ffn_{m}")
        for r in ("att", "chain", "qkv", "ffn"):
            if r != "att": e(f"L_go_{r}_{m}:")
            if r[0] in self.roles:
                e(f"s_getpc_b64 s[{sT0}:{sT0+1}]\nL_pc_{r}_{m}:\ns_add_u32 s{sT0}, s{sT0}, R_{r}_{m}-L_pc_{r}_{m}\ns_addc_u32 s{sT0+1}, s{sT0+1}, 0\ns_setpc_b64 s[{sT0}:{sT0+1}]")
            else:
                e("s_endpgm")
    def census_issue(self, v):
        self.e(f"""v_lshlrev_b32 v{v+2}, 5, v{vLANE}
        buffer_load_dwordx2 v[{v}:{v+1}], v{v+2}, s[{S_DBG}:{S_DBG+3}], 0 offen sc1""")
    def census_check(self, v, fail, waited=False):
        e = self.e; L = self.a.lab("L_cen"); Lok = self.a.lab("L_cenok")
        if not waited: e("s_waitcnt vmcnt(0)")
        e(f"{L}:\ns_mov_b32 s{sT0}, 0")
        for l in range(8):
            e(f"v_readlane_b32 s{sT1}, v{v+1}, {l}\ns_add_u32 s{sT0}, s{sT0}, s{sT1}")
        e(f"s_cmp_eq_u32 s{sT0}, 256\ns_cbranch_scc1 {Lok}")
        self.timeout()
        e(f"s_sleep 4\nbuffer_load_dwordx2 v[{v}:{v+1}], v{v+2}, s[{S_DBG}:{S_DBG+3}], 0 offen sc1\ns_waitcnt vmcnt(0)\ns_branch {L}\n{Lok}:")
        if fail:
            e(f"v_cmp_ne_u32 vcc, 32, v{v}\ns_and_b32 s{sT0}, vcc_lo, 0xff\ns_cbranch_scc1 {fail}")
    def ready_add(self, v):
        L = self.a.lab("L_ra")
        self.e(f"""s_cmp_lg_u32 s{sW}, 0
        s_cbranch_scc1 {L}
        v_mov_b32 v{v}, 1
        s_lshl_b32 s{sT0}, s{sGRP}, 5
        v_mov_b32 v{v+1}, s{sT0}
        s_mov_b64 exec, 1
        buffer_atomic_add v{v}, v{v+1}, s[{S_DBG}:{S_DBG+3}], 0 offen offset:8
        s_mov_b64 exec, -1
        {L}:""")
    def ready_wait(self, v):
        L = self.a.lab("L_rw"); Lo = self.a.lab("L_rwo")
        self.e(f"""s_lshl_b32 s{sT0}, s{sGRP}, 5
        v_mov_b32 v{v+1}, s{sT0}
        {L}:
        buffer_load_dword v{v}, v{v+1}, s[{S_DBG}:{S_DBG+3}], 0 offen offset:8 sc1
        s_waitcnt vmcnt(0)
        v_cmp_ne_u32 vcc, 32, v{v}
        s_cbranch_vccz {Lo}""")
        self.timeout()
        self.e(f"s_sleep 2\ns_branch {L}\n{Lo}:")
    def far_fallback(self, name):
        self.e(f"{name}:\ns_getpc_b64 s[{sT0}:{sT0+1}]\n{name}_pc:\ns_add_u32 s{sT0}, s{sT0}, L_fallback-{name}_pc\ns_addc_u32 s{sT0+1}, s{sT0+1}, -1\ns_setpc_b64 s[{sT0}:{sT0+1}]")

    def wstream(self, blocks, stage0, depth, hooks=None):
        e = self.e; hooks = hooks or {}
        n = len(blocks); T = stage0 + 8 * depth
        for b in range(n + depth - 1):
            if b in hooks: hooks[b]()
            if b < n:
                srd, addrs, so, _, _ = blocks[b]
                st = stage0 + 8 * (b % depth)
                e(so)
                for i, (va, imm) in enumerate(addrs):
                    e(f"buffer_load_dword v{st+i}, v{va}, s[{srd}:{srd+3}], s{sT5} offen" + (f" offset:{imm}" if imm else ""))
            c = b - (depth - 1)
            if c >= 0:
                later = min(n - 1, b) - c
                e(f"s_waitcnt vmcnt({8*later})")
                st = stage0 + 8 * (c % depth)
                for p in range(4):
                    e(f"v_perm_b32 v{T+p}, v{st+2*p+1}, v{st+2*p}, s{sPLO}")
                    e(f"v_perm_b32 v{T+4+p}, v{st+2*p+1}, v{st+2*p}, s{sPHI}")
                blocks[c][3](T); blocks[c][4](T + 4)
    def sink_a(self, base):
        return lambda T: [self.e(f"v_accvgpr_write_b32 a{base+p}, v{T+p}") for p in range(4)]
    def sink_v(self, base):
        return lambda T: [self.e(f"v_mov_b32 v{base+p}, v{T+p}") for p in range(4)]
    def sink_lds(self, va, off):
        return lambda T: self.e(f"ds_write_b128 v{va}, v[{T}:{T+3}] offset:{off}")

    def dump(self, base, n, slot, scond=None, val=0, cls="v"):
        if not self.dbgdump: return
        L = self.a.lab("L_dump")
        if scond is not None: self.e(f"s_cmp_lg_u32 s{scond}, {val}\ns_cbranch_scc1 {L}")
        self.e(f"""s_lshl_b32 s100, s{sRANK}, 2
        s_add_u32 s100, s100, s{sW}
        s_lshl_b32 s100, s100, 13
        s_add_u32 s100, s100, {TSB + 16*MB + slot*MB}
        s_mov_b64 s[96:97], exec
        s_mov_b64 exec, -1
        s_nop 15
        v_lshrrev_b32 v{vL16}, 2, v{vL16}""")
        for r in range(n):
            self.e(f"buffer_store_dword {cls}{base+r}, v{vL16}, s[{S_WS}:{S_WS+3}], s100 offen offset:{(r%16)*256}")
            if r % 16 == 15: self.e("s_add_u32 s100, s100, 4096")
        self.e(f"v_lshlrev_b32 v{vL16}, 2, v{vL16}\ns_waitcnt vmcnt(0)\ns_mov_b64 exec, s[96:97]\n{L}:")
    def finish(self):
        e = self.e
        e(f""".section .rodata,"a"
        .p2align 6
        .amdhsa_kernel {KNAME}
        .amdhsa_next_free_vgpr 512
        .amdhsa_next_free_sgpr 102
        .amdhsa_accum_offset 256
        .amdhsa_group_segment_fixed_size 0
        .amdhsa_kernarg_size 112
        .amdhsa_user_sgpr_count 2
        .amdhsa_user_sgpr_kernarg_segment_ptr 1
        .amdhsa_system_sgpr_workgroup_id_x 1
        .end_amdhsa_kernel""")

    def build(self):
        import role_qkv, role_chain, role_att, role_ffn
        e = self.e
        e("""; One persistent launch, one workgroup per CU, weights resident in registers / LDS.
        ; 4/6 token attention + output projection, 5/7 SwiGLU.  Segments flow through the groups via d_ws.
        ; @launch grid=(256,1,1) block=(256,1,1) lds=163840""")
        e(f""".amdgcn_target "amdgcn-amd-amdhsa--gfx950"
        .text
        .globl {KNAME}
        .p2align 8
        .type {KNAME},@function
        {KNAME}:""")
        self.prologue()
        e("L_end0:\ns_endpgm")
        for m in (["L", "G"] if self.emit_global else ["L"]):
            for r, mod in (("chain", role_chain), ("qkv", role_qkv), ("att", role_att), ("ffn", role_ffn)):
                if r[0] in self.roles:
                    e(f".p2align 6\nR_{r}_{m}:")
                    self.endlab = f"L_end_{r}_{m}"
                    mod.emit(self, m)
                    e(f"{self.endlab}:\ns_endpgm")
        self.finish()
        return self.a.text()

if __name__ == "__main__":
    import argparse
    ap = argparse.ArgumentParser()
    ap.add_argument("-o", default="k.s"); ap.add_argument("--lag", type=int, default=7)
    ap.add_argument("--roles", default="cqaf"); ap.add_argument("--ff", action="store_true")
    ap.add_argument("--ts", action="store_true"); ap.add_argument("--noglobal", action="store_true"); ap.add_argument("--dump", action="store_true")
    A = ap.parse_args()
    t = Gen(A.lag, A.roles, A.ff, A.ts, not A.noglobal, A.dump).build()
    open(A.o, "w").write(t)
    print(A.o, len(t), "bytes", t.count("\n"), "lines")
```

```python
import re

class Ins:
    __slots__ = ("text", "op", "kind", "vr", "vw", "sr", "sw", "label", "target", "mfma_c", "mfma_ab", "passes", "dpp", "nstates")

REG_RE = re.compile(r"\b([vas])(\d+)\b|\b([vas])\[(\d+):(\d+)\]")

def regs_of(tok):
    tok = tok.strip()
    out = []
    neg = tok.lstrip("-")
    if neg.startswith("abs(") or neg.startswith("|"):
        neg = neg.replace("abs(", "").replace(")", "").replace("|", "")
    m = re.fullmatch(r"([vas])(\d+)", neg)
    if m: return [(m.group(1), int(m.group(2)))]
    m = re.fullmatch(r"([vas])\[(\d+):(\d+)\]", neg)
    if m: return [(m.group(1), i) for i in range(int(m.group(2)), int(m.group(3)) + 1)]
    if neg == "vcc": return [("s", "vcc_lo"), ("s", "vcc_hi")]
    if neg in ("vcc_lo", "vcc_hi", "m0", "exec_lo", "exec_hi"): return [("s", neg)]
    if neg == "exec": return [("s", "exec_lo"), ("s", "exec_hi")]
    return out

TRANS = ("v_exp_f32", "v_log_f32", "v_rcp_f32", "v_rsq_f32", "v_sqrt_f32", "v_sin_f32", "v_cos_f32")

def parse(text):
    I = Ins(); I.text = text; I.label = None; I.target = None
    I.vr = set(); I.vw = set(); I.sr = set(); I.sw = set(); I.mfma_c = set(); I.mfma_ab = set(); I.passes = 0; I.dpp = False
    I.nstates = 1
    t = text.split(";")[0].strip()
    if t.endswith(":"):
        I.kind = "label"; I.label = t[:-1]; I.op = ""; I.nstates = 0; return I
    if t == "" or t.startswith("."):
        I.kind = "dir"; I.op = ""; I.nstates = 0; return I
    parts = t.split(None, 1)
    op = parts[0]; I.op = op
    rest = parts[1] if len(parts) > 1 else ""
    ops = [o.strip() for o in rest.split(",")] if rest else []
    mods = ""
    if ops:
        l = ops[-1].split(None, 1)
        ops[-1] = l[0]; mods = l[1] if len(l) > 1 else ""
    def R(tok):
        for r in regs_of(tok): (I.sr if r[0] == "s" else I.vr).add(r)
    def W(tok):
        for r in regs_of(tok): (I.sw if r[0] == "s" else I.vw).add(r)
    if op.startswith("v_mfma") or op.startswith("v_smfmac"):
        I.kind = "mfma"
        W(ops[0]); R(ops[1]); R(ops[2]); R(ops[3])
        I.mfma_ab = set(regs_of(ops[1])) | set(regs_of(ops[2]))
        I.mfma_c = set(r for r in regs_of(ops[3]) if r[0] != "s")
        if op.startswith("v_smfmac"):
            I.mfma_ab |= I.mfma_c; I.mfma_c = set(regs_of(ops[0])); R(ops[0])
        I.passes = 8 if "32x32" in op else 4
    elif op.startswith("v_"):
        I.kind = "valu"
        base = op.replace("_e32", "").replace("_e64", "").replace("_dpp", "").replace("_sdwa", "")
        if "row_" in mods or "quad_perm" in mods or "_dpp" in op: I.dpp = True
        if base.startswith("v_cmp"):
            W(ops[0]); [R(o) for o in ops[1:]]
            if base.startswith("v_cmpx"): W("exec")
        elif base in ("v_readfirstlane_b32", "v_readlane_b32"):
            W(ops[0]); [R(o) for o in ops[1:]]
        elif base.startswith("v_permlane") and "swap" in base:
            W(ops[0]); W(ops[1]); R(ops[0]); R(ops[1])
        elif base in ("v_add_co_u32", "v_sub_co_u32", "v_addc_co_u32", "v_subb_co_u32"):
            W(ops[0]); W(ops[1]); [R(o) for o in ops[2:]]
        elif base == "v_nop":
            pass
        else:
            W(ops[0]); [R(o) for o in ops[1:]]
            if base in ("v_fmac_f32", "v_pk_fmac_f16", "v_writelane_b32"): R(ops[0])
            if I.dpp: R(ops[0])
            if base == "v_cndmask_b32" and len(ops) == 3: R("vcc")
    elif op.startswith("buffer_") or op.startswith("global_"):
        I.kind = "vmem"
        if op in ("buffer_wbl2", "buffer_inv"): pass
        elif "load" in op:
            if " lds" in (" " + mods) :
                [R(o) for o in ops]; R("m0")
            else:
                W(ops[0]); [R(o) for o in ops[1:]]
        elif "atomic" in op:
            [R(o) for o in ops]
            if "sc0" in mods: W(ops[0])
        else:
            [R(o) for o in ops]
    elif op.startswith("ds_"):
        I.kind = "ds"
        if op.startswith("ds_read") or op.startswith("ds_bpermute") or op.startswith("ds_swizzle") or op.startswith("ds_permute"):
            W(ops[0]); [R(o) for o in ops[1:]]
        else:
            [R(o) for o in ops]
    elif op.startswith("s_"):
        I.kind = "salu"
        if op == "s_nop":
            I.nstates = int(ops[0], 0) + 1
        elif op in ("s_branch",) or op.startswith("s_cbranch"):
            I.kind = "branch"; I.target = ops[0]
        elif op in ("s_waitcnt", "s_barrier", "s_endpgm", "s_sleep", "s_setprio"):
            pass
        elif op.startswith("s_cmp") or op.startswith("s_bitcmp"):
            [R(o) for o in ops]
        elif op.startswith("s_load") or op.startswith("s_memtime") or op.startswith("s_memrealtime"):
            W(ops[0]); [R(o) for o in ops[1:]]
        elif op.startswith("s_getreg"):
            W(ops[0])
        elif "saveexec" in op:
            W(ops[0]); W("exec"); R(ops[1]); R("exec")
        else:
            W(ops[0]); [R(o) for o in ops[1:]]
    else:
        raise ValueError("unknown op: " + text)
    return I

def need_states(P, C):
    n = 0
    if P.kind == "valu":
        if C.kind == "mfma" and (P.vw & C.vr): n = max(n, 2)
        if C.kind == "mfma" and (("s", "exec_lo") in P.sw): n = max(n, 4)
        if C.kind == "valu":
            cb = C.op.replace("_e32", "").replace("_e64", "")
            if C.dpp and (P.vw & C.vr): n = max(n, 2)
            if C.dpp and (("s", "exec_lo") in P.sw): n = max(n, 5)
            if cb.startswith("v_permlane") and (P.vw & C.vr): n = max(n, 2)
            if cb in ("v_readfirstlane_b32", "v_readlane_b32") and (P.vw & C.vr): n = max(n, 1)
            if cb in ("v_readlane_b32", "v_writelane_b32") and (P.sw & C.sr): n = max(n, 4)
            if P.sw & C.sr: n = max(n, 2)
            if P.op.replace("_e32", "").replace("_e64", "") in TRANS and (P.vw & C.vr): n = max(n, 1)
            if (("s", "exec_lo") in P.sw) and (cb.startswith("v_permlane") or cb.startswith("v_read")): n = max(n, 4)
        if C.kind == "vmem" and (P.sw & C.sr): n = max(n, 5)
        if C.kind in ("salu", "branch") and (P.sw & C.sr): n = max(n, 1)
    if P.kind == "mfma":
        big = {4: 8, 8: 12}[P.passes]
        if C.kind == "mfma":
            if P.vw & C.mfma_ab: n = max(n, big)
            ov = P.vw & C.mfma_c
            if ov and not (P.vw == C.mfma_c and P.op == C.op): n = max(n, {4: 6, 8: 10}[P.passes])
            if (P.vw & C.vw) and not ov: n = max(n, big)
        elif C.kind in ("valu", "vmem", "ds"):
            if P.vw & (C.vr | C.vw): n = max(n, big)
            if C.kind == "valu" and (P.mfma_c & C.vw): n = max(n, {4: 3, 8: 7}[P.passes])
    if P.kind == "vmem" and ("store" in P.op or "atomic" in P.op) and ("x3" in P.op or "x4" in P.op):
        if C.kind in ("valu", "mfma") and (P.vr & C.vw): n = max(n, 2)
        elif C.kind in ("ds", "vmem") and (P.vr & C.vw): n = max(n, 1)
    if P.kind == "salu" and ("s", "m0") in P.sw and C.kind == "vmem" and ("s", "m0") in C.sr: n = max(n, 1)
    return n

MAXW = 12

def pad_hazards(lines):
    ins = [parse(l) for l in lines]
    total = 0
    for _round in range(50):
        lab = {I.label: i for i, I in enumerate(ins) if I.kind == "label"}
        jumps = {}
        for i, I in enumerate(ins):
            if I.kind == "branch" and I.target in lab: jumps.setdefault(lab[I.target], []).append(i)
        def walk(i, dist, C, seen):
            worst = 0
            j = i - 1
            while j >= 0 and dist < MAXW:
                P = ins[j]
                if P.kind == "label":
                    for b in jumps.get(j, []):
                        if (b, dist) not in seen:
                            seen.add((b, dist))
                            worst = max(worst, walk(b, dist + 1, C, seen))
                    j -= 1; continue
                if P.kind == "dir": j -= 1; continue
                if (P.op == "s_branch" or P.op == "s_endpgm") : return worst
                need = need_states(P, C)
                if need > dist: worst = max(worst, need - dist)
                dist += P.nstates
                j -= 1
            return worst
        new = []; changed = False
        for i, C in enumerate(ins):
            if C.kind in ("valu", "mfma", "vmem", "ds", "salu", "branch"):
                d = walk(i, 0, C, set())
                if d > 0:
                    new.append(parse(f"    s_nop {d-1}   ; pad")); changed = True; total += 1
            new.append(C)
            if changed:
                new.extend(ins[i+1:]); break
        if not changed: break
        ins = new
        _round = 0
    return [I.text for I in ins]

def pad_hazards_fast(lines):
    ins = [parse(l) for l in lines]
    for _ in range(20):
        lab = {I.label: i for i, I in enumerate(ins) if I.kind == "label"}
        jumps = {}
        for i, I in enumerate(ins):
            if I.kind == "branch" and I.target in lab: jumps.setdefault(lab[I.target], []).append(i)
        pads = {}
        def states(j): return ins[j].nstates + 0
        def walk(i, dist, C, seen):
            worst = 0
            j = i - 1
            dist += pads.get(i, 0) if False else 0
            while j >= 0 and dist < MAXW:
                P = ins[j]
                if P.kind == "label":
                    for b in jumps.get(j, []):
                        if (b, dist) not in seen:
                            seen.add((b, dist))
                            worst = max(worst, walk(b, dist + 1 + pads.get(b, 0), C, seen))
                    j -= 1; continue
                if P.kind == "dir": j -= 1; continue
                if P.op in ("s_branch", "s_endpgm", "s_setpc_b64"): return worst
                need = need_states(P, C)
                if need > dist: worst = max(worst, need - dist)
                dist += P.nstates + pads.get(j, 0)
                j -= 1
            return worst
        for i, C in enumerate(ins):
            if C.kind in ("valu", "mfma", "vmem", "ds", "salu", "branch"):
                d = walk(i, 0, C, set())
                if d > 0: pads[i] = d
        if not pads: return [I.text for I in ins]
        new = []
        for i, C in enumerate(ins):
            if i in pads: new.append(parse(f"    s_nop {pads[i]-1}   ; pad"))
            new.append(C)
        ins = new
    raise RuntimeError("hazard padding did not converge")

class Counter:
    def __init__(self, asm, name, maxn):
        self.a = asm; self.name = name; self.maxn = maxn; self.q = []
    def issue(self, tag): self.q.append(tag)
    def wait(self, tag):
        idx = max((i for i, t in enumerate(self.q) if t == tag), default=None)
        if idx is None: return
        n = len(self.q) - 1 - idx
        assert n <= self.maxn, (self.name, n)
        self.a.e(f"s_waitcnt {self.name}({n})")
        self.q = self.q[idx + 1:]
    def wait_all(self):
        self.a.e(f"s_waitcnt {self.name}(0)"); self.q = []
    def set(self, q): self.q = list(q)

class Asm:
    def __init__(self):
        self.lines = []; self.nl = 0
        self.vm = Counter(self, "vmcnt", 63); self.lg = Counter(self, "lgkmcnt", 15)
    def e(self, s):
        for l in s.split("\n"):
            l = l.strip()
            if not l: continue
            self.lines.append(l if l.split(";")[0].strip().endswith(":") or l.startswith(".") or l.startswith(";") else "    " + l)
    def lab(self, base="L"):
        self.nl += 1; return f"{base}_{self.nl}"
    def text(self): return "\n".join(l.strip() for l in pad_hazards_fast(self.lines)) + "\n"

def vr(b, n=1, c="v"): return f"{c}{b}" if n == 1 else f"{c}[{b}:{b+n-1}]"
def ar(b, n=1): return vr(b, n, "a")
def sr(b, n=1): return vr(b, n, "s")

class Fill:
    def __init__(self, asm, vgap=4): self.a = asm; self.q = []; self.m = []; self.vgap = vgap; self.since = 99
    @staticmethod
    def _items(items):
        out = []
        for it in items:
            if isinstance(it, str): out += [(l.strip(), None) for l in it.split("\n") if l.strip()]
            else: out.append((getattr(it, "text", "buffer_load_dwordx4"), it))
        return out
    def add(self, *items): self.q += self._items(items)
    def mem(self, *items): self.m += self._items(items)
    @staticmethod
    def cost(text):
        op = text.split()[0]
        if op.startswith("v_exp") or op.startswith("v_rcp") or op.startswith("v_rsq"): return (1, 2)
        if op.startswith("v_"): return (1, 1)
        if op.startswith("buffer_store") or op.startswith("ds_write"): return (3, 0)
        if op.startswith("buffer_"): return (2, 0)
        return (1, 0)
    def _drain(self, q, slots, valu, force):
        while q and slots > 0:
            t, f = q[0]
            c, v = getattr(f, "cost", None) or self.cost(t)
            wide = t.startswith("buffer_") and "x4" in t.split()[0] and not hasattr(f, "narrow")
            if not force:
                if wide and q is self.m and self.since < self.vgap: break
                if v > valu and valu < 1: break
                if c > slots and slots < 3: break
            q.pop(0)
            if f is None: self.a.e(t)
            else: f()
            if wide: self.since = 0
            slots -= c; valu -= v
        return slots, valu
    def drain(self, slots=3, valu=1):
        self.since += 1
        slots, valu = self._drain(self.m, slots, valu, False)
        self._drain(self.q, slots, valu, False)
    def flush(self):
        self._drain(self.q, 999, 999, True); self._drain(self.m, 999, 999, True)
    def mf(self, text, slots=3, valu=1):
        self.a.e(text); self.drain(slots, valu)
```

```python
from asmlib import *
from gen import *
MF = "v_mfma_f32_16x16x32_bf16"
WS = f"s[{S_WS}:{S_WS+3}]"
sS, sL, sSLOT, sXI, sXO, sNO, sFO, sPEND = 37, 38, 39, 28, 29, 30, 31, 76
sCC, sSUB, sTAG = 98, 99, 101
vRHO, vG, vRd, vXo, vNo, vPs, vONE, vST, vSR = 3, 4, 5, 6, 7, 8, 9, 10, 11
SELA, SELB = 12, 16
STATS = 163840 - 64

class Red:
    def __init__(self, G, m, RL, RD, XR, T):
        self.G, self.m, self.RL, self.RD, self.XR, self.T = G, m, RL, RD, XR, T
        self.LS = "" if m == "L" else " sc1"
    def setup(self):
        G = self.G; e = G.e; T = self.T
        e(f"""
        v_and_b32 v{vRHO}, 15, v{vLANE}
        v_lshrrev_b32 v{vG}, 4, v{vLANE}
        s_and_b32 s{sCC}, s{sRANK}, 15
        s_lshr_b32 s{sSUB}, s{sRANK}, 4
        s_sub_u32 s{sT0}, s{sGRP}, 4
        s_lshl_b32 s{sT0}, s{sT0}, 1
        s_add_u32 s{sT0}, s{sT0}, s{sSUB}
        s_lshl_b32 s{sT0}, s{sT0}, 20
        s_add_u32 s{sSLOT}, s{sT0}, {APART}
        s_lshl_b32 s{sT0}, s{sCC}, 15
        s_lshl_b32 s{sT1}, s{sW}, 8
        s_add_u32 s{sT0}, s{sT0}, s{sT1}
        v_lshlrev_b32 v{T}, 4, v{vRHO}
        v_lshl_add_u32 v{T+1}, v{vG}, 10, v{T}
        v_add_u32 v{vRd}, s{sT0}, v{T+1}
        s_lshl_b32 s{sT0}, s{sCC}, 10
        s_add_u32 s{sT0}, s{sT0}, s{sT1}
        v_lshl_add_u32 v{T+1}, v{vG}, 17, v{T}
        v_add_u32 v{vPs}, s{sT0}, v{T+1}
        v_and_b32 v{T+1}, 1, v{vG}
        v_lshlrev_b32 v{T+1}, 3, v{T+1}
        v_lshrrev_b32 v{T+2}, 1, v{vG}
        v_lshl_add_u32 v{T+1}, v{T+2}, 10, v{T+1}
        s_lshl_b32 s{sT0}, s{sRANK}, 11
        s_add_u32 s{sT0}, s{sT0}, s{sT1}
        v_add3_u32 v{vXo}, v{T}, v{T+1}, s{sT0}
        v_xor_b32 v{T}, s{sCC}, v{vRHO}
        v_lshlrev_b32 v{T}, 4, v{T}
        v_add3_u32 v{vNo}, v{T}, v{T+1}, s{sT0}
        v_mov_b32 v{vONE}, 1
        v_lshlrev_b32 v{T+2}, 5, v{T+2}
        v_add_u32 v{vSR}, {STATS}, v{T+2}
        s_lshl_b32 s{sT0}, s{sW}, 3
        v_add_u32 v{vST}, s{sT0}, v{vSR}
        s_mov_b32 s{sS}, s{sSUB}
        s_mov_b32 s{sPEND}, 0
        s_mov_b32 s{sTAG}, 0""")
        for p in range(4):
            for S_, o in ((SELA, 0), (SELB, 8)):
                e(f"""v_mov_b32 v{S_+p}, 0
                v_cmp_eq_u32 vcc, {2*p+o}, v{vRHO}
                v_mov_b32 v{T+1}, 0x3f80
                v_cndmask_b32 v{S_+p}, v{S_+p}, v{T+1}, vcc
                v_cmp_eq_u32 vcc, {2*p+1+o}, v{vRHO}
                v_mov_b32 v{T+1}, 0x3f800000
                v_cndmask_b32 v{S_+p}, v{S_+p}, v{T+1}, vcc""")
    def ring_init(self):
        G = self.G; e = G.e; T = self.T
        for p in range(4): e(f"v_mov_b32 v{T+p}, -1")
        for sl in range(2):
            for j in range(8):
                e(f"s_add_u32 s{sT0}, s{sSLOT}, {sl*512*KB + j*4096}\nbuffer_store_dwordx4 {vr(T,4)}, v{vRd}, {WS}, s{sT0} offen{self.LS}")
        e("s_waitcnt vmcnt(0)\ns_barrier"); G.ready_add(T + 4); G.ready_wait(T + 4)
    def flush_pend(self):
        G = self.G; L = G.a.lab("L_np")
        G.e(f"""s_cmp_eq_u32 s{sPEND}, 0
        s_cbranch_scc1 {L}
        s_mov_b64 s[{sT0}:{sT0+1}], exec
        s_mov_b64 exec, 3
        buffer_store_dword v{vONE}, v{vL16}, {WS}, s{sPEND} offen sc1
        s_mov_b64 exec, s[{sT0}:{sT0+1}]
        s_mov_b32 s{sPEND}, 0
        {L}:""")
    def x_load(self, srd):
        return f"buffer_load_dwordx2 v[{self.XR}:{self.XR+1}], v{vXo}, s[{srd}:{srd+3}], s{sXI} offen sc1"
    def out_pack(self, acc, r, t, pk):
        L = [f"v_cvt_pk_bf16_f32 v{pk+p}, v{acc+8*p+r}, v{acc+8*p+4+r}" for p in range(4)]
        L += [f"v_bfi_b32 v{pk+p}, 1, s{sTAG}, v{pk+p}" for p in range(4)]
        L += [f"s_add_u32 s{sT0}, s{sSLOT}, {(2*r + t)*16384}", f"buffer_store_dwordx4 {vr(pk,4)}, v{vPs}, {WS}, s{sT0} offen{self.LS}"]
        return "\n".join(L)
    def reduce_rows(self, final_label=None):
        G = self.G; e = G.e; a = G.a; RL, RD, XR, T = self.RL, self.RD, self.XR, self.T
        L = a.lab("L_red")
        e(f"s_waitcnt vmcnt(0)\n{L}:")
        for j in range(8):
            e(f"s_add_u32 s{sT0}, s{sSLOT}, {j*4096}\nbuffer_load_dwordx4 {vr(RL+4*j,4)}, v{vRd}, {WS}, s{sT0} offen sc1")
        G.timeout()
        e(f"v_mov_b32 v{T}, 0\nv_mov_b32 v{T+1}, -1")
        for j in range(8):
            e(f"s_waitcnt vmcnt({7-j})\n{MF} {vr(RD,4)}, {vr(SELA if j < 4 else SELB,4)}, {vr(RL+4*j,4)}, {'0' if j == 0 else vr(RD,4)}")
            for h in range(2):
                e(f"v_or3_b32 v{T}, v{T}, v{RL+4*j+2*h}, v{RL+4*j+2*h+1}")
                e(f"v_bitop3_b32 v{T+1}, v{T+1}, v{RL+4*j+2*h}, v{RL+4*j+2*h+1} bitop3:0x80")
        e(f"v_xor_b32 v{T}, s{sTAG}, v{T}\nv_xor_b32 v{T+1}, s{sTAG}, v{T+1}\nv_or_b32 v{T}, v{T}, v{T+1}\nv_and_b32 v{T}, 1, v{T}")
        e(f"v_cmp_ne_u32 vcc, 0, v{T}\ns_cbranch_vccnz {L}")
        Y = T + 4
        G.stamp(6)
        e(f"""v_lshlrev_b32 v{Y}, 16, v{XR}
        v_and_b32 v{Y+1}, 0xffff0000, v{XR}
        v_lshlrev_b32 v{Y+2}, 16, v{XR+1}
        v_and_b32 v{Y+3}, 0xffff0000, v{XR+1}""")
        for r in range(4): e(f"v_add_f32 v{Y+r}, v{Y+r}, v{RD+r}")
        e(f"v_cvt_pk_bf16_f32 v{XR}, v{Y}, v{Y+1}\nv_cvt_pk_bf16_f32 v{XR+1}, v{Y+2}, v{Y+3}")
        if final_label: e(f"s_cmp_eq_u32 s{sL}, 1\ns_cbranch_scc1 {final_label}")
        e(f"""buffer_store_dwordx2 v[{XR}:{XR+1}], v{vXo}, {WS}, s{sXO} offen sc1
        v_lshlrev_b32 v{Y}, 16, v{XR}
        v_and_b32 v{Y+1}, 0xffff0000, v{XR}
        v_lshlrev_b32 v{Y+2}, 16, v{XR+1}
        v_and_b32 v{Y+3}, 0xffff0000, v{XR+1}
        v_add_f32 v{T}, v{Y}, v{Y+1}
        v_add_f32 v{T+1}, v{Y+2}, v{Y+3}
        v_add_f32 v{T}, v{T}, v{T+1}""")
        G.row_sum(T); G.x16(T, T + 1)
        e(f"v_mul_f32 v{T}, 0x3c000000, v{T}")
        for r in range(4): e(f"v_sub_f32 v{Y+r}, v{Y+r}, v{T}")
        e(f"v_mul_f32 v{T+1}, v{Y}, v{Y}")
        for r in range(1, 4): e(f"v_fmac_f32 v{T+1}, v{Y+r}, v{Y+r}")
        G.row_sum(T + 1); G.x16(T + 1, T + 2)
        Z = RL
        G.stamp(7)
        e(f"""ds_write_b64 v{vST}, v[{T}:{T+1}]
        s_waitcnt lgkmcnt(0)
        s_barrier
        ds_read_b128 {vr(Z,4)}, v{vSR}
        ds_read_b128 {vr(Z+4,4)}, v{vSR} offset:16
        s_waitcnt lgkmcnt(0)
        v_add_f32 v{T+2}, v{Z}, v{Z+2}
        v_add_f32 v{T+3}, v{Z+4}, v{Z+6}
        v_add_f32 v{T+2}, v{T+2}, v{T+3}
        v_mul_f32 v{T+2}, 0x3e800000, v{T+2}
        v_add_f32 v{T+1}, v{Z+1}, v{Z+3}
        v_add_f32 v{T+3}, v{Z+5}, v{Z+7}
        v_add_f32 v{T+1}, v{T+1}, v{T+3}""")
        for k in range(4): e(f"v_sub_f32 v{Z+2*k}, v{Z+2*k}, v{T+2}")
        e(f"v_mul_f32 v{T+3}, v{Z}, v{Z}")
        for k in range(1, 4): e(f"v_fmac_f32 v{T+3}, v{Z+2*k}, v{Z+2*k}")
        e(f"""v_fmac_f32 v{T+1}, 0x43000000, v{T+3}
        v_mov_b32 v{T+3}, 0x3727c5ac
        v_fmac_f32 v{T+3}, 0x3b000000, v{T+1}
        v_rsq_f32 v{T+3}, v{T+3}
        v_sub_f32 v{T}, v{T}, v{T+2}""")
        for r in range(4): e(f"v_add_f32 v{Y+r}, v{Y+r}, v{T}")
        for r in range(4): e(f"v_mul_f32 v{Y+r}, v{Y+r}, v{T+3}")
        e(f"""v_cvt_pk_bf16_f32 v{Z}, v{Y}, v{Y+1}
        v_cvt_pk_bf16_f32 v{Z+1}, v{Y+2}, v{Y+3}
        buffer_store_dwordx2 v[{Z}:{Z+1}], v{vNo}, {WS}, s{sNO} offen sc1
        s_mov_b32 s{sPEND}, s{sFO}""")
    def advance(self):
        self.G.e(f"""s_xor_b32 s{sSLOT}, s{sSLOT}, {512*KB}
        s_add_u32 s{sXI}, s{sXI}, 65536
        s_add_u32 s{sXO}, s{sXO}, 65536
        s_add_u32 s{sNO}, s{sNO}, 65536
        s_add_u32 s{sFO}, s{sFO}, 1024
        s_add_u32 s{sS}, s{sS}, 2
        s_bfe_u32 s{sTAG}, s{sS}, 0x10002""")

def wide_blocks(G, blocks, st0, depth):
    e = G.e; n = len(blocks); Tm = st0 + 32 * depth
    for b in range(n + depth - 1):
        if b < n:
            srd, addrs, so = blocks[b][:3]; st = st0 + 32 * (b % depth)
            e(so)
            for i, (va, imm) in enumerate(addrs):
                e(f"buffer_load_dwordx4 {vr(st+4*i,4)}, v{va}, s[{srd}:{srd+3}], s{sT5} offen" + (f" offset:{imm}" if imm else ""))
        c = b - (depth - 1)
        if c >= 0:
            e(f"s_waitcnt vmcnt({8*(min(n-1, b) - c)})")
            st = st0 + 32 * (c % depth); ab, cls = blocks[c][3:]
            for j in range(8):
                for p in range(4):
                    t = Tm + (j * 4 + p) % 8 if cls == "a" else ab + 4*j + p
                    e(f"v_perm_b32 v{t}, v{st+4*(2*p+1)+(j>>1)}, v{st+4*(2*p)+(j>>1)}, s{sPHI if j & 1 else sPLO}")
                    if cls == "a": e(f"v_accvgpr_write_b32 a{ab+4*j+p}, v{t}")
```

```python
from asmlib import *
from gen import *
from red import *

def emit(G, m):
    e = G.e; a = G.a; lg = a.lg; F = Fill(a)
    R = Red(G, m, RL=192, RD=224, XR=228, T=232); T = R.T
    sQ, sKM, sFL, sBUF, sC, sKMK = 77, 78, 79, 80, 81, 27
    sMK = 82
    vQA, vKMA, vVMA, vDK, vFv, vNEG, vOW, vHA, vFA = 20, 21, 22, 23, 24, 25, 26, 27, 38
    ONES, PZ, P = 28, 32, 40
    Q, K, KM, V, VM, S, O, SU, OF, PK = 44, 60, 92, 108, 140, 156, 168, 200, 204, 220
    BUFSZ, KMB, OXB = 49152, 98304, 106496
    e(f"s_sub_u32 s{sL}, s{sGRP}, 4\ns_lshr_b32 s{sL}, s{sL}, 1")
    R.setup()
    G.srd(S_D, P_WO, 4*MB)
    e(f"""
    s_lshl_b32 s{sT0}, s{sCC}, 18
    s_lshl_b32 s{sT1}, s{sW}, 8
    s_add_u32 s{sT0}, s{sT0}, s{sT1}
    v_lshlrev_b32 v20, 4, v{vRHO}
    v_lshl_add_u32 v20, v{vG}, 13, v20
    v_add_u32 v20, s{sT0}, v20
    v_add_u32 v21, 4096, v20""")
    wide_blocks(G, [(S_D, [(20 + (i >> 2), (i & 3) * 1024) for i in range(8)], f"s_mov_b32 s{sT5}, {b*32768}", b*32, "a") for b in range(8)], 32, 4)
    if m == "L":
        G.census_issue(32); G.census_check(32, "L_fb_att")
    R.ring_init()
    e(f"""
    s_cmp_eq_u32 s{sL}, 0
    s_cselect_b32 s{S_B}, s{P_X}, s{P_WSP}
    s_cselect_b32 s{S_B+1}, s{P_X+1}, s{P_WSP+1}
    s_cselect_b32 s{S_B+2}, {2*MB}, s{S_WS+2}
    s_mov_b32 s{S_B+3}, 0x20000
    s_cselect_b32 s{sXI}, 0, {XB + 2*MB}
    s_lshl_b32 s{sT0}, s{sL}, 22
    s_add_u32 s{sXO}, s{sT0}, {XB}
    s_add_u32 s{sNO}, s{sT0}, {NB + 2*MB}
    s_lshl_b32 s{sT0}, s{sL}, 16
    s_lshl_b32 s{sT1}, s{sRANK}, 5
    s_add_u32 s{sT0}, s{sT0}, s{sT1}
    s_lshl_b32 s{sT3}, s{sW}, 2
    s_add_u32 s{sT0}, s{sT0}, s{sT3}
    s_add_u32 s{sFO}, s{sT0}, {FN}
    s_lshl_b32 s{sT0}, s{sL}, 6
    s_add_u32 s{sT0}, s{sT0}, s{sSUB}
    s_lshl_b32 s{sT0}, s{sT0}, 5
    s_lshl_b32 s{sT1}, s{sCC}, 1
    s_add_u32 s{sT0}, s{sT0}, s{sT1}
    s_lshl_b32 s{sT1}, s{sT0}, 13
    s_lshl_b32 s{sT2}, s{sW}, 11
    s_add_u32 s{sT1}, s{sT1}, s{sT2}
    s_add_u32 s{sQ}, s{sT1}, {QKV}
    s_lshl_b32 s{sT1}, s{sT0}, 12
    s_lshl_b32 s{sT2}, s{sW}, 9
    s_add_u32 s{sT1}, s{sT1}, s{sT2}
    s_add_u32 s{sKM}, s{sT1}, {KMVM}
    s_lshl_b32 s{sT1}, s{sT0}, 6
    s_add_u32 s{sFL}, s{sT1}, {FQ}
    s_lshl_b32 s{sKMK}, 0x10001000, s{sW}
    v_lshlrev_b32 v{vFA}, 2, v{vLANE}
    s_mov_b32 s{sBUF}, 0
    s_mov_b32 s{sC}, 0x3e0293ee
    v_mov_b32 v{vNEG}, 0xff800000
    s_and_b32 s{sT0}, s{sW}, 1                   ; qt
    s_lshr_b32 s{sT2}, s{sW}, 1                  ; hh
    s_mul_i32 s{sT1}, s{sT2}, 24576
    v_add_u32 v{vHA}, s{sT1}, v{vL16}
    s_lshl_b32 s{sT1}, s{sT0}, 10
    v_add_u32 v{vQA}, s{sT1}, v{vHA}
    s_lshl_b32 s{sT1}, s{sT2}, 12
    s_add_u32 s{sT1}, s{sT1}, {KMB}
    v_lshrrev_b32 v{T}, 2, v{vRHO}
    v_and_b32 v{T+1}, 1, v{vRHO}
    v_lshl_add_u32 v{T}, v{T}, 1, v{T+1}
    v_lshlrev_b32 v{T}, 4, v{T}
    v_lshl_add_u32 v{T}, v{vG}, 7, v{T}
    v_add_u32 v{vKMA}, s{sT1}, v{T}
    v_lshl_add_u32 v{vVMA}, v{vLANE}, 3, s{sT1}
    v_lshrrev_b32 v{T}, 5, v{vLANE}
    v_mul_u32_u24 v{T}, {2048 - 512}, v{T}
    v_add_u32 v{vDK}, v{T}, v{vL16}
    s_lshl_b32 s{sT1}, s{sW}, 12
    s_add_u32 s{sT1}, s{sT1}, {OXB}
    v_add_u32 v{vOW}, s{sT1}, v{vL16}
    v_lshl_add_u32 v{T}, v{vRHO}, 1, s{sT0}
    v_lshlrev_b32 v{T+1}, 3, v{vG}
    v_sub_u32 v{T}, v{T}, v{T+1}""")
    for t in range(2):
        for r in range(4): e(f"v_cmp_le_i32 s[{sMK+2*(t*4+r)}:{sMK+2*(t*4+r)+1}], {2*r+t}, v{T}")
    for r in range(4): e(f"v_mov_b32 v{ONES+r}, 0x3f803f80")
    for r in list(range(32, 38)) + list(range(VM, VM + 16)): e(f"v_mov_b32 v{r}, 0")
    FLD = f"buffer_load_dword v{vFv}, v{vFA}, {WS}, s{sFL} offen sc1"
    def fl_issue(): e(f"s_mov_b64 exec, 0xffffffff\n{FLD}\ns_mov_b64 exec, -1")
    def fl_check(mask):
        L = a.lab("L_sp"); Lo = a.lab("L_spo")
        e(f"{L}:\nv_cmp_eq_u32 vcc, 0, v{vFv}\ns_and_b32 s{sT0}, vcc_lo, {mask}\ns_cbranch_scc0 {Lo}")
        G.timeout(); fl_issue()
        e(f"s_waitcnt vmcnt(0)\ns_branch {L}\n{Lo}:")
    def qkv_dma(out):
        out(f"s_lshl_b32 s{sT2}, s{sW}, 11\ns_add_u32 s{sT2}, s{sT2}, s{sBUF}")
        for hh in range(2):
            for wh in range(3):
                out(f"s_add_u32 m0, s{sT2}, {hh*24576 + wh*8192}\ns_add_u32 s{sT1}, s{sQ}, {wh*32*MB + hh*8192}")
                for t in range(2): out(f"buffer_load_dwordx4 v{vL16}, {WS}, s{sT1} offen offset:{t*1024} sc1 lds")
        out(f"s_add_u32 s{sQ}, s{sQ}, 524288")
    fl_issue(); e("s_waitcnt vmcnt(0)"); fl_check('0x0ff00ff0'); qkv_dma(e)
    e(f"L_att_loop_{m}:")
    G.stamp(0)
    fl_issue(); e("s_waitcnt vmcnt(0)"); R.flush_pend(); fl_check(f's{sKMK}')
    G.stamp(1); G.stamp(10, True)
    e(f"""s_lshl_b32 s{sT0}, s{sW}, 10
    s_add_u32 m0, s{sT0}, {KMB}
    s_add_u32 s{sFL}, s{sFL}, 4096
    buffer_load_dwordx4 v{vDK}, {WS}, s{sKM} offen sc1 lds
    s_add_u32 m0, s{sT0}, {KMB + 4096}
    s_add_u32 s{sT1}, s{sKM}, 4096
    buffer_load_dwordx4 v{vDK}, {WS}, s{sT1} offen sc1 lds
    s_add_u32 s{sKM}, s{sKM}, 262144
    {R.x_load(S_B)}""")
    fl_issue()
    e(f"""v_add_u32 v{T}, s{sBUF}, v{vHA}
    v_add_u32 v{T+1}, s{sBUF}, v{vQA}
    s_xor_b32 s{sBUF}, s{sBUF}, {BUFSZ}""")
    lg.set([])
    def rd(dst, va, off, tag):
        e(f"ds_read_b128 {vr(dst,4)}, v{va} offset:{off}"); lg.issue(tag)
    S0, S1, S2 = S + 8, S, S + 4
    Lb = a.lab("L_first")
    e(f"s_cmp_ge_u32 s{sS}, 2\ns_cbranch_scc1 {Lb}\ns_barrier\n{Lb}:")
    for w in range(4):
        rd(Q + 4*w, T + 1, w*2048, ("q", w)); rd(K + 8*w, T, 8192 + w*2048, ("k", w)); rd(K + 8*w + 4, T, 8192 + w*2048 + 1024, ("k", w))
    for w in range(4):
        lg.wait(("k", w))
        for D, A in ((S1, K + 8*w), (S2, K + 8*w + 4)):
            e(f"{MF} {vr(D,4)}, {vr(A,4)}, {vr(Q+4*w,4)}, {'0' if w == 0 else vr(D,4)}")
    for w in range(4):
        rd(V + 8*w, T, 16384 + w*2048, ("v", w)); rd(V + 8*w + 4, T, 16384 + w*2048 + 1024, ("v", w))
    mx, t0 = PK, PK + 1
    for t, D in enumerate((S1, S2)):
        for r in range(4): e(f"v_cndmask_b32 v{D+r}, v{vNEG}, v{D+r}, s[{sMK+2*(t*4+r)}:{sMK+2*(t*4+r)+1}]")
    e(f"""v_max3_f32 v{mx}, v{S1}, v{S1+1}, v{S1+2}
    v_max3_f32 v{t0}, v{S1+3}, v{S2}, v{S2+1}
    v_max3_f32 v{mx}, v{mx}, v{S2+2}, v{S2+3}
    s_waitcnt vmcnt(2)
    s_barrier""")
    G.stamp(2)
    for w in range(4): rd(KM + 4*w, vKMA, w*1024, ("km", w))
    for w in range(4):
        lg.wait(("km", w))
        e(f"{MF} {vr(S0,4)}, {vr(KM+4*w,4)}, {vr(Q+4*w,4)}, {'0' if w == 0 else vr(S0,4)}")
        e(f"ds_read_b64 {vr(VM+4*w,2)}, v{vVMA} offset:{512 + w*1024}"); lg.issue(("vm", w))
    G.stamp(3)
    e(f"v_max3_f32 v{t0}, v{t0}, v{S0}, v{S0+1}\nv_max_f32 v{mx}, v{mx}, v{t0}")
    G.x16(mx, t0, "v_max_f32"); G.x32(mx, t0, "v_max_f32")
    e(f"v_mul_f32 v{mx}, s{sC}, v{mx}")
    for r in range(10): e(f"v_fma_f32 v{S+r}, v{S+r}, s{sC}, -v{mx}")
    for r in range(10): e(f"v_exp_f32 v{S+r}, v{S+r}")
    for r in range(4): e(f"v_cvt_pk_bf16_f32 v{P+r}, v{S1+r}, v{S2+r}")
    e(f"v_cvt_pk_bf16_f32 v{PZ}, v{S0}, v{S0+1}\nv_cvt_pk_bf16_f32 v{PZ+3}, v{S0}, v{S0+1}")
    e(f"{MF} {vr(SU,4)}, {vr(ONES,4)}, {vr(P,4)}, 0\n{MF} {vr(SU,4)}, {vr(ONES,4)}, {vr(PZ+2,4)}, {vr(SU,4)}")
    def norm(w):
        for r in range(4):
            F.add(f"v_mul_f32 v{O+8*w+r}, v{O+8*w+r}, v{SU}\nv_mul_f32 v{O+8*w+4+r}, v{O+8*w+4+r}, v{SU}\nv_cvt_pk_bf16_f32 v{OF+4*w+r}, v{O+8*w+r}, v{O+8*w+4+r}")
        F.add(f"ds_write_b128 v{vOW}, {vr(OF+4*w,4)} offset:{w*1024}")
    for w in range(4):
        lg.wait(("vm", w))
        for j in range(2): F.mf(f"{MF} {vr(O+8*w+4*j,4)}, {vr(V+8*w+4*j,4)}, {vr(P,4)}, 0", 3, 3)
        for j in range(2): F.mf(f"{MF} {vr(O+8*w+4*j,4)}, {vr(VM+4*w,4)}, {vr(PZ+2*j,4)}, {vr(O+8*w+4*j,4)}", 3, 3)
        if w == 1: e(f"v_rcp_f32 v{SU}, v{SU}")
        if w >= 2: norm(w - 2)
    norm(2); norm(3); F.flush()
    e("s_waitcnt lgkmcnt(0)\ns_barrier")
    G.stamp(4)
    lg.set([])
    ACC = [44, 76]; AR = 108; vOR = T
    e(f"v_add_u32 v{vOR}, {OXB}, v{vL16}")
    frs = [(t, hh, kd) for t in range(2) for hh in range(2) for kd in range(4)]
    def ord_(n):
        t, hh, kd = frs[n]
        rd(AR + 4*(n % 3), vOR, ((hh*2 + t)*4 + kd)*1024, ("o", n))
    ord_(0); ord_(1)
    for n, (t, hh, kd) in enumerate(frs):
        if n + 2 < 16: ord_(n + 2)
        if n == 2:
            Ln = a.lab("L_nonext")
            e(f"s_cmp_ge_u32 s{sS}, 62\ns_cbranch_scc1 {Ln}\ns_waitcnt vmcnt(0)")
            fl_check('0x0ff00ff0'); e(f"{Ln}:")
            qkv_dma(F.mem)
        if n >= 9 and n % 2 == 1: F.add(R.out_pack(ACC[0], (n - 9)//2, 0, PK))
        lg.wait(("o", n))
        for j in range(8):
            D = vr(ACC[t] + 4*j, 4)
            F.mf(f"{MF} {D}, {vr(AR+4*(n%3),4)}, {ar((hh*4+kd)*32+4*j,4)}, {'0' if n % 8 == 0 else D}", 3 if j < 7 else 1)
    F.flush()
    for r in range(4): e(R.out_pack(ACC[1], r, 1, PK + 4*(r & 1) - 4))
    G.stamp(5)
    R.reduce_rows()
    G.stamp(8); G.stamp(11, True)
    R.advance()
    G.stamp(9)
    if G.ts: e(f"s_sub_u32 s{sT5}, s{sS}, 1"); G.ts_flush(sT5, 250)
    e(f"s_cmp_lt_u32 s{sS}, 64\ns_cbranch_scc1 L_att_loop_{m}\ns_waitcnt vmcnt(0)")
    R.flush_pend()
    e("s_endpgm")
    if m == "L": G.far_fallback("L_fb_att")
```

```python
from asmlib import *
from gen import *
MF = "v_mfma_f32_16x16x32_bf16"
SM = "v_smfmac_f32_16x16x64_bf16"
OFFS = [0, 1, 8, 9, 2, 3, 10, 11]

def emit(G, m):
    e = G.e; a = G.a; vm = a.vm; lg = a.lg
    LS = "" if m == "L" else " sc1"
    WS = f"s[{S_WS}:{S_WS+3}]"
    sI, sK, sV, sTAG, sKM, sFL, sKB = 37, 38, 39, 28, 29, 30, 31
    sPs, sRs, sMr, sMp, sC, sUP = 76, 77, 78, 79, 80, 82
    vFv, vLW, vLA, vST, vQW, vTR, vTK, vOW, vPst, vPub, vTS, vKM, vVM, vFl, IDX, vKR, vKW, vZ, vTO = 0, 3, 4, 5, 6, 7, 8, 9, 10, 11, 12, 14, 15, 16, 17, 18, 19, 21, 26
    PM, VB, SEL, ONES, VX = 20, 28, 32, 36, 40
    MEM, WR, AV, AQ, AK = 48, 80, 104, 112, 120
    WQ0, WO0 = 128, 192
    LB = 131072; MEMF, QX, KXX, OX, KB0 = 0, 8192, 8192 + 2112, 0, 16384
    F = Fill(a); cold = []
    stamp = G.stamp
    G.srd(S_A, P_WQ, 4*MB); G.srd(S_B, P_WK, 4*MB); G.srd(S_C, P_WV, 4*MB); G.srd(S_D, P_WO, 4*MB)
    vW = 80
    e(f"""
    v_and_b32 v90, 15, v{vLANE}              ; rho
    v_lshrrev_b32 v91, 4, v{vLANE}           ; g
    v_lshrrev_b32 v94, 1, v91
    v_and_b32 v95, 1, v91
    v_lshlrev_b32 v95, 2, v95
    v_lshl_add_u32 v95, v94, 4, v95
    s_lshl_b32 s{sT0}, s{sRANK}, 8
    s_lshl_b32 s{sT1}, s{sW}, 6
    s_add_u32 s{sT0}, s{sT0}, s{sT1}
    v_lshlrev_b32 v92, 2, v90
    v_lshl_add_u32 v93, v95, 13, v92
    v_add_u32 v{vW}, s{sT0}, v93
    s_lshl_b32 s{sT0}, s{sRANK}, 17
    s_lshl_b32 s{sT1}, s{sW}, 8
    s_add_u32 s{sT0}, s{sT0}, s{sT1}
    v_lshl_add_u32 v93, v95, 10, v92
    v_add_u32 v88, s{sT0}, v93
    v_add_u32 v89, 8192, v88
    s_lshl_b32 s{sT0}, s{sW}, 15
    v_add_u32 v{vLW}, s{sT0}, v{vL16}""")
    for i in range(1, 8): e(f"v_add_u32 v{vW+i}, {8192*OFFS[i]}, v{vW}")
    A8 = [(vW + i, 0) for i in range(8)]
    blocks = []
    pos = lambda k, j: (k >> 1) * 16 + j * 8 + (k & 1) * 4
    for k in range(16): blocks.append((S_A, A8, f"s_mov_b32 s{sT5}, {k*262144}", G.sink_v(WQ0 + 4*k), G.sink_lds(vLW, k*1024)))
    for k in range(16): blocks.append((S_B, A8, f"s_mov_b32 s{sT5}, {k*262144}", G.sink_a(pos(k, 0)), G.sink_a(pos(k, 1))))
    for k in range(16): blocks.append((S_C, A8, f"s_mov_b32 s{sT5}, {k*262144}", G.sink_a(128 + pos(k, 0)), G.sink_a(128 + pos(k, 1))))
    for u in range(4):
        for k in range(4):
            blocks.append((S_D, [(88 + (OFFS[i] >> 3), (OFFS[i] & 7) * 1024) for i in range(8)], f"s_mov_b32 s{sT5}, {k*32768 + u*64}",
                           G.sink_v(WO0 + 4*(u*4 + k)), G.sink_lds(vLW, 16384 + (u*4 + k)*1024)))
    e(f"""
    s_lshl_b32 s{sT2}, s{sGRP}, 19
    s_add_u32 s{sPs}, s{sT2}, {CPART}
    s_and_b32 s{sT3}, s{sW}, 1
    s_lshl_b32 s{sT0}, s{sT3}, 17
    s_lshl_b32 s{sT1}, s{sRANK}, 12
    s_add_u32 s{sT0}, s{sT0}, s{sT1}
    s_add_u32 s{sRs}, s{sT0}, s{sPs}
    s_lshl_b32 s{sT2}, s{sGRP}, 14
    s_add_u32 s{sT2}, s{sT2}, {MEMR + 8192}
    s_lshl_b32 s{sT0}, s{sW}, 11
    s_add_u32 s{sMr}, s{sT0}, s{sT2}
    s_lshr_b32 s{sT0}, s{sRANK}, 3
    s_lshl_b32 s{sT0}, s{sT0}, 11
    s_lshl_b32 s{sT1}, s{sT3}, 10
    s_add_u32 s{sT0}, s{sT0}, s{sT1}
    s_and_b32 s{sT1}, s{sRANK}, 1
    s_lshl_b32 s{sT1}, s{sT1}, 8
    s_add_u32 s{sT0}, s{sT0}, s{sT1}
    s_bfe_u32 s{sT1}, s{sRANK}, 0x20001
    s_lshl_b32 s{sT1}, s{sT1}, 5
    s_add_u32 s{sT0}, s{sT0}, s{sT1}
    s_add_u32 s{sMp}, s{sT0}, s{sT2}
    v_bfe_u32 v93, v90, 2, 1
    v_lshlrev_b32 v93, 7, v93
    v_and_b32 v95, 3, v90
    v_lshl_add_u32 v93, v95, 2, v93
    v_and_b32 v95, 1, v91
    v_lshl_add_u32 v93, v95, 4, v93
    v_lshl_add_u32 v{vPub}, v94, 9, v93
    v_and_b32 v93, 7, v90
    v_lshlrev_b32 v93, 4, v93                    ; (rho&7)*16""")
    def h_issue():
        if m == "L": G.census_issue(96)
    def h_poison():
        if m == "L": G.census_check(96, "L_fb_chain", waited=True)
        for r in range(4): e(f"v_mov_b32 v{100+r}, -1")
        e(f"s_lshr_b32 s{sT1}, s{sW}, 1\ns_lshl_b32 s{sT0}, s{sT1}, 18\ns_xor_b32 s{sT0}, s{sT0}, s{sRs}")
        for i in range(4): e(f"buffer_store_dwordx4 v[100:103], v{vL16}, {WS}, s{sT0} offen offset:{i*1024}{LS}")
        e(f"s_lshl_b32 s{sT0}, s{sT1}, 13\ns_xor_b32 s{sT0}, s{sT0}, s{sMp}")
        e(f"buffer_store_dword v100, v{vPub}, {WS}, s{sT0} offen{LS}")
    def h_ready():
        e("s_barrier"); G.ready_add(100)
    G.wstream(blocks, 16, 7, {30: h_issue, 38: h_poison, 50: h_ready})
    if G.ts: e("s_memrealtime s[100:101]")
    G.srd(S_A, P_MEM0, 8192)
    e(f"""
    v_and_b32 v96, 7, v{vLANE}
    v_lshlrev_b32 v96, 10, v96
    v_lshrrev_b32 v95, 3, v{vLANE}
    v_lshl_add_u32 v95, v95, 4, v96
    s_lshl_b32 s{sT0}, s{sW}, 8
    buffer_load_dwordx4 v[64:67], v95, s[{S_A}:{S_A+3}], s{sT0} offen
    buffer_load_dwordx4 v[68:71], v95, s[{S_A}:{S_A+3}], s{sT0} offen offset:128
    s_lshl_b32 s{sT2}, s{sGRP}, 11
    s_add_u32 s{sT2}, s{sT2}, s{sRANK}
    s_lshl_b32 s{sT0}, s{sT2}, 6
    s_lshl_b32 s{sT1}, s{sW}, 2
    s_add_u32 s{sT0}, s{sT0}, s{sT1}
    s_add_u32 s{sFL}, s{sT0}, {FQ}
    v_and_b32 v95, 1, v{vLANE}
    v_lshlrev_b32 v95, 4, v95
    v_add_u32 v{vFl}, 16, v95
    buffer_load_dword v{vFv}, v{vFl}, {WS}, s{sFL} offen sc1
    s_lshl_b32 s{sT0}, s{sT2}, 13
    s_lshl_b32 s{sT1}, s{sW}, 11
    s_add_u32 s{sT0}, s{sT0}, s{sT1}
    s_add_u32 s{sK}, s{sT0}, {QKV + 32*MB}
    s_add_u32 s{sKB}, s{sT1}, {LB + KB0}
    s_lshl_b32 s{sT0}, s{sT2}, 12
    s_lshl_b32 s{sT1}, s{sW}, 9
    s_add_u32 s{sT0}, s{sT0}, s{sT1}
    s_add_u32 s{sKM}, s{sT0}, {KMVM}
    v_lshl_add_u32 v96, v91, 7, v93              ; g*128 + (rho&7)*16
    s_add_u32 s{sT0}, s{sT1}, {LB + OX}
    v_add_u32 v{vOW}, s{sT0}, v96
    v_lshrrev_b32 v97, 2, v90                    ; rho>>2
    v_and_b32 v98, 1, v90                        ; rho&1
    v_lshl_add_u32 v96, v97, 1, v98
    v_lshlrev_b32 v96, 4, v96
    v_lshl_add_u32 v{vKM}, v91, 7, v96
    v_bfe_u32 v96, v90, 1, 1
    v_lshl_add_u32 v{vKM}, v96, 30, v{vKM}
    v_lshlrev_b32 v{vVM}, 3, v{vLANE}
    v_lshrrev_b32 v96, 1, v90
    v_lshlrev_b32 v96, 4, v96
    v_lshl_add_u32 v96, v98, 7, v96
    v_lshl_add_u32 v96, v91, 8, v96
    v_add_u32 v{vLA}, {LB}, v96
    v_add_u32 v{vKR}, {LB + KB0}, v{vL16}
    s_lshl_b32 s{sT0}, s{sW}, 11
    s_add_u32 s{sT0}, s{sT0}, {LB}
    v_add_u32 v{vST}, s{sT0}, v{vL16}
    v_and_b32 v95, 1, v91
    v_lshlrev_b32 v96, 3, v90
    v_lshl_add_u32 v96, v95, 2, v96
    v_mul_u32_u24 v99, 1088, v94
    s_lshl_b32 s{sT0}, s{sW}, 8
    s_add_u32 s{sT0}, s{sT0}, {LB + QX}
    v_add3_u32 v{vQW}, v96, v99, s{sT0}
    v_mul_u32_u24 v96, 192, v91
    v_lshl_add_u32 v96, v90, 3, v96
    s_mul_i32 s{sT0}, s{sW}, 1488
    s_add_u32 s{sT0}, s{sT0}, {LB + KXX}
    v_add_u32 v{vKW}, s{sT0}, v96
    v_lshrrev_b32 v96, 1, v97
    v_lshl_add_u32 v96, v91, 2, v96
    v_lshlrev_b32 v96, 3, v96                    ; (4G + (r>>1))*8
    v_and_b32 v95, 1, v97
    v_lshl_add_u32 v99, v95, 7, v96
    v_mul_u32_u24 v100, 1088, v98
    v_add_u32 v99, v99, v100
    v_add_u32 v{vTR}, {LB + QX}, v99
    v_mul_u32_u24 v99, 784, v95
    v_and_b32 v95, 3, v90
    v_mul_u32_u24 v95, 192, v95
    v_add3_u32 v96, v96, v99, v95
    v_add_u32 v{vTK}, {LB + KXX}, v96
    v_add_u32 v{vTO}, s{sT0}, v96
    v_lshrrev_b32 v95, 3, v90
    v_lshl_add_u32 v96, v91, 1, v95
    v_lshlrev_b32 v96, 12, v96
    s_lshl_b32 s{sT0}, s{sW}, 15
    s_lshl_b32 s{sT1}, s{sRANK}, 7
    s_add_u32 s{sT0}, s{sT0}, s{sT1}
    v_add3_u32 v{vPst}, v96, v93, s{sT0}
    v_mul_u32_u24 v95, 0xaaaa, v98
    v_add_u32 v{IDX}, 0x4444, v95
    s_mov_b32 s{sC}, 0x3e0293ee
    s_mov_b32 s{sUP}, 0
    s_mov_b32 s{sUP+1}, -1
    s_mov_b32 s{sI}, 0
    v_and_b32 v94, 7, v90""")
    for p in range(4):
        e(f"""v_mov_b32 v{SEL+p}, 0
        v_cmp_eq_u32 vcc, {2*p}, v94
        v_mov_b32 v95, 0x3f80
        v_cndmask_b32 v{SEL+p}, v{SEL+p}, v95, vcc
        v_cmp_eq_u32 vcc, {2*p+1}, v94
        v_mov_b32 v95, 0x3f800000
        v_cndmask_b32 v{SEL+p}, v{SEL+p}, v95, vcc
        v_mov_b32 v{ONES+p}, 0x3f803f80""")
    for r in [12, 13, 30, 31] + list(range(20, 26)): e(f"v_mov_b32 v{r}, 0")
    FLD = f"buffer_load_dword v{vFv}, v{vFl}, {WS}, s{sFL} offen sc1"
    def fl_check(first=False):
        L = a.lab("L_fl"); Lo = a.lab("L_flo")
        e(f"v_cmp_eq_u32 vcc, 0, v{vFv}\ns_cbranch_vccnz {L}\n{Lo}:")
        def slow():
            e(f"{L}:")
            if not first: e(f"s_cmp_eq_u32 s{sI}, 63\ns_cbranch_scc1 {Lo}")
            G.timeout(0)
            e(f"{FLD}\ns_waitcnt vmcnt(0)\nv_cmp_eq_u32 vcc, 0, v{vFv}\ns_cbranch_vccnz {L}\ns_branch {Lo}")
        cold.append(slow)
    def vmop(text, tag):
        def f(): e(text); vm.issue(tag)
        f.cost = Fill.cost(text); f.text = text; return f
    kx_ops = lambda: [f"s_mov_b32 m0, s{sKB}\ns_xor_b32 s{sKB}, s{sKB}, {KB0 ^ (KB0 + 8192)}"] + \
        [vmop(f"buffer_load_dwordx4 v{vL16}, {WS}, s{sK} offen offset:{t*1024} sc1 lds", "kx") for t in range(2)]
    vx_ops = lambda: [vmop(f"buffer_load_dwordx4 {vr(VX+4*t,4)}, v{vL16}, {WS}, s{sV} offen offset:{t*1024} sc1", "vx") for t in range(2)]
    KMFLAG = f"s_sub_u32 s{sT1}, s{sFL}, {2048 - 48}\nbuffer_store_dword v{ONES}, v{vZ}, {WS}, s{sT1} offen sc1"
    def rdw(kp):
        for h in range(2):
            e(f"ds_read_b128 {vr(WR+8*(kp%3)+4*h,4)}, v{vLW} offset:{(2*kp+h)*1024}"); lg.issue(("w", kp))
    def pre_qk():
        for r in range(AV, 128): e(f"v_mov_b32 v{r}, 0")
        for kp in range(3): rdw(kp)
    for r in range(72, 76): e(f"v_mov_b32 v{r}, 0")
    for i in range(2): e(f"ds_write_b128 v{vST}, v[72:75] offset:{QX + i*1024}")
    e("s_waitcnt vmcnt(0)")
    for i in range(2): e(f"ds_write_b128 v{vST}, {vr(64+4*i,4)} offset:{MEMF + i*1024}")
    fl_check(True)
    F.add(*kx_ops()); F.flush()
    G.ready_wait(100)
    pre_qk()
    e("s_waitcnt lgkmcnt(0)\ns_barrier")
    if G.ts:
        e("s_waitcnt lgkmcnt(0)\ns_mov_b32 s48, s98\ns_mov_b32 s50, s100"); stamp(11, True); G.ts_flush(sI, vTS, store=False)
    e(f".p2align 5\nL_ch_loop_{m}:")
    vm.set([]); lg.set([])
    stamp(0)
    for kp in range(8):
        e(f"ds_read_b128 {vr(MEM+4*kp,4)}, v{vLA} offset:{MEMF + kp*1024}"); lg.issue(("m", kp))
    Lnf = a.lab("L_nf")
    e(f"s_cmp_eq_u32 s{sI}, 0\ns_cbranch_scc1 {Lnf}\n{KMFLAG}\n{Lnf}:")
    F.mem(f"s_add_u32 s{sFL}, s{sFL}, 2048", vmop(FLD, "fl"), f"s_add_u32 s{sV}, s{sK}, {32*MB}\ns_add_u32 s{sK}, s{sK}, 262144", *vx_ops())
    def mq(kp):
        M = vr(MEM + 4*kp, 4)
        lg.wait(("m", kp))
        F.mf(f"{SM} {vr(AQ,4)}, {M}, {vr(WQ0+8*kp,8)}, v{IDX}", 2, 1)
        lg.wait(("w", kp))
        e(f"{SM} {vr(AQ+4,4)}, {M}, {vr(WR+8*(kp%3),8)}, v{IDX}")
        if kp + 3 < 8: rdw(kp + 3)
        else: F.drain(3, 2)
    def mk(kp, sl=(3, 1)):
        for j in range(2): F.mf(f"{SM} {vr(AK+4*j,4)}, {vr(MEM+4*kp,4)}, {ar(16*kp+8*j,8)}, v{IDX}", *sl)
    vs = {"n": 0}
    def vstep(n, sl=0, va=0):
        for _ in range(n):
            if vs["n"] < 16:
                kp, j = vs["n"] >> 1, vs["n"] & 1; vs["n"] += 1
                e(f"{SM} {vr(AV+4*j,4)}, {vr(MEM+4*kp,4)}, {ar(128+16*kp+8*j,8)}, v{IDX}")
            F.drain(sl, va)
    def fold(A0, D):
        return [f"v_add_f32 v{A0+2*r}, v{A0+2*r}, v{A0+2*r+1}" for r in range(4)] + [f"v_cvt_pk_bf16_f32 v{D+j}, v{A0+4*j}, v{A0+4*j+2}" for j in range(2)]
    def lop(text, tag):
        def f(): e(text); lg.issue(tag)
        f.cost = Fill.cost(text); f.text = text; return f
    KXR = lambda kd, t: (WR + 8*kd + 4*t) if kd < 3 else (MEM + 12 + 4*t)
    krd = lambda kd, t: lop(f"ds_read_b128 {vr(KXR(kd,t),4)}, v{vKR} offset:{kd*2048 + t*1024}", ("kx", kd))
    for kp in range(4): mq(kp); mk(kp)
    F.flush(); stamp(1); G.ts_store(vTS)
    for kp in range(4, 8): mq(kp)
    F.add(krd(0, 0), krd(0, 1), krd(1, 0), krd(1, 1)); mk(4, (3, 0))
    F.flush()
    F.add(krd(2, 0), krd(2, 1), *fold(AQ, AQ), lop(f"ds_write2_b32 v{vQW}, v{AQ}, v{AQ+1} offset0:0 offset1:32", "qw"))
    mk(5, (3, 1)); mk(6, (3, 1)); mk(7, (3, 1))
    stamp(2)
    vstep(2, 3, 1); F.flush()
    e("\n".join(fold(AK, AK)))
    lop(f"ds_write2_b32 v{vKW}, v{AK}, v{AK+1} offset0:0 offset1:196", "qw")()
    vstep(5)
    lg.wait("qw"); e("s_barrier")
    stamp(3)
    S1, S2, S0, KOWN, P = MEM, MEM + 4, MEM + 8, WR, MEM + 28
    def trd(kd):
        sl = AQ + 8*(kd & 1)
        for x in range(2):
            for h in range(2):
                e(f"ds_read_b64_tr_b16 {vr(sl+4*x+2*h,2)}, v{(vTR, vTK)[x]} offset:{kd*(256, 1488)[x] + h*16}"); lg.issue(("t", kd, x))
    trd(0); trd(1)
    vstep(3)
    krd(3, 0)(); krd(3, 1)()
    WOR = WR
    def wro(n):
        for h in range(2):
            e(f"ds_read_b128 {vr(WOR+8*(n%4)+4*h,4)}, v{vLW} offset:{16384 + (2*n+h)*1024}"); lg.issue(("o", n))
    for kd in range(4):
        sl = AQ + 8*(kd & 1); c = lambda D: "0" if kd == 0 else vr(D, 4)
        lg.wait(("t", kd, 0)); lg.wait(("kx", kd))
        e(f"{MF} {vr(S1,4)}, {vr(KXR(kd,0),4)}, {vr(sl,4)}, {c(S1)}")
        e(f"{MF} {vr(S2,4)}, {vr(KXR(kd,1),4)}, {vr(sl,4)}, {c(S2)}")
        if kd == 1:
            for h in range(2):
                e(f"ds_read_b64_tr_b16 {vr(KOWN+2*h,2)}, v{vTO} offset:{h*16}"); lg.issue("ko")
        lg.wait(("t", kd, 1))
        e(f"{MF} {vr(S0,4)}, {vr(sl+4,4)}, {vr(sl,4)}, {c(S0)}")
        if kd + 2 < 4: trd(kd + 2)
    vstep(1)
    vmop(f"buffer_store_dwordx4 {vr(KOWN,4)}, v{vKM}, {WS}, s{sKM} offen sc1", "km")()
    e(f"v_xor_b32 v{vKR}, {KB0 ^ (KB0 + 8192)}, v{vKR}\ns_bfe_u32 s{sTAG}, s{sI}, 0x10001")
    vstep(1)
    wro(1)
    mx, t0 = S0 + 2, S0 + 3
    e(f"v_max3_f32 v{mx}, v{S1}, v{S1+1}, v{S1+2}\nv_max3_f32 v{t0}, v{S1+3}, v{S2}, v{S2+1}")
    vstep(1)
    e(f"v_max3_f32 v{mx}, v{mx}, v{S2+2}, v{S2+3}\nv_max3_f32 v{t0}, v{t0}, v{S0}, v{S0+1}\nv_max_f32 v{mx}, v{mx}, v{t0}\nv_max_f32 v{t0}, v{mx}, v{t0}")
    vstep(1); e("s_nop 0")
    e(f"v_permlane16_swap_b32 v{mx}, v{t0}\nv_max_f32 v{mx}, v{mx}, v{t0}\nv_mov_b32 v{t0}, v{mx}")
    vstep(1); e("s_nop 0")
    e(f"v_permlane32_swap_b32 v{mx}, v{t0}\nv_max_f32 v{mx}, v{mx}, v{t0}\nv_mul_f32 v{mx}, s{sC}, v{mx}")
    vstep(1); assert vs["n"] == 16
    wro(2)
    order = [S0, S0 + 1, S1, S2, S1 + 1, S2 + 1, S1 + 2, S2 + 2, S1 + 3, S2 + 3]
    for r in order: e(f"v_fma_f32 v{r}, v{r}, s{sC}, -v{mx}")
    wro(0)
    kx = kx_ops()
    for n, r in enumerate(order):
        e(f"v_exp_f32 v{r}, v{r}")
        if n == 0: vm.wait("fl")
        if n == 1: fl_check()
        if n == 5: e(kx[0])
        if n in (6, 8): kx[1 if n == 6 else 2]()
    stamp(4)
    O0, O1, SU, OB = AQ, AQ + 4, AK, AK + 4
    for r in range(4): e(f"v_cvt_pk_bf16_f32 v{P+r}, v{S1+r}, v{S2+r}")
    fv = fold(AV, VB)
    e(f"v_cvt_pk_bf16_f32 v{PM+3}, v{S0}, v{S0+1}"); vm.wait("vx")
    e(f"{MF} {vr(SU,4)}, {vr(ONES,4)}, {vr(P,4)}, 0\n{fv[0]}\n{fv[1]}")
    e(f"{MF} {vr(O0,4)}, {vr(VX,4)}, {vr(P,4)}, 0\n{fv[2]}\n{fv[3]}")
    e(f"{MF} {vr(SU,4)}, {vr(ONES,4)}, {vr(PM+2,4)}, {vr(SU,4)}\n{fv[4]}\n{fv[5]}")
    e(f"{MF} {vr(O1,4)}, {vr(VX+4,4)}, {vr(P,4)}, 0")
    e(f"v_cvt_pk_bf16_f32 v{PM}, v{S0}, v{S0+1}")
    vmop(f"buffer_store_dwordx2 {vr(VB,2)}, v{vVM}, {WS}, s{sKM} offen offset:2048 sc1", "vmst")()
    e(f"s_cmp_eq_u32 s{sI}, 63\ns_cbranch_scc1 L_ch_last_{m}")
    ACC = [MEM, MEM + 16]
    F.add(*[f"v_mov_b32 v{MEM+r}, 0" for r in range(28)])
    e(f"{MF} {vr(O0,4)}, {vr(VB,4)}, {vr(PM,4)}, {vr(O0,4)}")
    wro(3)
    F.mf(f"{MF} {vr(O1,4)}, {vr(VB,4)}, {vr(PM+2,4)}, {vr(O1,4)}", 2, 2)
    e(f"s_add_u32 s{sKM}, s{sKM}, 131072")
    e(f"v_rcp_f32 v{SU}, v{SU}")
    F.drain(3, 3)
    for r in range(4): e(f"v_mul_f32 v{O0+r}, v{O0+r}, v{SU}")
    for r in range(4): e(f"v_mul_f32 v{O1+r}, v{O1+r}, v{SU}\nv_cvt_pk_bf16_f32 v{OB+r}, v{O0+r}, v{O1+r}")
    e(f"ds_write_b128 v{vOW}, {vr(OB,4)}"); lg.issue("ow")
    F.drain(12, 12)
    lg.wait("ow"); e("s_barrier")
    stamp(5)
    OF = AQ
    for kk in range(2):
        e(f"ds_read_b128 {vr(OF+4*kk,4)}, v{vLA} offset:{OX + kk*1024}"); lg.issue(("f", kk))
    F.add(*[f"v_mov_b32 v{MEM+r}, 0" for r in range(28, 32)]); F.flush()
    PK = OB
    def wo_out(sg):
        A0 = ACC[sg]
        return [f"v_add_f32 v{A0+2*r}, v{A0+2*r}, v{A0+2*r+1}" for r in range(8)] + \
               [f"v_cvt_pk_bf16_f32 v{PK+2*hr+sd}, v{A0+4*sd+2*hr}, v{A0+8+4*sd+2*hr}" for hr in range(2) for sd in range(2)] + [f"s_add_u32 s{sT0}, s{sPs}, {sg*131072}"] + \
               [f"v_bfi_b32 v{PK+r}, 1, s{sTAG}, v{PK+r}" for r in range(4)] + [f"buffer_store_dwordx4 {vr(PK,4)}, v{vPst}, {WS}, s{sT0} offen{LS}"]
    for sg in range(2):
        for kk in range(2):
            for sd in range(2):
                n = (sg*2 + sd)*2 + kk
                lg.wait(("f", kk))
                if sg == 1 and (kk, sd) == (0, 1): F.add(*wo_out(0))
                F.mf(f"{SM} {vr(ACC[sg]+4*sd,4)}, {vr(OF+4*kk,4)}, {vr(WO0+8*n,8)}, v{IDX}", 3, 2)
                lg.wait(("o", n))
                e(f"{SM} {vr(ACC[sg]+8+4*sd,4)}, {vr(OF+4*kk,4)}, {vr(WOR+8*(n%4),8)}, v{IDX}")
                if n + 4 < 8: wro(n + 4)
                else: F.drain(3, 2)
    F.flush()
    e("\n".join(wo_out(1)))
    stamp(6)
    RD = AQ; SA = [MEM + 4*i for i in range(4)]; t1, t2 = AQ + 4, AQ + 5
    Lw = a.lab("L_nored"); Ld = a.lab("L_redd"); La = a.lab("L_and"); Lo_ = a.lab("L_or")
    lg.set([])
    for kp in range(3): rdw(kp)
    e(f"s_cmp_ge_u32 s{sW}, 2\ns_cbranch_scc1 {Lw}\nv_mov_b32 v{AQ+6}, -1")
    if G.opt.get("redwait", 1): e("s_waitcnt vmcnt(0)")
    e(f"s_cmp_eq_u32 s{sTAG}, 1\ns_cbranch_scc1 {La}")
    for lab, op, cmp_ in ((Lo_, "v_or3_b32 {d}, {a}, {b}, {c}", "ne"), (La, "v_bitop3_b32 {d}, {a}, {b}, {c} bitop3:0x80", "eq")):
        e(f"{lab}:")
        for i in range(4): e(f"buffer_load_dwordx4 {vr(SA[i],4)}, v{vL16}, {WS}, s{sRs} offen offset:{i*1024} sc1")
        for i in range(4):
            e(f"s_waitcnt vmcnt({3-i})\n{MF} {vr(RD,4)}, {vr(SEL,4)}, {vr(SA[i],4)}, {'0' if i == 0 else vr(RD,4)}")
            b = SA[i]
            if i == 0: e(op.format(d=f"v{t1}", a=f"v{b}", b=f"v{b+1}", c=f"v{b+2}") + "\n" + op.format(d=f"v{t2}", a=f"v{b+3}", b=f"v{b+3}", c=f"v{b+3}"))
            else: e(op.format(d=f"v{t1}", a=f"v{t1}", b=f"v{b}", c=f"v{b+1}") + "\n" + op.format(d=f"v{t2}", a=f"v{t2}", b=f"v{b+2}", c=f"v{b+3}"))
        e(op.format(d=f"v{t1}", a=f"v{t1}", b=f"v{t2}", c=f"v{t2}") + f"\nv_and_b32 v{t1}, 1, v{t1}\nv_cmp_{cmp_}_u32 vcc, 0, v{t1}\ns_cbranch_vccz {Ld}")
        G.timeout(2); e(f"s_branch {lab}")
    e(f"{Ld}:")
    stamp(7)
    e(f"""v_cndmask_b32 v{RD}, v{RD}, v{RD+2}, s[{sUP}:{sUP+1}]
    v_cndmask_b32 v{RD+1}, v{RD+1}, v{RD+3}, s[{sUP}:{sUP+1}]
    v_add_f32_dpp v{RD}, v{RD}, v{RD} row_ror:8 row_mask:0xf bank_mask:0xf
    v_add_f32_dpp v{RD+1}, v{RD+1}, v{RD+1} row_ror:8 row_mask:0xf bank_mask:0xf
    v_cvt_pk_bf16_f32 v{t1}, v{RD}, v{RD+1}
    v_min_u32 v{t1}, -2, v{t1}
    buffer_store_dword v{t1}, v{vPub}, {WS}, s{sMp} offen{LS}
    s_xor_b32 s{sMp}, s{sMp}, 0x2000
    buffer_store_dword v{AQ+6}, v{vPub}, {WS}, s{sMp} offen{LS}""")
    if G.opt.get("pubwait"): e("s_waitcnt vmcnt(0)")
    e(f"""{Lw}:
    s_xor_b32 s{sRs}, s{sRs}, 0x40000
    s_xor_b32 s{sPs}, s{sPs}, 0x40000
    s_add_u32 s{sI}, s{sI}, 1
    s_barrier""")
    stamp(8)
    L = a.lab("L_g0"); Lt = a.lab("L_g0t"); G0 = MEM + 16
    for r in range(AV, 128): e(f"v_mov_b32 v{r}, 0")
    e(f"{L}:")
    for i in range(2): e(f"buffer_load_dwordx4 {vr(G0+4*i,4)}, v{vL16}, {WS}, s{sMr} offen offset:{i*1024} sc1")
    e(f"""s_waitcnt vmcnt(1)
    v_max3_u32 v{MEM}, v{G0}, v{G0+1}, v{G0+2}
    s_waitcnt vmcnt(0)
    v_max3_u32 v{MEM+1}, v{G0+3}, v{G0+4}, v{G0+5}
    v_max3_u32 v{MEM}, v{MEM}, v{G0+6}, v{G0+7}
    v_max_u32 v{MEM}, v{MEM}, v{MEM+1}
    v_cmp_eq_u32 vcc, -1, v{MEM}
    s_cbranch_vccnz {Lt}""")
    def slow(L=L, Lt=Lt): e(f"{Lt}:"); G.timeout(3); e(f"s_branch {L}")
    cold.append(slow)
    stamp(9)
    for i in range(2): e(f"ds_write_b128 v{vST}, {vr(G0+4*i,4)} offset:{MEMF + i*1024}")
    e(f"s_xor_b32 s{sMr}, s{sMr}, 0x2000\ns_waitcnt lgkmcnt(0)")
    stamp(10)
    stamp(11, True); G.ts_flush(sI, vTS, store=False)
    e(f"s_barrier\ns_branch L_ch_loop_{m}")
    for f in cold: f()
    e(f"L_ch_last_{m}:\ns_waitcnt vmcnt(0)\n{KMFLAG}\ns_endpgm")
    if m == "L": G.far_fallback("L_fb_chain")
```

```python
from asmlib import *
from gen import *
from red import *

def emit(G, m):
    e = G.e; a = G.a; lg = a.lg; F = Fill(a)
    R = Red(G, m, RL=32, RD=64, XR=28, T=68); T = R.T
    LS = R.LS
    sNI, sFI, sLG, sW8 = 77, 78, 79, 80
    vA, vFA, vFv, vH = 20, 24, 25, 26
    NR, AG, HT, PK = 32, 48, 80, 120
    HF, ACC = 48, (88, 48)
    W2 = 128; HB = 32768
    e(f"s_sub_u32 s{sL}, s{sGRP}, 5\ns_lshr_b32 s{sL}, s{sL}, 1")
    R.setup()
    G.srd(S_A, P_W1, 512*1792*2); G.srd(S_C, P_W3, 512*1792*2); G.srd(S_D, P_W2, 512*1792*2)
    e(f"s_cmp_ge_u32 s{sCC}, 14\ns_cbranch_scc1 L_ffn_now_{m}")
    e(f"""
    s_lshl_b32 s{sT0}, s{sCC}, 8
    s_lshl_b32 s{sT1}, s{sW}, 6
    s_add_u32 s{sT0}, s{sT0}, s{sT1}
    v_mul_u32_u24 v20, 28672, v{vG}
    v_lshl_add_u32 v20, v{vRHO}, 2, v20
    v_add_u32 v20, s{sT0}, v20""")
    for i in range(1, 4): e(f"v_add_u32 v{20+i}, {7168*i}, v20")
    A8 = [(20 + (i >> 1), 3584 * (i & 1)) for i in range(8)]
    G.wstream([((S_A, S_C)[u], A8, f"s_mov_b32 s{sT5}, {k*114688}", G.sink_a(u*128 + 8*k), G.sink_a(u*128 + 8*k + 4))
               for k in range(16) for u in range(2)], 32, 7)
    e(f"""
    s_lshl_b32 s{sT0}, s{sCC}, 17
    s_lshl_b32 s{sT1}, s{sW}, 8
    s_add_u32 s{sT0}, s{sT0}, s{sT1}
    v_lshlrev_b32 v20, 4, v{vRHO}
    v_lshl_add_u32 v20, v{vG}, 13, v20
    v_add_u32 v20, s{sT0}, v20
    v_add_u32 v21, 4096, v20""")
    wide_blocks(G, [(S_D, [(20 + (i >> 2), (i & 3) * 1024) for i in range(8)], f"s_mov_b32 s{sT5}, {kf*32768}", W2 + kf*32, "v") for kf in range(4)], 32, 3)
    e(f"L_ffn_now_{m}:")
    if m == "L":
        G.census_issue(32); G.census_check(32, "L_fb_ffn")
    R.ring_init()
    G.srd(S_B, P_OUT, 2*MB)
    for kl in range(4):
        e(f"v_add_u32 v{T}, {4*kl}, v{vG}\nv_xor_b32 v{T}, v{T}, v{vRHO}\nv_lshlrev_b32 v{T}, 4, v{T}\nv_lshl_add_u32 v{vA+kl}, v{vRHO}, 11, v{T}")
    e(f"""
    s_lshl_b32 s{sW8}, s{sW}, 13
    s_lshl_b32 s{sT0}, s{sL}, 22
    s_add_u32 s{sXI}, s{sT0}, {XB}
    s_add_u32 s{sT0}, s{sT0}, s{sW8}
    s_lshl_b32 s{sT1}, s{sSUB}, 15
    s_add_u32 s{sT0}, s{sT0}, s{sT1}
    s_add_u32 s{sNI}, s{sT0}, {NB + 2*MB}
    s_cmp_eq_u32 s{sL}, 0
    s_cselect_b32 s{sXO}, {XB + 2*MB}, 0
    s_mov_b32 s{sNO}, {NB + 4*MB}
    s_lshl_b32 s{sT0}, s{sRANK}, 5
    s_lshl_b32 s{sT1}, s{sW}, 2
    s_add_u32 s{sT0}, s{sT0}, s{sT1}
    s_add_u32 s{sFO}, s{sT0}, {FN + 32*KB}
    s_lshl_b32 s{sT1}, s{sW}, 7
    s_lshl_b32 s{sT2}, s{sSUB}, 9
    s_add_u32 s{sT1}, s{sT1}, s{sT2}
    s_cmp_ge_u32 s{sCC}, 14
    s_cselect_b32 s{sT1}, s{sT0}, s{sT1}
    s_cselect_b32 s{sT3}, 4, 2
    s_lshl_b32 s{sT2}, s{sL}, 16
    s_add_u32 s{sT2}, s{sT2}, {FN}
    s_add_u32 s{sFI}, s{sT2}, s{sT1}
    s_mov_b32 s{sLG}, 0xbfb8aa3b
    v_lshlrev_b32 v{vFA}, s{sT3}, v{vLANE}
    s_lshl_b32 s{sT0}, s{sW}, 10
    s_add_u32 s{sT0}, s{sT0}, {HB}
    v_add_u32 v{vH}, s{sT0}, v{vL16}""")
    def spin(mask):
        L = a.lab("L_sp"); Lo = a.lab("L_spo")
        e(f"s_mov_b64 exec, {mask}\nbuffer_load_dword v{vFv}, v{vFA}, {WS}, s{sFI} offen sc1\ns_waitcnt vmcnt(0)")
        R.flush_pend()
        e(f"{L}:\nv_cmp_eq_u32 vcc, 0, v{vFv}\ns_cbranch_vccz {Lo}")
        G.timeout()
        e(f"buffer_load_dword v{vFv}, v{vFA}, {WS}, s{sFI} offen sc1\ns_waitcnt vmcnt(0)\ns_branch {L}\n{Lo}:\ns_mov_b64 exec, -1\ns_add_u32 s{sFI}, s{sFI}, 1024")
    e(f"L_ffn_loop_{m}:\ns_cmp_ge_u32 s{sCC}, 14\ns_cbranch_scc1 L_ffn_idle_{m}")
    G.stamp(0)
    spin("0xffffffff")
    G.stamp(1); G.stamp(10, True)
    for t in range(2):
        for h in range(2):
            e(f"s_add_u32 m0, s{sW8}, {h*4096}\ns_add_u32 s{sT1}, s{sNI}, {h*4096}")
            for r in range(2): e(f"buffer_load_dwordx4 v{vL16}, {WS}, s{sT1} offen offset:{r*2048 + t*1024} sc1 lds")
    e(f"s_add_u32 s{sNI}, s{sNI}, 65536\ns_waitcnt vmcnt(4)\ns_barrier")
    G.stamp(2)
    lg.set([])
    def rd(n):
        t, k = n >> 4, n & 15
        e(f"ds_read_b128 {vr(NR+4*(n%4),4)}, v{vA+(k&3)} offset:{t*1024 + (k>>2)*256}"); lg.issue(("n", n))
    def act(t):
        g_, u_ = AG + 16*t, AG + 16*t + 8; h = HT
        for r in range(8): F.add(f"v_mul_f32 v{h+r}, s{sLG}, v{g_+r}")
        for r in range(8): F.add(f"v_exp_f32 v{h+r}, v{h+r}\nv_mul_f32 v{g_+r}, v{g_+r}, v{u_+r}")
        for r in range(8): F.add(f"v_add_f32 v{h+r}, 1.0, v{h+r}")
        for r in range(8): F.add(f"v_rcp_f32 v{h+r}, v{h+r}")
        for r in range(8): F.add(f"v_mul_f32 v{h+r}, v{h+r}, v{g_+r}")
        for r in range(4): F.add(f"v_cvt_pk_bf16_f32 v{u_+r}, v{h+r}, v{h+4+r}")
        def wr(): e(f"ds_write_b128 v{vH}, {vr(u_,4)} offset:{t*4096}"); lg.issue(("hw", t))
        wr.cost = (3, 0); wr.text = 'ds_write'; F.add(wr)
    rd(0); rd(1); rd(2)
    for n in range(32):
        t, k = n >> 4, n & 15
        if n == 13: e(f"s_waitcnt vmcnt(0)\ns_barrier\n{R.x_load(S_WS)}")
        if n + 3 < 32: rd(n + 3)
        if n == 18: act(0)
        lg.wait(("n", n))
        for u in range(2):
            for j in range(2):
                acc = vr(AG + 16*t + 8*u + 4*j, 4)
                F.mf(f"{MF} {acc}, {ar(u*128 + 8*k + 4*j, 4)}, {vr(NR+4*(n%4),4)}, {'0' if k == 0 else acc}", 3 if u + j < 2 else 1)
    F.flush()
    G.stamp(3)
    for t in range(2):
        lg.wait(("hw", t)); e("s_barrier")
        if t == 1: G.stamp(4)
        for kf in range(4):
            e(f"ds_read_b128 {vr(NR+4*kf,4)}, v{vL16} offset:{HB + t*4096 + kf*1024}"); lg.issue(("h", t, kf))
        if t == 0: act(1); F.drain(12, 12)
        else:
            for r in range(4): F.add(R.out_pack(ACC[0], r, 0, PK + 4*(r & 1)))
        for kf in range(4):
            lg.wait(("h", t, kf))
            for j in range(8):
                D = vr(ACC[t] + 4*j, 4)
                F.mf(f"{MF} {D}, {vr(NR+4*kf,4)}, {vr(W2 + kf*32 + 4*j, 4)}, {'0' if kf == 0 else D}", 3, 2 if t == 0 else 1)
        F.flush()
    for r in range(4): e(R.out_pack(ACC[1], r, 1, PK + 4*(r & 1)))
    e(f"s_branch L_ffn_red_{m}")
    e(f"L_ffn_idle_{m}:")
    spin(3)
    e(f"s_barrier\n{R.x_load(S_WS)}")
    for p in range(4): e(f"v_mov_b32 v{PK+p}, s{sTAG}")
    for n in range(8):
        e(f"s_add_u32 s{sT0}, s{sSLOT}, {n*16384}\nbuffer_store_dwordx4 {vr(PK,4)}, v{vPs}, {WS}, s{sT0} offen{LS}")
    e(f"L_ffn_red_{m}:")
    G.stamp(5)
    R.reduce_rows(f"L_ffn_fin_{m}")
    e(f"s_branch L_ffn_adv_{m}\nL_ffn_fin_{m}:")
    e(f"buffer_store_dwordx2 v[{R.XR}:{R.XR+1}], v{vXo}, s[{S_B}:{S_B+3}], s{sXO} offen")
    e(f"L_ffn_adv_{m}:")
    G.stamp(8); G.stamp(11, True)
    R.advance()
    G.stamp(9)
    if G.ts: e(f"s_sub_u32 s{sT5}, s{sS}, 1"); G.ts_flush(sT5, 30)
    e(f"s_cmp_lt_u32 s{sS}, 64\ns_cbranch_scc1 L_ffn_loop_{m}\ns_waitcnt vmcnt(0)")
    R.flush_pend()
    e("s_endpgm")
    if m == "L": G.far_fallback("L_fb_ffn")
```

```python
from asmlib import *
from gen import *
MF = "v_mfma_f32_16x16x32_bf16"

def emit(G, m):
    e = G.e; a = G.a; lg = a.lg
    P = G.P
    WS = f"s[{S_WS}:{S_WS+3}]"
    sWH, sU, sN1, sN2, sO1, sO2, sF1, sF2, sFN, sW2, sBB, sQD, sISS = 37, 38, 39, 28, 29, 30, 31, 76, 77, 78, 79, 81, 86
    sP1, sP2, sE2, sE1, sQ1 = 82, 83, 84, 88, 89
    vA, vB = 4, 100
    vFO, vONE, vFL, vFA, vO, vD = 24, 25, 26, 27, 28, 30
    vW = 12
    R0, ACC1, ACC2, PK1, PK2 = 32, 64, 112, 88, 136
    DUMMY = 137*MB
    G.srd(S_A, P_WQ, 4*MB)
    e(f"""
    s_sub_u32 s{sWH}, s{sGRP}, 1                 ; 1 = K, 2 = V
    s_cmp_eq_u32 s{sWH}, 1
    s_cselect_b32 s{S_B}, s{P_WK}, s{P_WV}
    s_cselect_b32 s{S_B+1}, s{P_WK+1}, s{P_WV+1}
    s_mov_b32 s{S_B+2}, {4*MB}
    s_mov_b32 s{S_B+3}, 0x20000
    v_and_b32 v20, 15, v{vLANE}              ; rho
    v_lshrrev_b32 v21, 4, v{vLANE}           ; g
    s_lshl_b32 s{sT0}, s{sRANK}, 8
    v_lshlrev_b32 v22, 2, v20
    v_lshl_add_u32 v22, v21, 16, v22
    v_add_u32 v{vW}, s{sT0}, v22
    s_lshl_b32 s{sT2}, s{sW}, 6
    s_lshr_b32 s{sT3}, s{sW}, 1
    s_lshl_b32 s{sT1}, s{sWH}, 1
    s_add_u32 s{sT3}, s{sT3}, s{sT1}
    s_sub_u32 s{sT3}, s{sT3}, 2
    s_lshl_b32 s{sT4}, s{sT3}, 6""")
    for i in range(1, 8): e(f"v_add_u32 v{vW+i}, {8192*i}, v{vW}")
    blocks = []
    for k in range(16):
        blocks.append((S_B, [(vW + i, 0) for i in range(8)], f"s_add_u32 s{sT5}, s{sT2}, {k*262144}", G.sink_a(k * 8), G.sink_a(k * 8 + 4)))
    for k in range(16):
        blocks.append((S_A, [(vW + i, 0) for i in range(8)], f"s_add_u32 s{sT5}, s{sT4}, {k*262144}", G.sink_a(128 + k * 8), G.sink_a(128 + k * 8 + 4)))
    G.wstream(blocks, 32, 7)
    e(f"""s_lshl_b32 s{sT0}, s{sT3}, 11
    s_lshl_b32 s{sT1}, s{sW}, 11
    s_sub_u32 s{sT0}, s{sT0}, s{sT1}
    s_lshl_b32 s{sT1}, s{sWH}, 25
    s_sub_u32 s{sQD}, s{sT0}, s{sT1}""")
    if m == "L":
        G.census_issue(32); G.census_check(32, f"L_fb_qkv")
    e(f"s_and_b32 s{sT2}, s{sW}, 1\ns_lshl_b32 s{sT3}, s{sT2}, 10\nv_add_u32 v{vO}, s{sT3}, v{vL16}\nv_xor_b32 v{vO+1}, 1024, v{vO}\ns_lshl_b32 s{sT2}, s{sT2}, 8")
    for kl in range(4):
        e(f"""v_add_u32 v23, {4*kl}, v21
        v_xor_b32 v23, v23, v20
        v_lshlrev_b32 v23, 4, v23
        v_lshl_add_u32 v23, v20, 9, v23
        v_add_u32 v{vA+kl}, s{sT2}, v23
        v_xor_b32 v{vA+4+kl}, 256, v{vA+kl}
        v_add_u32 v{vB+kl}, 65536, v{vA+kl}
        v_add_u32 v{vB+4+kl}, 65536, v{vA+4+kl}""")
    e(f"""
    v_mov_b32 v{vONE}, 1
    v_mov_b32 v{vFO}, 0
    v_and_b32 v23, 31, v{vLANE}
    v_lshlrev_b32 v{vFA}, 2, v23
    v_lshlrev_b32 v23, 4, v20
    v_lshl_add_u32 v{vD}, v21, 10, v23
    v_add_u32 v{vD+1}, 3072, v{vD}
    s_lshl_b32 s{sT0}, s{sW}, 13
    s_add_u32 s{sN1}, s{sT0}, {NB}
    s_add_u32 s{sN2}, s{sT0}, {NB + 4*MB}
    s_lshl_b32 s{sT0}, s{sWH}, 25
    s_lshl_b32 s{sT1}, s{sRANK}, 13
    s_add_u32 s{sT0}, s{sT0}, s{sT1}
    s_lshl_b32 s{sW2}, s{sW}, 11
    s_add_u32 s{sT0}, s{sT0}, s{sW2}
    s_add_u32 s{sO1}, s{sT0}, {QKV}
    s_add_u32 s{sO2}, s{sT0}, {QKV + 16*MB}
    s_add_u32 s{sE2}, s{sT0}, {DUMMY}
    s_lshl_b32 s{sT0}, s{sRANK}, 6
    s_lshl_b32 s{sT1}, s{sWH}, 4
    s_add_u32 s{sT0}, s{sT0}, s{sT1}
    s_lshl_b32 s{sT1}, s{sW}, 2
    s_add_u32 s{sT0}, s{sT0}, s{sT1}
    s_add_u32 s{sF1}, s{sT0}, {FQ}
    s_add_u32 s{sF2}, s{sT0}, {FQ + 128*KB}
    s_add_u32 s{sP1}, s{sT0}, {FQ + 256*KB}
    s_mov_b32 s{sP2}, s{sP1}
    s_lshl_b32 s{sT0}, s{sW}, 7
    s_add_u32 s{sFN}, s{sT0}, {FN + 32*KB}
    s_add_u32 s{sBB}, s{sW2}, 65536
    s_mov_b32 s{sU}, 0""")
    F = Fill(a)
    flag = lambda s_: f"buffer_store_dword v{vONE}, v{vFO}, {WS}, s{s_} offen sc1"
    FLD = f"buffer_load_dword v{vFL}, v{vFA}, {WS}, s{sFN} offen sc1"
    def dma(sN, sL):
        o = []
        for q in range(4):
            o.append(f"s_add_u32 m0, s{sL}, {q*8192}\ns_add_u32 s{sT1}, s{sN}, {q*256}")
            o += [f"buffer_load_dwordx4 v{vD+x}, {WS}, s{sT1} offen offset:{x*1024} sc1 lds" for x in range(2)]
        return o
    dma1 = lambda: dma(sN1, sBB) + [f"s_add_u32 s{sN1}, s{sN1}, 32768\ns_xor_b32 s{sBB}, s{sBB}, 32768"]
    dma2 = lambda: dma(sN2, sW2)
    adn2 = f"s_add_u32 s{sN2}, s{sN2}, 32768\ns_add_u32 s{sFN}, s{sFN}, 512"
    def rd(vX, k, n):
        for t in range(2):
            e(f"ds_read_b128 {vr(R0+(n%4)*8+4*t,4)}, v{vX+4*t+(k&3)} offset:{(k>>2)*8192}"); lg.issue(("n", n, t))
    def cvts(isv, ACC):
        PK = PK1 if ACC == ACC1 else PK2
        L = [f"v_cvt_pk_bf16_f32 v{PK+8+r}, v{ACC+16+r}, v{ACC+20+r}" for r in range(4)]
        if not isv: return L + [f"v_cvt_pk_bf16_f32 v{PK+4*x+r}, v{ACC+8*x+r}, v{ACC+8*x+4+r}" for x in range(2) for r in range(4)]
        L += [f"v_cvt_pk_bf16_f32 v{PK+4*x+r}, v{ACC+4*x+r}, v{ACC+8+4*x+r}" for x in range(2) for r in range(4)]
        return L + [f"v_alignbit_b32 v{PK+r}, v{PK+r}, v{PK+r}, s{sROT}" for r in range(8)]
    def stores(isv, sO, PK):
        L = [f"s_add_u32 s{sT0}, s{sO}, s{sQD}", f"buffer_store_dwordx4 {vr(PK+8,4)}, v{vO}, {WS}, s{sT0} offen sc1"]
        for x in range(2):
            L.append(f"buffer_store_dwordx4 {vr(PK+4*x,4)}, v{vL16}, {WS}, s{sO} offen offset:{x*1024} sc1" if isv else
                     f"buffer_store_dwordx4 {vr(PK+4*x,4)}, v{vO+x}, {WS}, s{sO} offen sc1")
        return L
    sROT = 85
    e(f"s_and_b32 s{sROT}, s{sW}, 1\ns_lshl_b32 s{sROT}, s{sROT}, 4")
    def compute(isv, vX, ACC, n0, hooks, nxt=None, pre=True, keep=False):
        if pre: rd(vX, 0, n0); rd(vX, 1, n0 + 1)
        for k in range(16):
            if k in hooks: hooks[k]()
            if k + 2 < 16: rd(vX, k + 2, n0 + k + 2)
            elif nxt is not None: rd(nxt, k - 14, n0 + k + 2)
            n = n0 + k
            for t in range(2):
                lg.wait(("n", n, t))
                nf = vr(R0 + (n % 4) * 8 + 4 * t, 4)
                for j in range(2):
                    acc = vr(ACC + (t * 2 + j) * 4, 4); wf = ar(k * 8 + j * 4, 4)
                    c = "0" if k == 0 else acc
                    sl = 0 if (t, j) == (1, 1) else 3
                    if isv: F.mf(f"{MF} {acc}, {nf}, {wf}, {c}", sl, 2)
                    else:   F.mf(f"{MF} {acc}, {wf}, {nf}, {c}", sl, 2)
                if t == 0:
                    for j in range(2):
                        acc = vr(ACC + 16 + j * 4, 4)
                        F.mf(f"{MF} {acc}, {ar(128 + k*8 + j*4, 4)}, {nf}, {'0' if k == 0 else acc}", 3 - j, 2)
        if not keep: F.flush()
    tog = [f"v_xor_b32 v{vB+i}, 32768, v{vB+i}" for i in range(8)]
    adv1 = f"s_mov_b32 s{sP1}, s{sF1}\ns_add_u32 s{sO1}, s{sO1}, 262144\ns_add_u32 s{sF1}, s{sF1}, 2048"
    e(f"s_cmp_eq_u32 s{sWH}, 2\ns_cbranch_scc1 L_qkv_v_{m}")
    for isv in (False, True):
        T = f"{'v' if isv else 'k'}_{m}"
        if isv: e(f"L_qkv_v_{m}:")
        e("\n".join(dma1()))
        e(f"L_qkv_p1_{T}:\ns_waitcnt vmcnt(0)\n{flag(sP1)}\ns_barrier")
        G.stamp(0)
        lg.set([]); F.mem(*dma1())
        compute(isv, vB, ACC1, 0, {})
        e("\n".join(cvts(isv, ACC1) + stores(isv, sO1, PK1) + tog) + f"\n{adv1}\ns_add_u32 s{sU}, s{sU}, 1")
        G.stamp(4); G.stamp(9, True); G.ts_flush(sU, 250)
        e(f"s_cmp_lt_u32 s{sU}, {P}\ns_cbranch_scc1 L_qkv_p1_{T}\n{FLD}\ns_waitcnt vmcnt(0)\n{flag(sP1)}\ns_barrier")
        e(f"s_mov_b32 s{sE1}, s{sE2}\ns_mov_b32 s{sQ1}, s{sP2}")
        lg.set([]); rd(vB, 0, 0); rd(vB, 1, 1)
        Lsp, Lgo = a.lab("L_spin"), a.lab("L_go")
        e(f"L_qkv_loop_{T}:")
        G.stamp(0)
        d2 = dma2()
        def h0():
            e(f"s_waitcnt vmcnt(0)\nv_cmp_eq_u32 s[{sISS}:{sISS+1}], 0, v{vFL}")
            F.add(*cvts(isv, ACC2)); F.mem(*d2[:6])
        def h2a(): assert not F.q; e("s_barrier"); F.mem(*stores(isv, sE2, PK2), *stores(isv, sE1, PK1), *d2[6:], *dma1())
        def h14():
            left = sum(t.startswith("buffer_") for t, _ in F.m); assert left <= 8
            e(f"s_cmp_lg_u32 s{sISS}, 0\ns_cbranch_scc1 {Lsp}\n{Lgo}:"); G.stamp(1); G.stamp(10, True)
            e(f"s_waitcnt vmcnt({18 - left})\ns_barrier\n{adn2}")
        compute(isv, vB, ACC1, 0, {0: h0, 3: h2a, 14: h14}, nxt=vA, pre=False, keep=True)
        G.stamp(2)
        def h2(): F.flush(); e(f"s_waitcnt vmcnt(12)\n{flag(sP2)}\n{flag(sQ1)}"); F.add(*cvts(isv, ACC1), *tog, f"s_mov_b32 s{sE1}, s{sO1}\ns_mov_b32 s{sQ1}, s{sF1}", adv1)
        def h6(): e("s_waitcnt vmcnt(10)\ns_barrier")
        def h9(): e(FLD)
        def h12(): e("s_waitcnt vmcnt(3)\ns_barrier")
        compute(isv, vA, ACC2, 16, {2: h2, 6: h6, G.opt.get("fk", 9): h9, 12: h12}, nxt=vB, pre=False)
        G.stamp(3); G.stamp(11, True)
        adv2 = f"""s_mov_b32 s{sE2}, s{sO2}
        s_mov_b32 s{sP2}, s{sF2}
        s_add_u32 s{sO2}, s{sO2}, 262144
        s_add_u32 s{sF2}, s{sF2}, 2048
        s_add_u32 s{sU}, s{sU}, 1"""
        e(adv2)
        G.stamp(4); G.stamp(9, True); G.ts_flush(sU, 250)
        e(f"s_cmp_lt_u32 s{sU}, 64\ns_cbranch_scc1 L_qkv_loop_{T}")
        e("\n".join(stores(isv, sE1, PK1)) + f"\ns_mov_b32 s{sP1}, s{sQ1}")
        e(f"L_qkv_p3_{T}:")
        e("\n".join(cvts(isv, ACC2) + stores(isv, sE2, PK2)))
        e(f"{FLD}\ns_waitcnt vmcnt(0) lgkmcnt(0)\n{flag(sP2)}\n{flag(sP1)}\ns_cmp_eq_u32 s{sU}, {64 + P}\ns_cbranch_scc1 {G.endlab}")
        L3, L3o = a.lab("L_p3"), a.lab("L_p3o")
        e(f"s_barrier\n{L3}:\nv_cmp_eq_u32 vcc, 0, v{vFL}\ns_cbranch_vccz {L3o}"); G.timeout()
        e(f"{FLD}\ns_waitcnt vmcnt(0)\ns_branch {L3}\n{L3o}:")
        G.stamp(0); G.stamp(1); G.stamp(10, True)
        e("\n".join(dma2()) + f"\n{adn2}\ns_waitcnt vmcnt(6)\ns_barrier")
        G.stamp(2)
        lg.set([])
        compute(isv, vA, ACC2, 0, {k: (lambda n=n: e(f"s_waitcnt vmcnt({n})\ns_barrier")) for k, n in ((2, 4), (6, 2), (10, 0))})
        G.stamp(3); G.stamp(11, True)
        e(adv2)
        G.stamp(4); G.stamp(9, True); G.ts_flush(sU, 250)
        e(f"s_branch L_qkv_p3_{T}")
        Ls2 = a.lab("L_spin2")
        e(f"{Lsp}:\n{FLD}\ns_waitcnt vmcnt(0)\n{flag(sP2)}\n{flag(sQ1)}\n{Ls2}:\nv_cmp_eq_u32 vcc, 0, v{vFL}\ns_cbranch_vccz {Ls2}o"); G.timeout(0)
        e(f"{FLD}\ns_waitcnt vmcnt(0)\ns_branch {Ls2}\n{Ls2}o:")
        if G.ts: e("s_add_u32 s73, s73, 1")
        e(f"s_mov_b32 s{sT2}, m0\ns_mov_b32 s{sT3}, s{sT1}\n" + "\n".join(dma2()) + f"\ns_mov_b32 m0, s{sT2}\ns_mov_b32 s{sT1}, s{sT3}\ns_waitcnt vmcnt(0)\ns_branch {Lgo}")
    if m == "L": G.far_fallback("L_fb_qkv")
```

```python
import sys
from asmlib import *

KNAME = "interleave_layers__memory_aug_recurrent_mem_tr__glu_gated_swiglu__prompt_kernel"
KB = 1024; MB = 1 << 20
FN    = 16 * KB
FQ    = 128 * KB
MEMR  = 512 * KB
CPART = 1 * MB
APART = 2 * MB
NB    = 10 * MB
XB    = 18 * MB
KMVM  = 24 * MB
QKV   = 40 * MB
TSB   = 140 * MB
WS_BYTES = 268435456

S_WS, S_DBG, S_A, S_B, S_C, S_D = 4, 8, 12, 16, 20, 24
sW, sXCC, sRANK, sGRP, sTO = 32, 33, 34, 35, 36
P_X, P_MEM0, P_WQ, P_WK, P_WV, P_WO = 48, 50, 52, 54, 56, 58
P_W1, P_W3, P_W2, P_OUT, P_DBG, P_WSP = 64, 66, 68, 70, 72, 74
sT0, sT1, sT2, sT3, sT4, sT5 = 40, 41, 42, 43, 44, 45
sPLO, sPHI = 46, 47
vTID, vLANE, vL16 = 0, 1, 2

class Gen:
    def __init__(self, LAG=10, roles="cqaf", force_fallback=False, ts='', emit_global=True, dbgdump=False, opt=None):
        self.a = Asm(); self.LAG = LAG; self.roles = roles; self.ff = force_fallback; self.ts = ts
        self.emit_global = emit_global; self.endlab = 'L_end0'; self.vxk = 5; self.P = LAG; self.opt = opt or {}; self.dbgdump = dbgdump
    def e(self, s): self.a.e(s)
    def srd(self, d, p, nbytes):
        self.e(f"s_mov_b32 s{d}, s{p}\ns_mov_b32 s{d+1}, s{p+1}\ns_mov_b32 s{d+2}, {nbytes}\ns_mov_b32 s{d+3}, 0x20000")
    def timeout(self, cnt=None):
        if self.ts and cnt is not None: self.e(f"s_add_u32 s{72+cnt}, s{72+cnt}, 1")
        self.e(f"s_sub_u32 s{sTO}, s{sTO}, 1\ns_cbranch_scc1 {self.endlab}")
    def row_sum(self, v, op="v_add_f32"):
        for r in (8, 4, 2, 1):
            self.e(f"{op}_dpp v{v}, v{v}, v{v} row_ror:{r} row_mask:0xf bank_mask:0xf")
    def x16(self, v, t, op="v_add_f32"):
        self.e(f"v_mov_b32 v{t}, v{v}\nv_permlane16_swap_b32 v{v}, v{t}\n{op} v{v}, v{v}, v{t}")
    def x32(self, v, t, op="v_add_f32"):
        self.e(f"v_mov_b32 v{t}, v{v}\nv_permlane32_swap_b32 v{v}, v{t}\n{op} v{v}, v{v}, v{t}")

    def prologue(self):
        e = self.e
        e(f"""
        s_cmp_ge_u32 s2, 256
        s_cbranch_scc1 L_end0
        s_load_dwordx16 s[48:63], s[0:1], 0
        s_load_dwordx8 s[64:71], s[0:1], 64
        s_load_dwordx4 s[72:75], s[0:1], 96
        s_getreg_b32 s{sXCC}, hwreg(HW_REG_XCC_ID, 0, 4)
        v_lshrrev_b32 v3, 6, v0
        v_and_b32 v{vLANE}, 63, v0
        v_readfirstlane_b32 s{sW}, v3
        v_lshlrev_b32 v{vL16}, 4, v{vLANE}
        s_and_b32 s{sXCC}, s{sXCC}, 7
        s_mov_b32 s{sTO}, 0x100000
        s_mov_b32 s{sPLO}, 0x05040100
        s_mov_b32 s{sPHI}, 0x07060302
        s_waitcnt lgkmcnt(0)""")
        self.srd(S_WS, P_WSP, WS_BYTES); self.srd(S_DBG, P_DBG, 256); self.srd(S_A, P_X, 2 * MB)
        if self.ts:
            e("s_memrealtime s[98:99]")
        e(f"""
        s_lshl_b32 s{sT0}, s2, 2
        s_add_u32 s{sT0}, s{sT0}, s{sW}
        s_lshl_b32 s{sT1}, s{sT0}, 10
        s_add_u32 s{sT2}, s{sT1}, {1*MB}         ; row W+1024
        s_cmp_lg_u32 s{sW}, 0
        s_cbranch_scc1 L_noatom
        v_mov_b32 v4, 1
        s_lshl_b32 s{sT3}, s{sXCC}, 5
        v_mov_b32 v5, s{sT3}
        s_mov_b64 exec, 1
        buffer_atomic_add v4, v5, s[{S_DBG}:{S_DBG+3}], 0 offen sc0
        s_mov_b64 exec, -1
        L_noatom:
        buffer_load_dwordx4 v[8:11], v{vL16}, s[{S_A}:{S_A+3}], s{sT1} offen
        buffer_load_dwordx4 v[12:15], v{vL16}, s[{S_A}:{S_A+3}], s{sT2} offen
        v_mov_b32 v6, 0
        v_mov_b32 v7, 0
        v_lshlrev_b32 v5, 3, v{vLANE}
        s_lshl_b32 s{sT3}, s{sT0}, 9
        buffer_store_dwordx2 v[6:7], v5, s[{S_WS}:{S_WS+3}], s{sT3} offen sc1
        s_lshr_b32 s{sT3}, s{sT0}, 1
        s_and_b32 s{sT3}, s{sT3}, 15
        v_xor_b32 v3, s{sT3}, v{vLANE}
        v_lshlrev_b32 v3, 4, v3
        s_add_u32 s{sT1}, s{sT1}, {NB}
        s_add_u32 s{sT2}, s{sT2}, {NB}
        s_waitcnt vmcnt(2)
        s_cmp_lg_u32 s{sW}, 0
        s_cbranch_scc1 L_norank
        v_mov_b32 v5, 0
        s_mov_b64 exec, 1
        ds_write_b32 v5, v4
        s_mov_b64 exec, -1
        L_norank:""")
        for k, (src, so) in enumerate(((8, sT1), (12, sT2))):
            if k == 1: e("s_waitcnt vmcnt(2)")
            d = 16
            for i in range(4):
                e(f"v_lshlrev_b32 v{d+2*i}, 16, v{src+i}\nv_and_b32 v{d+2*i+1}, 0xffff0000, v{src+i}")
            e(f"v_add_f32 v24, v{d}, v{d+1}")
            for i in range(2, 8): e(f"v_add_f32 v24, v24, v{d+i}")
            self.row_sum(24); self.x16(24, 25); self.x32(24, 25)
            e("v_mul_f32 v24, 0x3b000000, v24")
            for i in range(8): e(f"v_sub_f32 v{d+i}, v{d+i}, v24")
            e(f"v_mul_f32 v26, v{d}, v{d}")
            for i in range(1, 8): e(f"v_fmac_f32 v26, v{d+i}, v{d+i}")
            self.row_sum(26); self.x16(26, 25); self.x32(26, 25)
            e("v_mov_b32 v25, 0x3727c5ac\nv_fmac_f32 v25, 0x3b000000, v26\nv_rsq_f32 v25, v25")
            for i in range(8): e(f"v_mul_f32 v{d+i}, v{d+i}, v25")
            o = 28 + 4 * k
            for i in range(4): e(f"v_cvt_pk_bf16_f32 v{o+i}, v{d+2*i}, v{d+2*i+1}")
            e(f"buffer_store_dwordx4 v[{o}:{o+3}], v3, s[{S_WS}:{S_WS+3}], s{so} offen sc1")
        e(f"""
        s_waitcnt lgkmcnt(0)
        s_barrier
        v_mov_b32 v5, 0
        ds_read_b32 v4, v5
        s_waitcnt lgkmcnt(0)
        v_readfirstlane_b32 s{sRANK}, v4
        s_mov_b32 s{sGRP}, s{sXCC}
        s_waitcnt vmcnt(0)
        s_barrier
        s_cmp_lg_u32 s{sW}, 0
        s_cbranch_scc1 L_nodone
        v_mov_b32 v4, 1
        s_lshl_b32 s{sT3}, s{sXCC}, 5
        v_mov_b32 v5, s{sT3}
        s_mov_b64 exec, 1
        buffer_atomic_add v4, v5, s[{S_DBG}:{S_DBG+3}], 0 offen offset:4
        s_mov_b64 exec, -1
        L_nodone:
        s_cmp_ge_u32 s{sRANK}, 32
        s_cbranch_scc1 L_wait_fallback""")
        if self.ff: e("s_branch L_wait_fallback")
        self.dispatch("L")
        e("L_wait_fallback:")
        self.census_issue(4); self.census_check(4, None)
        e("L_fallback:")
        if self.emit_global:
            e(f"""s_waitcnt vmcnt(0) lgkmcnt(0)
            s_barrier
            s_lshr_b32 s{sGRP}, s2, 5
            s_and_b32 s{sRANK}, s2, 31""")
            self.dispatch("G")
        else:
            e("s_endpgm")
    def dispatch(self, m):
        e = self.e
        tab = self.opt.get("map", 2)
        T = {0: [(g, h) for g in range(8) for h in range(2)],
             1: [(0, 0), (0, 1), (1, 0), (1, 1), (2, 0), (4, 0), (2, 1), (5, 0), (3, 0), (4, 1), (3, 1), (5, 1), (6, 0), (7, 0), (6, 1), (7, 1)],
             2: [(0, 0), (0, 1), (1, 0), (1, 1), (2, 0), (4, 0), (2, 1), (6, 0), (3, 0), (4, 1), (3, 1), (6, 1), (5, 0), (7, 0), (5, 1), (7, 1)]}[tab]
        word = sum((g*2 + h) << (4*i) for i, (g, h) in enumerate(T))
        e(f"""s_lshl_b32 s{sT0}, s{sGRP}, 1
        s_lshr_b32 s{sT1}, s{sRANK}, 4
        s_add_u32 s{sT0}, s{sT0}, s{sT1}
        s_lshl_b32 s{sT0}, s{sT0}, 2
        s_mov_b32 s{sT2}, {word & 0xffffffff}
        s_mov_b32 s{sT3}, {word >> 32}
        s_lshr_b64 s[{sT2}:{sT3}], s[{sT2}:{sT3}], s{sT0}
        s_bfe_u32 s{sGRP}, s{sT2}, 0x30001
        s_and_b32 s{sT2}, s{sT2}, 1
        s_lshl_b32 s{sT2}, s{sT2}, 4
        s_and_b32 s{sRANK}, s{sRANK}, 15
        s_or_b32 s{sRANK}, s{sRANK}, s{sT2}""")
        e(f"s_cmp_le_u32 s{sGRP}, 1\ns_cbranch_scc1 L_go_chain_{m}")
        e(f"s_cmp_le_u32 s{sGRP}, 3\ns_cbranch_scc1 L_go_qkv_{m}")
        e(f"s_bitcmp1_b32 s{sGRP}, 0\ns_cbranch_scc1 L_go_ffn_{m}")
        for r in ("att", "chain", "qkv", "ffn"):
            if r != "att": e(f"L_go_{r}_{m}:")
            if r[0] in self.roles:
                e(f"s_getpc_b64 s[{sT0}:{sT0+1}]\nL_pc_{r}_{m}:\ns_add_u32 s{sT0}, s{sT0}, R_{r}_{m}-L_pc_{r}_{m}\ns_addc_u32 s{sT0+1}, s{sT0+1}, 0\ns_setpc_b64 s[{sT0}:{sT0+1}]")
            else:
                e("s_endpgm")
    def census_issue(self, v):
        self.e(f"""v_lshlrev_b32 v{v+2}, 5, v{vLANE}
        buffer_load_dwordx2 v[{v}:{v+1}], v{v+2}, s[{S_DBG}:{S_DBG+3}], 0 offen sc1""")
    def census_check(self, v, fail, waited=False):
        e = self.e; L = self.a.lab("L_cen"); Lok = self.a.lab("L_cenok")
        if not waited: e("s_waitcnt vmcnt(0)")
        e(f"{L}:\ns_mov_b32 s{sT0}, 0")
        for l in range(8):
            e(f"v_readlane_b32 s{sT1}, v{v+1}, {l}\ns_add_u32 s{sT0}, s{sT0}, s{sT1}")
        e(f"s_cmp_eq_u32 s{sT0}, 256\ns_cbranch_scc1 {Lok}")
        self.timeout()
        e(f"s_sleep 4\nbuffer_load_dwordx2 v[{v}:{v+1}], v{v+2}, s[{S_DBG}:{S_DBG+3}], 0 offen sc1\ns_waitcnt vmcnt(0)\ns_branch {L}\n{Lok}:")
        if fail:
            e(f"v_cmp_ne_u32 vcc, 32, v{v}\ns_and_b32 s{sT0}, vcc_lo, 0xff\ns_cbranch_scc1 {fail}")
    def ready_add(self, v):
        L = self.a.lab("L_ra")
        self.e(f"""s_cmp_lg_u32 s{sW}, 0
        s_cbranch_scc1 {L}
        v_mov_b32 v{v}, 1
        s_lshl_b32 s{sT0}, s{sGRP}, 5
        v_mov_b32 v{v+1}, s{sT0}
        s_mov_b64 exec, 1
        buffer_atomic_add v{v}, v{v+1}, s[{S_DBG}:{S_DBG+3}], 0 offen offset:8
        s_mov_b64 exec, -1
        {L}:""")
    def ready_wait(self, v):
        L = self.a.lab("L_rw"); Lo = self.a.lab("L_rwo")
        self.e(f"""s_lshl_b32 s{sT0}, s{sGRP}, 5
        v_mov_b32 v{v+1}, s{sT0}
        {L}:
        buffer_load_dword v{v}, v{v+1}, s[{S_DBG}:{S_DBG+3}], 0 offen offset:8 sc1
        s_waitcnt vmcnt(0)
        v_cmp_ne_u32 vcc, 32, v{v}
        s_cbranch_vccz {Lo}""")
        self.timeout()
        self.e(f"s_sleep 2\ns_branch {L}\n{Lo}:")
    def far_fallback(self, name):
        self.e(f"{name}:\ns_getpc_b64 s[{sT0}:{sT0+1}]\n{name}_pc:\ns_add_u32 s{sT0}, s{sT0}, L_fallback-{name}_pc\ns_addc_u32 s{sT0+1}, s{sT0+1}, -1\ns_setpc_b64 s[{sT0}:{sT0+1}]")

    def wstream(self, blocks, stage0, depth, hooks=None):
        e = self.e; hooks = hooks or {}
        n = len(blocks); T = stage0 + 8 * depth
        for b in range(n + depth - 1):
            if b in hooks: hooks[b]()
            if b < n:
                srd, addrs, so, _, _ = blocks[b]
                st = stage0 + 8 * (b % depth)
                e(so)
                for i, (va, imm) in enumerate(addrs):
                    e(f"buffer_load_dword v{st+i}, v{va}, s[{srd}:{srd+3}], s{sT5} offen" + (f" offset:{imm}" if imm else ""))
            c = b - (depth - 1)
            if c >= 0:
                later = min(n - 1, b) - c
                e(f"s_waitcnt vmcnt({8*later})")
                st = stage0 + 8 * (c % depth)
                for p in range(4):
                    e(f"v_perm_b32 v{T+p}, v{st+2*p+1}, v{st+2*p}, s{sPLO}")
                    e(f"v_perm_b32 v{T+4+p}, v{st+2*p+1}, v{st+2*p}, s{sPHI}")
                blocks[c][3](T); blocks[c][4](T + 4)
    def sink_a(self, base):
        return lambda T: [self.e(f"v_accvgpr_write_b32 a{base+p}, v{T+p}") for p in range(4)]
    def sink_v(self, base):
        return lambda T: [self.e(f"v_mov_b32 v{base+p}, v{T+p}") for p in range(4)]
    def sink_lds(self, va, off):
        return lambda T: self.e(f"ds_write_b128 v{va}, v[{T}:{T+3}] offset:{off}")

    def dump(self, base, n, slot, scond=None, val=0, cls="v"):
        if not self.dbgdump: return
        L = self.a.lab("L_dump")
        if scond is not None: self.e(f"s_cmp_lg_u32 s{scond}, {val}\ns_cbranch_scc1 {L}")
        self.e(f"""s_lshl_b32 s100, s{sRANK}, 2
        s_add_u32 s100, s100, s{sW}
        s_lshl_b32 s100, s100, 13
        s_add_u32 s100, s100, {TSB + 16*MB + slot*MB}
        s_mov_b64 s[96:97], exec
        s_mov_b64 exec, -1
        s_nop 15
        v_lshrrev_b32 v{vL16}, 2, v{vL16}""")
        for r in range(n):
            self.e(f"buffer_store_dword {cls}{base+r}, v{vL16}, s[{S_WS}:{S_WS+3}], s100 offen offset:{(r%16)*256}")
            if r % 16 == 15: self.e("s_add_u32 s100, s100, 4096")
        self.e(f"v_lshlrev_b32 v{vL16}, 2, v{vL16}\ns_waitcnt vmcnt(0)\ns_mov_b64 exec, s[96:97]\n{L}:")
    def stamp(self, k, real=False):
        if self.ts: self.e(f"{'s_memrealtime' if real else 's_memtime'} s[{48+2*k}:{49+2*k}]")
    def ts_store(self, v):
        if self.ts: self.e(f"s_mov_b64 exec, 0xffff\nbuffer_store_dword v{v}, v{v+1}, s[{S_WS}:{S_WS+3}], s100 offen\ns_mov_b64 exec, -1")
    def ts_flush(self, sitem, v, n=12, store=True):
        if not self.ts: return
        e = self.e
        e("s_waitcnt lgkmcnt(0)")
        for k in range(n): e(f"v_writelane_b32 v{v}, s{48+2*k}, {k}")
        for k in range(4): e(f"v_writelane_b32 v{v}, s{72+k}, {12+k}\ns_mov_b32 s{72+k}, 0")
        e(f"""s_mul_i32 s100, s{sGRP}, 80
        s_add_u32 s100, s100, s{sitem}
        s_lshl_b32 s100, s100, 5
        s_add_u32 s100, s100, s{sRANK}
        s_lshl_b32 s100, s100, 2
        s_add_u32 s100, s100, s{sW}
        s_lshl_b32 s100, s100, 6
        s_add_u32 s100, s100, {TSB}
        v_lshlrev_b32 v{v+1}, 2, v{vLANE}""")
        if store: self.ts_store(v)
    def finish(self):
        e = self.e
        e(f""".section .rodata,"a"
        .p2align 6
        .amdhsa_kernel {KNAME}
        .amdhsa_next_free_vgpr 512
        .amdhsa_next_free_sgpr 102
        .amdhsa_accum_offset 256
        .amdhsa_group_segment_fixed_size 0
        .amdhsa_kernarg_size 112
        .amdhsa_user_sgpr_count 2
        .amdhsa_user_sgpr_kernarg_segment_ptr 1
        .amdhsa_system_sgpr_workgroup_id_x 1
        .end_amdhsa_kernel""")

    def build(self):
        import role_qkv, role_chain, role_att, role_ffn
        e = self.e
        e("""; One persistent launch, one workgroup per CU, weights resident in registers / LDS.
        ; 4/6 token attention + output projection, 5/7 SwiGLU.  Segments flow through the groups via d_ws.
        ; @launch grid=(256,1,1) block=(256,1,1) lds=163840""")
        e(f""".amdgcn_target "amdgcn-amd-amdhsa--gfx950"
        .text
        .globl {KNAME}
        .p2align 8
        .type {KNAME},@function
        {KNAME}:""")
        self.prologue()
        e("L_end0:\ns_endpgm")
        for m in (["L", "G"] if self.emit_global else ["L"]):
            for r, mod in (("chain", role_chain), ("qkv", role_qkv), ("att", role_att), ("ffn", role_ffn)):
                if r[0] in self.roles:
                    e(f".p2align 6\nR_{r}_{m}:")
                    self.endlab = f"L_end_{r}_{m}"
                    tsall = self.ts; self.ts = r[0] in tsall
                    mod.emit(self, m)
                    self.ts = tsall
                    e(f"{self.endlab}:\ns_endpgm")
        self.finish()
        return self.a.text()

if __name__ == "__main__":
    import argparse
    ap = argparse.ArgumentParser()
    ap.add_argument("-o", default="k.s"); ap.add_argument("--lag", type=int, default=10); ap.add_argument("--opt", default="")
    ap.add_argument("--roles", default="cqaf"); ap.add_argument("--ff", action="store_true")
    ap.add_argument("--ts", default=""); ap.add_argument("--noglobal", action="store_true"); ap.add_argument("--dump", action="store_true")
    A = ap.parse_args()
    t = Gen(A.lag, A.roles, A.ff, A.ts, not A.noglobal, A.dump, {k: int(v) for k, v in (x.split('=') for x in A.opt.split(',') if x)}).build()
    open(A.o, "w").write(t)
    print(A.o, len(t), "bytes", t.count("\n"), "lines")
```

```python
from asmlib import *
from gen import *
MF = "v_mfma_f32_16x16x32_bf16"
WS = f"s[{S_WS}:{S_WS+3}]"
sS, sL, sSLOT, sXI, sXO, sNO, sFO, sPEND = 37, 38, 39, 28, 29, 30, 31, 76
sCC, sSUB, sTAG = 98, 99, 101
vRHO, vG, vRd, vXo, vNo, vPs, vONE, vST, vSR = 3, 4, 5, 6, 7, 8, 9, 10, 11
SELA, SELB = 12, 16
STATS = 163840 - 128

class Red:
    def __init__(self, G, m, RL, RD, XR, T):
        self.G, self.m, self.RL, self.RD, self.XR, self.T = G, m, RL, RD, XR, T
        self.LS = "" if m == "L" else " sc1"; self.cold = []
    def setup(self):
        G = self.G; e = G.e; T = self.T
        e(f"""
        v_and_b32 v{vRHO}, 15, v{vLANE}
        v_lshrrev_b32 v{vG}, 4, v{vLANE}
        s_and_b32 s{sCC}, s{sRANK}, 15
        s_lshr_b32 s{sSUB}, s{sRANK}, 4
        s_sub_u32 s{sT0}, s{sGRP}, 4
        s_lshl_b32 s{sT0}, s{sT0}, 1
        s_add_u32 s{sT0}, s{sT0}, s{sSUB}
        s_lshl_b32 s{sT0}, s{sT0}, 20
        s_add_u32 s{sSLOT}, s{sT0}, {APART}
        s_lshl_b32 s{sT0}, s{sCC}, 15
        s_lshl_b32 s{sT1}, s{sW}, 8
        s_add_u32 s{sT0}, s{sT0}, s{sT1}
        v_lshlrev_b32 v{T}, 4, v{vRHO}
        v_lshl_add_u32 v{T+1}, v{vG}, 10, v{T}
        v_add_u32 v{vRd}, s{sT0}, v{T+1}
        s_lshl_b32 s{sT0}, s{sCC}, 10
        s_add_u32 s{sT0}, s{sT0}, s{sT1}
        v_lshl_add_u32 v{T+1}, v{vG}, 17, v{T}
        v_add_u32 v{vPs}, s{sT0}, v{T+1}
        v_and_b32 v{T+1}, 1, v{vG}
        v_lshlrev_b32 v{T+1}, 3, v{T+1}
        v_lshrrev_b32 v{T+2}, 1, v{vG}
        v_lshl_add_u32 v{T+1}, v{T+2}, 10, v{T+1}
        s_lshl_b32 s{sT0}, s{sRANK}, 11
        s_add_u32 s{sT0}, s{sT0}, s{sT1}
        v_add3_u32 v{vXo}, v{T}, v{T+1}, s{sT0}
        v_xor_b32 v{T}, s{sCC}, v{vRHO}
        v_lshlrev_b32 v{T}, 4, v{T}
        v_add3_u32 v{vNo}, v{T}, v{T+1}, s{sT0}
        v_mov_b32 v{vONE}, 1
        v_lshlrev_b32 v{T+2}, 6, v{T+2}
        v_add_u32 v{vSR}, {STATS}, v{T+2}
        s_lshl_b32 s{sT0}, s{sW}, 2
        v_and_b32 v{T+2}, 1, v{vG}
        v_lshlrev_b32 v{T+2}, 4, v{T+2}
        v_add3_u32 v{vST}, v{T+2}, v{vSR}, s{sT0}
        s_mov_b32 s{sS}, s{sSUB}
        s_mov_b32 s{sPEND}, 0
        s_mov_b32 s{sTAG}, 0""")
        for p in range(4):
            for S_, o in ((SELA, 0), (SELB, 8)):
                e(f"""v_mov_b32 v{S_+p}, 0
                v_cmp_eq_u32 vcc, {2*p+o}, v{vRHO}
                v_mov_b32 v{T+1}, 0x3f80
                v_cndmask_b32 v{S_+p}, v{S_+p}, v{T+1}, vcc
                v_cmp_eq_u32 vcc, {2*p+1+o}, v{vRHO}
                v_mov_b32 v{T+1}, 0x3f800000
                v_cndmask_b32 v{S_+p}, v{S_+p}, v{T+1}, vcc""")
    def start(self, fail):
        G = self.G; T = self.T
        G.e("s_waitcnt vmcnt(0)\ns_barrier"); G.done_add(T + 4, self.m)
        G.warm(f"s_sub_u32 s{sT0}, s{sGRP}, 4\ns_lshl_b32 s{sT0}, s{sT0}, 5\ns_add_u32 s{sT0}, s{sT0}, s{sRANK}", 160, T)
        G.census_issue(T + 4, self.m); G.census_check(T + 4, fail, False, self.m)
    def ring_init(self):
        G = self.G; e = G.e; T = self.T
        for p in range(4): e(f"v_mov_b32 v{T+p}, -1")
        for sl in range(2):
            for j in range(8):
                e(f"s_add_u32 s{sT0}, s{sSLOT}, {sl*512*KB + j*4096}\nbuffer_store_dwordx4 {vr(T,4)}, v{vRd}, {WS}, s{sT0} offen{self.LS}")
    def late(self):
        G = self.G
        if G.opt.get("late", 1):
            Lg = G.a.lab("L_go")
            G.e(f"s_cmp_eq_u32 s{sL}, 0\ns_cbranch_scc1 {Lg}"); G.ready_wait(self.T + 4, 0, 0); G.e(f"{Lg}:")
    def flush_pend(self):
        G = self.G; L = G.a.lab("L_np")
        G.e(f"""s_cmp_eq_u32 s{sPEND}, 0
        s_cbranch_scc1 {L}
        s_mov_b64 s[{sT0}:{sT0+1}], exec
        s_mov_b64 exec, 3
        buffer_store_dword v{vONE}, v{vL16}, {WS}, s{sPEND} offen sc1
        s_mov_b64 exec, s[{sT0}:{sT0+1}]
        s_mov_b32 s{sPEND}, 0
        {L}:""")
    def x_load(self, srd):
        return f"buffer_load_dwordx2 v[{self.XR}:{self.XR+1}], v{vXo}, s[{srd}:{srd+3}], s{sXI} offen sc1"
    def out_pack(self, acc, r, t, pk):
        L = [f"v_cvt_pk_bf16_f32 v{pk+p}, v{acc+8*p+r}, v{acc+8*p+4+r}" for p in range(4)]
        L += [f"v_bfi_b32 v{pk+p}, 1, s{sTAG}, v{pk+p}" for p in range(4)]
        L += [f"s_add_u32 s{sT0}, s{sSLOT}, {(2*r + t)*16384}", f"buffer_store_dwordx4 {vr(pk,4)}, v{vPs}, {WS}, s{sT0} offen{self.LS}"]
        return "\n".join(L)
    def half_pack(self, acc, r, t, h, pk):
        L = [f"v_cvt_pk_bf16_f32 v{pk+p}, v{acc+16*h+8*p+r}, v{acc+16*h+8*p+4+r}" for p in range(2)]
        L += [f"v_bfi_b32 v{pk+p}, 1, s{sTAG}, v{pk+p}" for p in range(2)]
        L += [f"s_add_u32 s{sT0}, s{sSLOT}, {(2*r + t)*16384}", f"buffer_store_dwordx2 {vr(pk,2)}, v{vPs}, {WS}, s{sT0} offen offset:{8*h}{self.LS}"]
        return "\n".join(L)
    def ld(self, j):
        return [f"s_add_u32 s{sT3}, s{sSLOT}, {j*4096}", f"buffer_load_dwordx4 {vr(self.RL+4*j,4)}, v{vRd}, {WS}, s{sT3} offen sc1"]
    def early(self):
        return sum((self.ld(j) for j in range(4)), [])
    def reduce_rows(self, final_label=None, after=None, side=()):
        G = self.G; e = G.e; a = G.a; RL, RD, XR, T = self.RL, self.RD, self.XR, self.T
        L = a.lab("L_red"); L2 = a.lab("L_red2")
        e("s_waitcnt vmcnt(0)\n" + "\n".join(sum((self.ld(j) for j in range(4, 8)), [])) + f"\n{L2}:")
        e(f"v_mov_b32 v{T}, 0\nv_mov_b32 v{T+1}, -1")
        for j in range(8):
            e(f"s_waitcnt vmcnt({7-j})\n{MF} {vr(RD,4)}, {vr(SELA if j < 4 else SELB,4)}, {vr(RL+4*j,4)}, {'0' if j == 0 else vr(RD,4)}")
            for h in range(2):
                e(f"v_or3_b32 v{T}, v{T}, v{RL+4*j+2*h}, v{RL+4*j+2*h+1}")
                e(f"v_bitop3_b32 v{T+1}, v{T+1}, v{RL+4*j+2*h}, v{RL+4*j+2*h+1} bitop3:0x80")
        Y = T + 4
        e(f"""v_xor_b32 v{T}, s{sTAG}, v{T}
        v_bitop3_b32 v{T}, v{T}, v{T+1}, s{sTAG} bitop3:0xf6
        v_lshlrev_b32 v{Y}, 16, v{XR}
        v_and_b32 v{T}, 1, v{T}
        v_and_b32 v{Y+1}, 0xffff0000, v{XR}
        v_cmp_ne_u32 vcc, 0, v{T}
        v_lshlrev_b32 v{Y+2}, 16, v{XR+1}
        v_and_b32 v{Y+3}, 0xffff0000, v{XR+1}
        s_cbranch_vccnz {L}""")
        def slow():
            e(f"{L}:"); G.timeout(2)
            e("\n".join(sum((self.ld(j) for j in range(8)), [])) + f"\ns_branch {L2}")
        self.cold.append(slow)
        G.stamp(6)
        for r in range(4): e(f"v_add_f32 v{Y+r}, v{Y+r}, v{RD+r}")
        e(f"v_cvt_pk_bf16_f32 v{RD}, v{Y}, v{Y+1}\nv_cvt_pk_bf16_f32 v{RD+1}, v{Y+2}, v{Y+3}")
        if after: after()
        if final_label: e(f"s_cmp_eq_u32 s{sL}, 1\ns_cbranch_scc1 {final_label}")
        side = list(side); e0 = e; cnt = [0]
        def e(text):
            for l in text.split("\n"):
                e0(l)
                if l.strip().startswith("v_") and "dpp" not in l and "readlane" not in l: cnt[0] += 1
                if side and cnt[0] >= 7 and "exec" not in l and not masked[0]: e0(side.pop(0)); cnt[0] = 0
                if "exec" in l: masked[0] = not l.strip().endswith("-1")
        masked = [False]
        e(f"""v_lshlrev_b32 v{Y}, 16, v{RD}
        v_and_b32 v{Y+1}, 0xffff0000, v{RD}
        v_readlane_b32 s{sT0}, v{Y}, 0
        v_readlane_b32 s{sT1}, v{Y}, 32
        v_lshlrev_b32 v{Y+2}, 16, v{RD+1}
        v_and_b32 v{Y+3}, 0xffff0000, v{RD+1}
        v_mov_b32 v{T+2}, s{sT1}
        s_mov_b64 exec, 0xffffffff
        v_mov_b32 v{T+2}, s{sT0}
        s_mov_b64 exec, -1""")
        for r in range(4): e(f"v_sub_f32 v{Y+r}, v{Y+r}, v{T+2}")
        e(f"""v_add_f32 v{T}, v{Y}, v{Y+1}
        v_mul_f32 v{T+1}, v{Y}, v{Y}
        v_add_f32 v{T}, v{T}, v{Y+2}
        v_fmac_f32 v{T+1}, v{Y+1}, v{Y+1}
        v_add_f32 v{T}, v{T}, v{Y+3}
        v_fmac_f32 v{T+1}, v{Y+2}, v{Y+2}
        v_fmac_f32 v{T+1}, v{Y+3}, v{Y+3}""")
        for r in (8, 4, 2, 1):
            for x in range(2): e(f"v_add_f32_dpp v{T+x}, v{T+x}, v{T+x} row_ror:{r} row_mask:0xf bank_mask:0xf")
        Z = RL
        e(f"""v_permlane16_swap_b32 v{T}, v{T+1}
        v_add_f32 v{T}, v{T}, v{T+1}""")
        G.stamp(7)
        e(f"""ds_write_b32 v{vST}, v{T}
        ds_write_b32 v{vST}, v{T+2} offset:32
        s_waitcnt lgkmcnt(0)
        s_barrier
        ds_read_b128 {vr(Z,4)}, v{vSR}
        ds_read_b128 {vr(Z+8,4)}, v{vSR} offset:32
        ds_read_b128 {vr(Z+4,4)}, v{vSR} offset:16
        s_waitcnt lgkmcnt(1)""")
        for k in range(4): e(f"v_fmac_f32 v{Z+8+k}, 0x3c000000, v{Z+k}")
        e(f"""v_add_f32 v{T}, v{Z+8}, v{Z+9}
        v_add_f32 v{T+1}, v{Z+10}, v{Z+11}
        v_mul_f32 v{T+3}, v{Z}, v{Z}
        v_add_f32 v{T}, v{T}, v{T+1}
        v_fmac_f32 v{T+3}, v{Z+1}, v{Z+1}
        v_mul_f32 v{T}, 0x3e800000, v{T}
        v_fmac_f32 v{T+3}, v{Z+2}, v{Z+2}
        v_fmac_f32 v{T+3}, v{Z+3}, v{Z+3}
        s_waitcnt lgkmcnt(0)
        v_add_f32 v{T+1}, v{Z+4}, v{Z+5}
        v_add_f32 v{Z+6}, v{Z+6}, v{Z+7}""")
        for k in range(4): e(f"v_sub_f32 v{Z+8+k}, v{Z+8+k}, v{T}")
        e(f"""v_add_f32 v{T+1}, v{T+1}, v{Z+6}
        v_mul_f32 v{Z}, v{Z+8}, v{Z+8}
        v_fmac_f32 v{T+1}, 0xbc000000, v{T+3}""")
        for k in range(1, 4): e(f"v_fmac_f32 v{Z}, v{Z+8+k}, v{Z+8+k}")
        e(f"""v_mov_b32 v{T+3}, 0x3727c5ac
        v_fmac_f32 v{T+1}, 0x43000000, v{Z}
        v_sub_f32 v{T+2}, v{T+2}, v{T}
        v_fmac_f32 v{T+3}, 0x3b000000, v{T+1}
        v_rsq_f32 v{T+3}, v{T+3}""")
        for r in range(4): e(f"v_add_f32 v{Y+r}, v{Y+r}, v{T+2}")
        for r in range(4): e(f"v_mul_f32 v{Y+r}, v{Y+r}, v{T+3}")
        e(f"""v_cvt_pk_bf16_f32 v{Z}, v{Y}, v{Y+1}
        v_cvt_pk_bf16_f32 v{Z+1}, v{Y+2}, v{Y+3}
        buffer_store_dwordx2 v[{Z}:{Z+1}], v{vNo}, {WS}, s{sNO} offen sc1
        buffer_store_dwordx2 v[{RD}:{RD+1}], v{vXo}, {WS}, s{sXO} offen sc1
        s_mov_b32 s{sPEND}, s{sFO}""")
        assert not side
    def advance(self):
        self.G.e(f"""s_xor_b32 s{sSLOT}, s{sSLOT}, {512*KB}
        s_add_u32 s{sXI}, s{sXI}, 65536
        s_add_u32 s{sXO}, s{sXO}, 65536
        s_add_u32 s{sNO}, s{sNO}, 65536
        s_add_u32 s{sFO}, s{sFO}, 1024
        s_add_u32 s{sS}, s{sS}, 2
        s_bfe_u32 s{sTAG}, s{sS}, 0x10002""")

def wide_blocks(G, blocks, st0, depth, after_first=None):
    e = G.e; n = len(blocks); Tm = st0 + 32 * depth
    for b in range(n + depth - 1):
        if b < n:
            srd, addrs, so = blocks[b][:3]; st = st0 + 32 * (b % depth)
            e(so)
            for i, (va, imm) in enumerate(addrs):
                e(f"buffer_load_dwordx4 {vr(st+4*i,4)}, v{va}, s[{srd}:{srd+3}], s{sT5} offen" + (f" offset:{imm}" if imm else ""))
        c = b - (depth - 1)
        if c >= 0:
            e(f"s_waitcnt vmcnt({8*(min(n-1, b) - c)})")
            if c == 0 and after_first: after_first()
            st = st0 + 32 * (c % depth); ab, cls = blocks[c][3:]
            for j in range(8):
                for p in range(4):
                    t = Tm + (j * 4 + p) % 8 if cls == "a" else ab + 4*j + p
                    e(f"v_perm_b32 v{t}, v{st+4*(2*p+1)+(j>>1)}, v{st+4*(2*p)+(j>>1)}, s{sPHI if j & 1 else sPLO}")
                    if cls == "a": e(f"v_accvgpr_write_b32 a{ab+4*j+p}, v{t}")
```

```python
from asmlib import *
from gen import *
from red import *

def emit(G, m):
    e = G.e; a = G.a; lg = a.lg; F = Fill(a)
    R = Red(G, m, RL=192, RD=224, XR=228, T=232); T = R.T
    sQ, sKM, sFL, sBUF, sC, sKM0, sKT, sREL, sBK = 77, 78, 79, 80, 81, 24, 25, 26, 27
    sMK = 82
    vQA, vKMA, vVMA, vZ, vFv, vNEG, vOW, vHA, vFA = 20, 21, 22, 33, 24, 25, 26, 27, 38
    ONES, PZ, P = 28, 32, 40
    Q, K, KM, V, VM, S, O, SU, OF, PK = 44, 60, 92, 108, 140, 156, 168, 200, 204, 220
    BUFSZ, OXB = 49152, 98304
    e(f"s_sub_u32 s{sL}, s{sGRP}, 4\ns_lshr_b32 s{sL}, s{sL}, 1")
    R.setup()
    e(f"""
    s_cmp_eq_u32 s{sL}, 0
    s_cselect_b32 s{S_B}, s{P_X}, s{P_WSP}
    s_cselect_b32 s{S_B+1}, s{P_X+1}, s{P_WSP+1}
    s_cselect_b32 s{S_B+2}, {2*MB}, s{S_WS+2}
    s_mov_b32 s{S_B+3}, 0x20000
    s_cselect_b32 s{sXI}, 0, {XB + 2*MB}
    s_lshl_b32 s{sT0}, s{sL}, 22
    s_add_u32 s{sXO}, s{sT0}, {XB}
    s_add_u32 s{sNO}, s{sT0}, {NB + 2*MB}
    s_lshl_b32 s{sT0}, s{sL}, 16
    s_lshl_b32 s{sT1}, s{sRANK}, 5
    s_add_u32 s{sT0}, s{sT0}, s{sT1}
    s_lshl_b32 s{sT3}, s{sW}, 2
    s_add_u32 s{sT0}, s{sT0}, s{sT3}
    s_add_u32 s{sFO}, s{sT0}, {FN}
    s_lshl_b32 s{sT0}, s{sL}, 6
    s_add_u32 s{sT0}, s{sT0}, s{sSUB}
    s_lshl_b32 s{sT0}, s{sT0}, 5
    s_lshl_b32 s{sT1}, s{sCC}, 1
    s_add_u32 s{sT0}, s{sT0}, s{sT1}
    s_lshl_b32 s{sT1}, s{sT0}, 13
    s_lshl_b32 s{sT2}, s{sW}, 11
    s_add_u32 s{sT1}, s{sT1}, s{sT2}
    s_add_u32 s{sQ}, s{sT1}, {QKV}
    s_lshl_b32 s{sT1}, s{sT0}, 6
    s_add_u32 s{sFL}, s{sT1}, {FQ}
    s_lshr_b32 s{sT2}, s{sW}, 1
    s_lshl_b32 s{sT1}, s{sT2}, 6
    s_add_u32 s{sREL}, s{sFL}, s{sT1}
    s_and_b32 s{sT1}, s{sW}, 1
    s_lshl_b32 s{sT1}, s{sT1}, 2
    s_add_u32 s{sREL}, s{sREL}, s{sT1}
    s_add_u32 s{sREL}, s{sREL}, 48
    s_lshl_b32 s{sT1}, s{sCC}, 1
    s_add_u32 s{sT1}, s{sT1}, s{sT2}
    s_lshl_b32 s{sT1}, s{sT1}, 12
    s_lshl_b32 s{sT2}, s{sL}, 20
    s_add_u32 s{sT1}, s{sT1}, s{sT2}
    s_add_u32 s{sKM0}, s{sT1}, {KMVM}
    v_lshlrev_b32 v{vFA}, 2, v{vLANE}
    s_mov_b32 s{sBUF}, 0
    s_mov_b32 s{sC}, 0x3e0293ee
    v_mov_b32 v{vNEG}, 0xff800000
    s_and_b32 s{sT0}, s{sW}, 1                   ; qt
    s_lshr_b32 s{sT2}, s{sW}, 1                  ; hh
    s_mul_i32 s{sT1}, s{sT2}, 24576
    v_add_u32 v{vHA}, s{sT1}, v{vL16}
    s_lshl_b32 s{sT1}, s{sT0}, 10
    v_add_u32 v{vQA}, s{sT1}, v{vHA}
    v_lshrrev_b32 v{T}, 2, v{vRHO}
    v_and_b32 v{T+1}, 1, v{vRHO}
    v_lshl_add_u32 v{T}, v{T}, 1, v{T+1}
    v_lshlrev_b32 v{T}, 4, v{T}
    v_lshl_add_u32 v{vKMA}, v{vG}, 7, v{T}
    v_lshlrev_b32 v{vVMA}, 3, v{vLANE}
    s_lshl_b32 s{sT1}, s{sW}, 12
    s_add_u32 s{sT1}, s{sT1}, {OXB}
    v_add_u32 v{vOW}, s{sT1}, v{vL16}
    v_lshl_add_u32 v{T}, v{vRHO}, 1, s{sT0}
    v_lshlrev_b32 v{T+1}, 3, v{vG}
    v_sub_u32 v{T}, v{T}, v{T+1}""")
    for t in range(2):
        for r in range(4): e(f"v_cmp_le_i32 s[{sMK+2*(t*4+r)}:{sMK+2*(t*4+r)+1}], {2*r+t}, v{T}")
    for r in range(4): e(f"v_mov_b32 v{ONES+r}, 0x3f803f80")
    for r in list(range(32, 38)) + list(range(VM, VM + 16)): e(f"v_mov_b32 v{r}, 0")
    R.start("L_fb_att")
    for p in range(4): e(f"v_mov_b32 v{T+p}, -1")
    e(f"s_and_b32 s{sT1}, s{sW}, 1\ns_lshl_b32 s{sT1}, s{sT1}, 11\ns_lshl_b32 s{sT2}, s{sSUB}, 17\ns_add_u32 s{sT2}, s{sT2}, s{sT1}\ns_add_u32 s{sT2}, s{sT2}, s{sKM0}")
    for n in range(4):
        for x in range(2): e(f"buffer_store_dwordx4 {vr(T,4)}, v{vL16}, {WS}, s{sT2} offen offset:{x*1024} sc1")
        e(f"s_add_u32 s{sT2}, s{sT2}, 262144")
    R.ring_init()
    REL = f"buffer_store_dword v{vONE}, v{vZ}, {WS}, s{sREL} offen sc1\ns_add_u32 s{sREL}, s{sREL}, 4096"
    R.late()
    def armed():
        e("s_barrier"); G.ready_add(T + 4)
        for n in range(4): e(REL)
    G.srd(S_C, P_WO, 4*MB)
    e(f"""
    s_lshl_b32 s{sT0}, s{sCC}, 18
    s_lshl_b32 s{sT1}, s{sW}, 8
    s_add_u32 s{sT0}, s{sT0}, s{sT1}
    v_lshlrev_b32 v240, 4, v{vRHO}
    v_lshl_add_u32 v240, v{vG}, 13, v240
    v_add_u32 v240, s{sT0}, v240
    v_add_u32 v241, 4096, v240""")
    wide_blocks(G, [(S_C, [(240 + (i >> 2), (i & 3) * 1024) for i in range(8)], f"s_mov_b32 s{sT5}, {b*32768}", b*32, "a") for b in range(8)], 44, 4, armed)
    G.ready_wait(T + 4)
    for r in range(VM, VM + 16): e(f"v_mov_b32 v{r}, 0")
    FLD = f"buffer_load_dword v{vFv}, v{vFA}, {WS}, s{sFL} offen sc1"
    KP = 240
    def fl_check():
        L = a.lab("L_sp"); Lo = a.lab("L_spo")
        e(f"v_cmp_eq_u32 vcc, 0, v{vFv}\ns_and_b32 s{sT0}, vcc_lo, 0x0ff00ff0\ns_cbranch_scc1 {L}\n{Lo}:")
        def slow():
            e(f"{L}:\ns_cmp_ge_u32 s{sS}, 62\ns_cbranch_scc1 {Lo}"); G.timeout(0)
            e(f"{FLD}\ns_waitcnt vmcnt(0)\nv_cmp_eq_u32 vcc, 0, v{vFv}\ns_and_b32 s{sT0}, vcc_lo, 0x0ff00ff0\ns_cbranch_scc1 {L}\ns_branch {Lo}")
        R.cold.append(slow)
    KMS = lambda d: f"s_add_u32 s{sT1}, s{sS}, {d}\ns_bfe_u32 s{sKT}, s{sT1}, 0x10003\ns_and_b32 s{sT1}, s{sT1}, 7\ns_lshl_b32 s{sT1}, s{sT1}, 17\ns_add_u32 s{sKM}, s{sT1}, s{sKM0}"
    KMP = "\n".join(f"buffer_load_dwordx4 {vr(KM+4*w,4)}, v{vKMA}, {WS}, s{sKM} offen offset:{w*512} sc1" for w in range(4))
    VMP = "\n".join(f"buffer_load_dwordx2 {vr(VM+4*w,2)}, v{vVMA}, {WS}, s{sKM} offen offset:{2048 + w*512} sc1" for w in range(4))
    def tagc(regs, t):
        L = [f"v_bitop3_b32 v{t+i}, v{regs[2*i]}, v{regs[2*i+1]}, s{sKT} bitop3:0x7e" for i in range(len(regs)//2)]
        n = len(regs)//2; j = 1
        while j < n:
            L.append(f"v_or3_b32 v{t}, v{t}, v{t+j}, v{t+min(j+1, n-1)}"); j += 2
        return L + [f"v_and_b32 v{t}, 1, v{t}", f"v_cmp_ne_u32 vcc, 0, v{t}"]
    KMC = tagc(list(range(KM, KM + 16)), O)
    VMC = tagc([VM + 4*w + x for w in range(4) for x in range(2)], O)
    def qkv_dma(out):
        out(f"s_lshl_b32 s{sT2}, s{sW}, 11\ns_add_u32 s{sT2}, s{sT2}, s{sBUF}")
        for hh in range(2):
            for wh in range(3):
                out(f"s_add_u32 m0, s{sT2}, {hh*24576 + wh*8192}\ns_add_u32 s{sT1}, s{sQ}, {wh*32*MB + hh*8192}")
                for t in range(2): out(f"buffer_load_dwordx4 v{vL16}, {WS}, s{sT1} offen offset:{t*1024} sc1 lds")
        out(f"s_add_u32 s{sQ}, s{sQ}, 524288")
    e(f"v_and_b32 v{vFA}, 124, v{vFA}\n{FLD}\ns_waitcnt vmcnt(0)"); fl_check(); qkv_dma(e)
    e(f"s_add_u32 s{sFL}, s{sFL}, 4096\n{KMS(0)}\n{KMP}\ns_mov_b32 s{sBK}, 0\ns_waitcnt vmcnt(4)\ns_barrier")
    e(f"L_att_loop_{m}:")
    G.stamp(0)
    e(f"""{FLD}
    {R.x_load(S_B)}
    v_add_u32 v{T}, s{sBUF}, v{vHA}
    v_add_u32 v{T+1}, s{sBUF}, v{vQA}
    s_xor_b32 s{sBUF}, s{sBUF}, {BUFSZ}""")
    lg.set([])
    def rd(dst, va, off, tag):
        e(f"ds_read_b128 {vr(dst,4)}, v{va} offset:{off}"); lg.issue(tag)
    S0, S1, S2 = S + 8, S, S + 4
    for w in range(4):
        rd(Q + 4*w, T + 1, w*2048, ("q", w)); rd(K + 8*w, T, 8192 + w*2048, ("k", w)); rd(K + 8*w + 4, T, 8192 + w*2048 + 1024, ("k", w))
    for w in range(4):
        lg.wait(("k", w))
        for D, A in ((S1, K + 8*w), (S2, K + 8*w + 4)):
            e(f"{MF} {vr(D,4)}, {vr(A,4)}, {vr(Q+4*w,4)}, {'0' if w == 0 else vr(D,4)}")
    for w in range(4):
        rd(V + 8*w, T, 16384 + w*2048, ("v", w)); rd(V + 8*w + 4, T, 16384 + w*2048 + 1024, ("v", w))
    mx, t0 = PK, PK + 1
    for t, D in enumerate((S1, S2)):
        for r in range(4): e(f"v_cndmask_b32 v{D+r}, v{vNEG}, v{D+r}, s[{sMK+2*(t*4+r)}:{sMK+2*(t*4+r)+1}]")
    e(f"""v_max3_f32 v{mx}, v{S1}, v{S1+1}, v{S1+2}
    v_max3_f32 v{t0}, v{S1+3}, v{S2}, v{S2+1}
    v_max3_f32 v{mx}, v{mx}, v{S2+2}, v{S2+3}""")
    Lk, Lko = a.lab("L_km"), a.lab("L_kmo")
    e(f"s_cmp_lt_u32 s{sS}, 2\ns_cbranch_scc1 {Lk}\ns_waitcnt vmcnt(4)\n{Lko}:")
    F.add(*KMC)
    for w in range(4): F.mf(f"{MF} {vr(S0,4)}, {vr(KM+4*w,4)}, {vr(Q+4*w,4)}, {'0' if w == 0 else vr(S0,4)}", 3, 3)
    F.flush()
    Lk2 = a.lab("L_km2")
    e(f"s_cbranch_vccnz {Lk2}")
    def slow():
        e(f"{Lk2}:\ns_mov_b32 s{sBK}, 2"); G.timeout(1); e(f"{KMP}\n{Lk}:\ns_waitcnt vmcnt(0)"); R.flush_pend(); e(f"s_branch {Lko}")
    R.cold.append(slow)
    G.stamp(1); G.stamp(10, True)
    Lx = a.lab("L_vx")
    VREQ = f"s_cmp_eq_u32 s{sBK}, 1\ns_cbranch_scc1 {Lx}\n{VMP}\n{Lx}:"
    if G.opt.get("vq", 1) == 0: e(VREQ)
    e(f"v_max3_f32 v{t0}, v{t0}, v{S0}, v{S0+1}\nv_max_f32 v{mx}, v{mx}, v{t0}")
    G.x16(mx, t0, "v_max_f32"); G.x32(mx, t0, "v_max_f32")
    e(f"v_mul_f32 v{mx}, s{sC}, v{mx}")
    for r in range(10): e(f"v_fma_f32 v{S+r}, v{S+r}, s{sC}, -v{mx}")
    if G.opt.get("vq", 1) == 1: e(VREQ)
    for r in range(10): e(f"v_exp_f32 v{S+r}, v{S+r}")
    for r in range(4): e(f"v_cvt_pk_bf16_f32 v{P+r}, v{S1+r}, v{S2+r}")
    e(f"v_cvt_pk_bf16_f32 v{PZ+3}, v{S0}, v{S0+1}")
    e(f"{MF} {vr(SU,4)}, {vr(ONES,4)}, {vr(P,4)}, 0\n{MF} {vr(SU,4)}, {vr(ONES,4)}, {vr(PZ+2,4)}, {vr(SU,4)}")
    for w in range(4):
        lg.wait(("v", w))
        for j in range(2): F.mf(f"{MF} {vr(O+8*w+4*j,4)}, {vr(V+8*w+4*j,4)}, {vr(P,4)}, 0", 3, 2)
        if w == 2: F.add(f"v_rcp_f32 v{SU}, v{SU}\nv_mul_f32 v{S0}, v{S0}, v{SU}\nv_mul_f32 v{S0+1}, v{S0+1}, v{SU}")
    F.add(f"v_cvt_pk_bf16_f32 v{PZ}, v{S0}, v{S0+1}\nv_cvt_pk_bf16_f32 v{PZ+3}, v{S0}, v{S0+1}")
    F.add(*[f"v_mul_f32 v{O+r}, v{O+r}, v{SU}" for r in range(32)]); F.flush()
    def norm(w):
        for r in range(4): F.add(f"v_cvt_pk_bf16_f32 v{OF+4*w+r}, v{O+8*w+r}, v{O+8*w+4+r}")
        F.add(f"ds_write_b128 v{vOW}, {vr(OF+4*w,4)} offset:{w*1024}")
    Lv, Lvo = a.lab("L_vm"), a.lab("L_vmo")
    VMC = tagc([VM + 4*w + x for w in range(4) for x in range(2)], K)
    Ly = a.lab("L_vy")
    e(f"s_cmp_eq_u32 s{sBK}, 1\ns_cbranch_scc1 {Ly}\n{Lvo}:\ns_waitcnt vmcnt(0)\n{Ly}:\n" + "\n".join(VMC) + f"\ns_cbranch_vccnz {Lv}")
    def slow(): e(f"{Lv}:"); G.timeout(3); e(f"{VMP}\ns_branch {Lvo}")
    R.cold.append(slow)
    for w in range(4):
        for j in range(2): F.mf(f"{MF} {vr(O+8*w+4*j,4)}, {vr(VM+4*w,4)}, {vr(PZ+2*j,4)}, {vr(O+8*w+4*j,4)}", 3, 2)
        if w >= 2: norm(w - 2)
    norm(2); norm(3); F.flush()
    e("s_waitcnt lgkmcnt(0)\ns_barrier")
    G.stamp(4)
    lg.set([])
    ACC = [44, 76]; AR = 108; vOR = T
    e(f"v_add_u32 v{vOR}, {OXB}, v{vL16}")
    frs = [(t, hh, kd) for t in range(2) for hh in range(2) for kd in range(4)]
    def ord_(n):
        t, hh, kd = frs[n]
        rd(AR + 4*(n % 3), vOR, ((hh*2 + t)*4 + kd)*1024, ("o", n))
    ord_(0); ord_(1)
    AN = G.opt.get("an", 1); EN = G.opt.get("en", 99)
    for n, (t, hh, kd) in enumerate(frs):
        if n + 2 < 16: ord_(n + 2)
        if n == AN:
            e("s_waitcnt vmcnt(0)"); R.flush_pend(); fl_check()
            F.mem(f"s_cmp_lt_u32 s{sS}, 56\ns_cselect_b32 s{sREL}, s{sREL}, {FQ + 256*KB}\n{REL}\ns_add_u32 s{sFL}, s{sFL}, 4096"); qkv_dma(F.mem)
            G.stamp(2)
        if n == 8: G.stamp(3)
        if 8 <= n < 12: F.add(R.out_pack(ACC[0], n - 8, 0, PK - 4*(n & 1)))
        if n == EN: F.mem(*R.early())
        lg.wait(("o", n))
        for j in range(8):
            D = vr(ACC[t] + 4*j, 4)
            F.mf(f"{MF} {D}, {vr(AR+4*(n%3),4)}, {ar((hh*4+kd)*32+4*j,4)}, {'0' if n % 8 == 0 else D}", 3 if j < 7 else 1, 2)
    F.flush()
    for r in range(4): e(R.out_pack(ACC[1], r, 1, PK + 4*(r & 1) - 4))
    if EN > 15: e("\n".join(R.early()))
    G.stamp(5)
    def nxt():
        e(f"{KMS(2)}\ns_cmp_lg_u32 s{sBK}, 2\ns_cselect_b32 s{sBK}, {G.opt.get('vme', 0)}, 0\ns_cselect_b64 vcc, {-G.opt.get('vme', 0)}, 0")
    def guard(x):
        L = a.lab("L_gd"); return f"s_cbranch_vccz {L}\n{x}\n{L}:"
    vp = VMP.split("\n")
    R.reduce_rows(after=nxt, side=[guard(vp[0] + "\n" + vp[1]), guard(vp[2] + "\n" + vp[3])] + KMP.split("\n"))
    G.stamp(8); G.stamp(11, True)
    R.advance()
    G.stamp(9)
    if G.ts: e(f"s_sub_u32 s{sT5}, s{sS}, 1"); G.ts_flush(sT5, 250)
    e(f"s_cmp_lt_u32 s{sS}, 64\ns_cbranch_scc1 L_att_loop_{m}\ns_waitcnt vmcnt(0)")
    R.flush_pend()
    G.wb_exit(m)
    e("s_endpgm")
    for f in R.cold: f()
    if m == "L": G.far_fallback("L_fb_att")
```

```python
from asmlib import *
from gen import *
MF = "v_mfma_f32_16x16x32_bf16"
SM = "v_smfmac_f32_16x16x64_bf16"
OFFS = [0, 1, 8, 9, 2, 3, 10, 11]

def emit(G, m):
    e = G.e; a = G.a; vm = a.vm; lg = a.lg
    LS = "" if m == "L" else " sc1"
    WS = f"s[{S_WS}:{S_WS+3}]"
    sI, sK, sV, sTAG, sKM, sFL, sKB, sKM0, sKT = 37, 38, 39, 28, 29, 30, 31, 84, 85
    sPs, sRs, sMr, sMp, sC, sUP = 76, 77, 78, 79, 80, 82
    vFv, vLW, vLA, vST, vQW, vTR, vTK, vOW, vPst, vPub, vTS, vKM, vVM, vFl, IDX, vKR, vKW, vZ, vTO = 0, 3, 4, 5, 6, 7, 8, 9, 10, 11, 12, 14, 15, 16, 17, 18, 19, 21, 26
    PM, VB, SEL, ONES, VX = 20, 28, 32, 36, 40
    MEM, WR, AV, AQ, AK = 48, 80, 104, 112, 120
    WQ0, WO0 = 128, 192
    LB = 131072; MEMF, QX, KXX, OX, KB0 = 0, 8192, 8192 + 2112, 0, 16384
    F = Fill(a); cold = []
    stamp = G.stamp
    G.srd(S_A, P_WQ, 4*MB); G.srd(S_B, P_WK, 4*MB); G.srd(S_C, P_WV, 4*MB); G.srd(S_D, P_WO, 4*MB)
    sWB, sSC, sCO = 86, 87, 88
    e(f"""
    v_and_b32 v90, 15, v{vLANE}              ; rho
    v_lshrrev_b32 v91, 4, v{vLANE}           ; g
    v_lshrrev_b32 v94, 1, v91
    v_and_b32 v95, 1, v91
    v_lshlrev_b32 v95, 2, v95
    v_lshl_add_u32 v95, v94, 4, v95
    s_lshl_b32 s{sT0}, s{sRANK}, 8
    s_lshl_b32 s{sT1}, s{sW}, 6
    s_add_u32 s{sCO}, s{sT0}, s{sT1}
    s_lshl_b32 s{sT0}, s{sRANK}, 17
    s_lshl_b32 s{sT1}, s{sW}, 8
    s_add_u32 s{sT0}, s{sT0}, s{sT1}
    v_lshlrev_b32 v92, 4, v90
    v_lshl_add_u32 v93, v95, 10, v92
    v_add_u32 v88, s{sT0}, v93
    v_add_u32 v89, 8192, v88
    s_lshl_b32 s{sWB}, s{sW}, 15
    s_lshl_b32 s{sSC}, s{sW}, 13
    s_add_u32 s{sSC}, s{sSC}, {LB}
    v_add_u32 v{vLW}, s{sWB}, v{vL16}""")
    G.wdma_addr(80, 82, 8192, 95, 84)
    e(f"v_add_u32 v83, s{sSC}, v82\nv_add_u32 v82, s{sWB}, v82")
    pos = lambda k, j: (k >> 1) * 16 + j * 8 + (k & 1) * 4
    so = lambda k: f"s_add_u32 s{sT5}, s{sCO}, {k*262144}"
    blocks = [(S_B, so(k), G.sink_a(pos(k, 0)), G.sink_a(pos(k, 1))) for k in range(16)]
    blocks += [(S_C, so(k), G.sink_a(128 + pos(k, 0)), G.sink_a(128 + pos(k, 1))) for k in range(16)]
    blocks += [(S_A, so(k), G.sink_v(WQ0 + 4*k), G.sink_lds(vLW, k*1024)) for k in range(16)]
    slots = [(sWB, 16384 + i*2048, 82) for i in range(8)] + [(sSC, i*2048, 83) for i in range(4)]
    WST = [16, 48]
    def wo_issue(k):
        e(f"s_mov_b32 s{sT5}, {k*32768}")
        for i in range(8): e(f"buffer_load_dwordx4 {vr(WST[k%2]+4*i,4)}, v{88 + (OFFS[i] >> 3)}, s[{S_D}:{S_D+3}], s{sT5} offen offset:{(OFFS[i] & 7)*1024}")
    def wo_take(k):
        st = WST[k % 2]
        for u in range(4):
            for p in range(4): e(f"v_perm_b32 v{WO0+4*(u*4+k)+p}, v{st+4*(2*p+1)+u}, v{st+4*(2*p)+u}, s{sPLO}")
            for p in range(4): e(f"v_perm_b32 v{104+4*(u&1)+p}, v{st+4*(2*p+1)+u}, v{st+4*(2*p)+u}, s{sPHI}")
            e(f"ds_write_b128 v{vLW}, {vr(104+4*(u&1),4)} offset:{16384 + (u*4+k)*1024}")
    e(f"""
    s_lshl_b32 s{sT2}, s{sGRP}, 19
    s_add_u32 s{sPs}, s{sT2}, {CPART}
    s_and_b32 s{sT3}, s{sW}, 1
    s_lshl_b32 s{sT0}, s{sT3}, 17
    s_lshl_b32 s{sT1}, s{sRANK}, 12
    s_add_u32 s{sT0}, s{sT0}, s{sT1}
    s_add_u32 s{sRs}, s{sT0}, s{sPs}
    s_lshl_b32 s{sT2}, s{sGRP}, 14
    s_add_u32 s{sT2}, s{sT2}, {MEMR + 8192}
    s_lshl_b32 s{sT0}, s{sW}, 11
    s_add_u32 s{sMr}, s{sT0}, s{sT2}
    s_lshr_b32 s{sT0}, s{sRANK}, 3
    s_lshl_b32 s{sT0}, s{sT0}, 11
    s_lshl_b32 s{sT1}, s{sT3}, 3
    s_add_u32 s{sT0}, s{sT0}, s{sT1}
    s_and_b32 s{sT1}, s{sRANK}, 1
    s_lshl_b32 s{sT1}, s{sT1}, 10
    s_add_u32 s{sT0}, s{sT0}, s{sT1}
    s_bfe_u32 s{sT1}, s{sRANK}, 0x20001
    s_lshl_b32 s{sT1}, s{sT1}, 5
    s_add_u32 s{sT0}, s{sT0}, s{sT1}
    s_add_u32 s{sMp}, s{sT0}, s{sT2}
    v_and_b32 v93, 7, v90
    v_lshlrev_b32 v93, 7, v93
    v_and_b32 v95, 1, v91
    v_lshl_add_u32 v93, v95, 4, v93
    v_lshl_add_u32 v{vPub}, v94, 2, v93
    v_and_b32 v93, 7, v90
    v_lshlrev_b32 v93, 4, v93                    ; (rho&7)*16""")
    Lg = a.lab("L_go")
    e("s_waitcnt vmcnt(0)\ns_barrier"); G.done_add(96, m)
    e(f"s_cmp_eq_u32 s{sGRP}, 0\ns_cbranch_scc1 {Lg}")
    G.warm(f"s_add_u32 s{sT0}, s{sRANK}, 128", 160, 104); G.srd(S_A, P_WQ, 4*MB)
    G.census_issue(96, m); G.census_check(96, "L_fb_chain", False, m)
    if G.opt.get("late", 1): G.ready_wait(96, 0, 0)
    e(f"{Lg}:")
    def h_issue(): G.census_issue(96, m)
    def h_arm():
        G.census_check(96, "L_fb_chain", True, m)
        for r in range(4): e(f"v_mov_b32 v{100+r}, -1")
        e(f"s_lshr_b32 s{sT1}, s{sW}, 1\ns_lshl_b32 s{sT0}, s{sT1}, 18\ns_xor_b32 s{sT0}, s{sT0}, s{sRs}")
        for i in range(4): e(f"buffer_store_dwordx4 v[100:103], v{vL16}, {WS}, s{sT0} offen offset:{i*1024}{LS}")
        e(f"s_lshl_b32 s{sT0}, s{sT1}, 13\ns_xor_b32 s{sT0}, s{sT0}, s{sMp}")
        e(f"buffer_store_dword v100, v{vPub}, {WS}, s{sT0} offen{LS}")
    def h_ready(): e("s_barrier"); G.ready_add(100)
    LBK = G.opt.get('lb', 8)
    def h_first():
        G.srd(S_A, P_MEM0, 8192)
        e(f"""
    v_and_b32 v86, 7, v{vLANE}
    v_lshlrev_b32 v86, 10, v86
    v_lshrrev_b32 v85, 3, v{vLANE}
    v_lshl_add_u32 v85, v85, 4, v86
    s_lshl_b32 s{sT0}, s{sW}, 8
    buffer_load_dwordx4 v[120:123], v85, s[{S_A}:{S_A+3}], s{sT0} offen
    buffer_load_dwordx4 v[124:127], v85, s[{S_A}:{S_A+3}], s{sT0} offen offset:128
    s_lshl_b32 s{sT2}, s{sGRP}, 11
    s_add_u32 s{sT2}, s{sT2}, s{sRANK}
    s_lshl_b32 s{sT0}, s{sT2}, 6
    s_lshl_b32 s{sT1}, s{sW}, 2
    s_add_u32 s{sT0}, s{sT0}, s{sT1}
    s_add_u32 s{sFL}, s{sT0}, {FQ}
    v_and_b32 v85, 1, v{vLANE}
    v_lshlrev_b32 v86, 4, v85
    v_add_u32 v86, 16, v86
    v_lshlrev_b32 v85, 2, v85
    v_subrev_u32 v85, s{sT1}, v85
    v_add_u32 v85, 48, v85
    v_and_b32 v87, 2, v{vLANE}
    v_cmp_eq_u32 vcc, 0, v87
    v_cndmask_b32 v102, v85, v86, vcc
    buffer_load_dword v{vFv}, v102, {WS}, s{sFL} offen sc1
    s_lshl_b32 s{sT0}, s{sT2}, 13
    s_lshl_b32 s{sT1}, s{sW}, 11
    s_add_u32 s{sT0}, s{sT0}, s{sT1}
    s_add_u32 s{sK}, s{sT0}, {QKV + 32*MB}
    s_add_u32 s{sKB}, s{sT1}, {LB + KB0}""")
    def h_k():
        if G.ts: e("s_memrealtime s[52:53]")
        L = a.lab("L_f0"); Lo = a.lab("L_f0o")
        e(f"{L}:\nv_cmp_eq_u32 vcc, 0, v{vFv}\ns_cbranch_vccz {Lo}"); G.timeout()
        e(f"buffer_load_dword v{vFv}, v102, {WS}, s{sFL} offen sc1\ns_waitcnt vmcnt(0)\ns_branch {L}\n{Lo}:")
        e(f"s_mov_b32 m0, s{sKB}\ns_xor_b32 s{sKB}, s{sKB}, {KB0 ^ (KB0 + 8192)}")
        for t in range(2): e(f"buffer_load_dwordx4 v{vL16}, {WS}, s{sK} offen offset:{t*1024} sc1 lds")
        e(f"s_lshl_b32 s{sT0}, s{sGRP}, 5\nv_mov_b32 v99, s{sT0}\nbuffer_load_dword v103, v99, s[{S_DBG}:{S_DBG+3}], 0 offen offset:8 sc1")
    def tail(x):
        if x in (0, 4): wo_issue(x // 4); return 8
        return 0
    G.wdma(blocks, slots, 80, 104, OFFS, {LBK: h_issue, LBK + 13: h_arm, LBK + 26: h_ready, 35: h_first}, tail)
    e("s_waitcnt vmcnt(8)"); wo_take(0); wo_issue(2)
    e("s_waitcnt vmcnt(8)"); wo_take(1); wo_issue(3)
    e("s_barrier")
    h_k()
    e("s_waitcnt vmcnt(11)"); wo_take(2)
    e("s_waitcnt vmcnt(3)"); wo_take(3)
    e("s_waitcnt vmcnt(0)")
    if G.ts: e("s_memrealtime s[100:101]")
    e(f"""
    s_lshl_b32 s{sT0}, s{sRANK}, 12
    s_lshl_b32 s{sT1}, s{sGRP}, 20
    s_add_u32 s{sT0}, s{sT0}, s{sT1}
    s_lshl_b32 s{sT1}, s{sW}, 9
    s_add_u32 s{sT0}, s{sT0}, s{sT1}
    s_add_u32 s{sKM0}, s{sT0}, {KMVM}
    v_lshl_add_u32 v96, v91, 7, v93              ; g*128 + (rho&7)*16
    s_add_u32 s{sT0}, s{sT1}, {LB + OX}
    v_add_u32 v{vOW}, s{sT0}, v96
    v_lshrrev_b32 v97, 2, v90                    ; rho>>2
    v_and_b32 v98, 1, v90                        ; rho&1
    v_lshl_add_u32 v96, v97, 1, v98
    v_lshlrev_b32 v96, 4, v96
    v_lshl_add_u32 v{vKM}, v91, 7, v96
    v_bfe_u32 v101, v90, 1, 1                    ; half
    v_lshl_add_u32 v{vKM}, v101, 30, v{vKM}
    v_lshlrev_b32 v{vVM}, 3, v{vLANE}
    v_lshl_add_u32 v96, v101, 7, v96
    v_lshl_add_u32 v96, v91, 8, v96
    v_add_u32 v{vLA}, {LB}, v96
    v_add_u32 v{vKR}, {LB + KB0}, v{vL16}
    s_lshl_b32 s{sT0}, s{sW}, 11
    s_add_u32 s{sT0}, s{sT0}, {LB}
    v_add_u32 v{vST}, s{sT0}, v{vL16}
    v_and_b32 v95, 1, v91
    v_lshlrev_b32 v96, 3, v90
    v_lshl_add_u32 v96, v95, 2, v96
    v_mul_u32_u24 v99, 1088, v94
    s_lshl_b32 s{sT0}, s{sW}, 8
    s_add_u32 s{sT0}, s{sT0}, {LB + QX}
    v_add3_u32 v{vQW}, v96, v99, s{sT0}
    v_mul_u32_u24 v96, 192, v91
    v_lshl_add_u32 v96, v90, 3, v96
    s_mul_i32 s{sT0}, s{sW}, 1488
    s_add_u32 s{sT0}, s{sT0}, {LB + KXX}
    v_add_u32 v{vKW}, s{sT0}, v96
    v_lshrrev_b32 v96, 1, v97
    v_lshl_add_u32 v96, v91, 2, v96
    v_lshlrev_b32 v96, 3, v96                    ; (4G + (r>>1))*8
    v_and_b32 v95, 1, v97
    v_lshl_add_u32 v99, v95, 7, v96
    v_mul_u32_u24 v100, 1088, v98
    v_add_u32 v99, v99, v100
    v_add_u32 v{vTR}, {LB + QX}, v99
    v_mul_u32_u24 v99, 784, v95
    v_and_b32 v95, 3, v90
    v_mul_u32_u24 v95, 192, v95
    v_add3_u32 v96, v96, v99, v95
    v_add_u32 v{vTK}, {LB + KXX}, v96
    v_add_u32 v{vTO}, s{sT0}, v96
    v_lshrrev_b32 v95, 3, v90
    v_lshl_add_u32 v96, v91, 1, v95
    v_lshlrev_b32 v96, 12, v96
    s_lshl_b32 s{sT0}, s{sW}, 15
    s_lshl_b32 s{sT1}, s{sRANK}, 7
    s_add_u32 s{sT0}, s{sT0}, s{sT1}
    v_add3_u32 v{vPst}, v96, v93, s{sT0}
    v_mul_u32_u24 v95, 0xaaaa, v101
    v_add_u32 v{IDX}, 0x4444, v95
    s_mov_b32 s{sC}, 0x3e0293ee
    s_mov_b32 s{sUP}, 0
    s_mov_b32 s{sUP+1}, -1
    s_mov_b32 s{sI}, 0
    v_and_b32 v94, 7, v90""")
    for p in range(4):
        e(f"""v_mov_b32 v{SEL+p}, 0
        v_cmp_eq_u32 vcc, {2*p}, v94
        v_mov_b32 v95, 0x3f80
        v_cndmask_b32 v{SEL+p}, v{SEL+p}, v95, vcc
        v_cmp_eq_u32 vcc, {2*p+1}, v94
        v_mov_b32 v95, 0x3f800000
        v_cndmask_b32 v{SEL+p}, v{SEL+p}, v95, vcc
        v_mov_b32 v{ONES+p}, 0x3f803f80""")
    for r in [12, 13, 30, 31] + list(range(20, 26)): e(f"v_mov_b32 v{r}, 0")
    FLD = f"buffer_load_dword v{vFv}, v{vFl}, {WS}, s{sFL} offen sc1"
    def fl_check(first=False):
        L = a.lab("L_fl"); Lo = a.lab("L_flo")
        e(f"v_cmp_eq_u32 vcc, 0, v{vFv}\ns_cbranch_vccnz {L}\n{Lo}:")
        def slow():
            e(f"{L}:")
            if not first: e(f"s_cmp_eq_u32 s{sI}, 63\ns_cbranch_scc1 {Lo}")
            G.timeout(0)
            e(f"{FLD}\ns_waitcnt vmcnt(0)\nv_cmp_eq_u32 vcc, 0, v{vFv}\ns_cbranch_vccnz {L}\ns_branch {Lo}")
        cold.append(slow)
    def vmop(text, tag):
        def f(): e(text); vm.issue(tag)
        f.cost = Fill.cost(text); f.text = text; return f
    kx_ops = lambda: [f"s_mov_b32 m0, s{sKB}\ns_xor_b32 s{sKB}, s{sKB}, {KB0 ^ (KB0 + 8192)}"] + \
        [vmop(f"buffer_load_dwordx4 v{vL16}, {WS}, s{sK} offen offset:{t*1024} sc1 lds", "kx") for t in range(2)]
    vx_ops = lambda: [vmop(f"buffer_load_dwordx4 {vr(VX+4*t,4)}, v{vL16}, {WS}, s{sV} offen offset:{t*1024} sc1", "vx") for t in range(2)]
    def rdw(kp):
        for h in range(2):
            e(f"ds_read_b128 {vr(WR+8*(kp%3)+4*h,4)}, v{vLW} offset:{(2*kp+h)*1024}"); lg.issue(("w", kp))
    def pre_qk():
        for r in range(AV, 128): e(f"v_mov_b32 v{r}, 0")
        for kp in range(3): rdw(kp)
    for r in range(72, 76): e(f"v_mov_b32 v{r}, 0")
    for i in range(2): e(f"ds_write_b128 v{vST}, v[72:75] offset:{QX + i*1024}")
    e(f"v_mov_b32 v{vFl}, v102")
    for i in range(2): e(f"ds_write_b128 v{vST}, {vr(120+4*i,4)} offset:{MEMF + i*1024}")
    Lr = a.lab("L_rdy")
    e(f"v_cmp_ne_u32 vcc, 32, v103\ns_cbranch_vccz {Lr}"); G.ready_wait(100); e(f"{Lr}:")
    pre_qk()
    e("s_waitcnt lgkmcnt(0)\ns_barrier")
    if G.ts:
        e("s_waitcnt lgkmcnt(0)\ns_mov_b32 s48, s98\ns_mov_b32 s50, s100"); stamp(11, True); G.ts_flush(sI, vTS, store=False)
    e(f".p2align 5\nL_ch_loop_{m}:")
    vm.set([]); lg.set([])
    stamp(0)
    for kp in range(8):
        e(f"ds_read_b128 {vr(MEM+4*kp,4)}, v{vLA} offset:{MEMF + kp*1024}"); lg.issue(("m", kp))
    F.mem(f"s_and_b32 s{sKM}, s{sI}, 7\ns_lshl_b32 s{sKM}, s{sKM}, 17\ns_add_u32 s{sKM}, s{sKM}, s{sKM0}\ns_bfe_u32 s{sKT}, s{sI}, 0x10003",
          f"s_add_u32 s{sFL}, s{sFL}, 2048", vmop(FLD, "fl"), f"s_add_u32 s{sV}, s{sK}, {32*MB}\ns_add_u32 s{sK}, s{sK}, 262144", *vx_ops())
    s1 = lambda k: stamp(1) if G.opt.get('s1', 0) == k else None
    def mq(kp):
        M = vr(MEM + 4*kp, 4)
        lg.wait(("m", kp))
        F.mf(f"{SM} {vr(AQ,4)}, {M}, {vr(WQ0+8*kp,8)}, v{IDX}", 2, 1)
        lg.wait(("w", kp))
        e(f"{SM} {vr(AQ+4,4)}, {M}, {vr(WR+8*(kp%3),8)}, v{IDX}")
        if kp + 3 < 8: rdw(kp + 3)
        else: F.drain(3, 2)
    def mk(kp, sl=(3, 1)):
        for j in range(2): F.mf(f"{SM} {vr(AK+4*j,4)}, {vr(MEM+4*kp,4)}, {ar(16*kp+8*j,8)}, v{IDX}", *sl)
    vs = {"n": 0}
    def vstep(n, sl=0, va=0):
        for _ in range(n):
            if vs["n"] < 16:
                kp, j = vs["n"] >> 1, vs["n"] & 1; vs["n"] += 1
                e(f"{SM} {vr(AV+4*j,4)}, {vr(MEM+4*kp,4)}, {ar(128+16*kp+8*j,8)}, v{IDX}")
            F.drain(sl, va)
    def fold(A0, D):
        return [f"v_add_f32 v{A0+4*j+r}, v{A0+4*j+r}, v{A0+4*j+2+r}" for j in range(2) for r in range(2)] + [f"v_cvt_pk_bf16_f32 v{D+j}, v{A0+4*j}, v{A0+4*j+1}" for j in range(2)]
    def lop(text, tag):
        def f(): e(text); lg.issue(tag)
        f.cost = Fill.cost(text); f.text = text; return f
    KXR = lambda kd, t: (WR + 8*kd + 4*t) if kd < 3 else (MEM + 12 + 4*t)
    krd = lambda kd, t: lop(f"ds_read_b128 {vr(KXR(kd,t),4)}, v{vKR} offset:{kd*2048 + t*1024}", ("kx", kd))
    for kp in range(4): mq(kp); mk(kp)
    F.flush(); s1(0); G.ts_store(vTS)
    for kp in range(4, 8): mq(kp)
    F.add(krd(0, 0), krd(0, 1), krd(1, 0), krd(1, 1)); mk(4, (3, 0))
    F.flush()
    F.add(krd(2, 0), krd(2, 1), *fold(AQ, AQ), lop(f"ds_write2_b32 v{vQW}, v{AQ}, v{AQ+1} offset0:0 offset1:32", "qw"))
    mk(5, (3, 1)); mk(6, (3, 1)); mk(7, (3, 1))
    stamp(2)
    vstep(2, 3, 1); F.flush()
    e("\n".join(fold(AK, AK)))
    lop(f"ds_write2_b32 v{vKW}, v{AK}, v{AK+1} offset0:0 offset1:196", "qw")()
    vstep(5)
    lg.wait("qw"); e("s_barrier")
    stamp(3)
    S1, S2, S0, KOWN, P = MEM, MEM + 4, MEM + 8, WR, MEM + 28
    def trd(kd):
        sl = AQ + 8*(kd & 1)
        for x in range(2):
            for h in range(2):
                e(f"ds_read_b64_tr_b16 {vr(sl+4*x+2*h,2)}, v{(vTR, vTK)[x]} offset:{kd*(256, 1488)[x] + h*16}"); lg.issue(("t", kd, x))
    trd(0); trd(1)
    vstep(3)
    krd(3, 0)(); krd(3, 1)(); s1(6)
    WOR = WR
    def wro(n):
        for h in range(2):
            e(f"ds_read_b128 {vr(WOR+8*(n%4)+4*h,4)}, v{vLW} offset:{16384 + (2*n+h)*1024}"); lg.issue(("o", n))
    for kd in range(4):
        sl = AQ + 8*(kd & 1); c = lambda D: "0" if kd == 0 else vr(D, 4)
        lg.wait(("t", kd, 0)); lg.wait(("kx", kd))
        bf = lambda r: e(f"v_bfi_b32 v{KOWN+r}, 1, s{sKT}, v{KOWN+r}\nv_bfi_b32 v{KOWN+r+1}, 1, s{sKT}, v{KOWN+r+1}") if kd == 3 else None
        if kd == 3: lg.wait("ko")
        e(f"{MF} {vr(S1,4)}, {vr(KXR(kd,0),4)}, {vr(sl,4)}, {c(S1)}"); bf(0)
        e(f"{MF} {vr(S2,4)}, {vr(KXR(kd,1),4)}, {vr(sl,4)}, {c(S2)}"); bf(2)
        if kd == 1:
            for h in range(2):
                e(f"ds_read_b64_tr_b16 {vr(KOWN+2*h,2)}, v{vTO} offset:{h*16}"); lg.issue("ko")
        lg.wait(("t", kd, 1))
        e(f"{MF} {vr(S0,4)}, {vr(sl+4,4)}, {vr(sl,4)}, {c(S0)}")
        if kd + 2 < 4: trd(kd + 2)
        if kd in (1, 2): vstep(1)
    s1(1)
    vstep(1)
    vmop(f"buffer_store_dwordx4 {vr(KOWN,4)}, v{vKM}, {WS}, s{sKM} offen sc1", "km")()
    e(f"v_xor_b32 v{vKR}, {KB0 ^ (KB0 + 8192)}, v{vKR}\ns_bfe_u32 s{sTAG}, s{sI}, 0x10001")
    vstep(1)
    wro(1)
    mx, t0 = S0 + 2, S0 + 3
    ZERO = lambda D: f"v_mfma_f32_16x16x16_bf16 {vr(D,4)}, v[24:25], v[24:25], 0"
    e(f"v_max3_f32 v{mx}, v{S1}, v{S1+1}, v{S1+2}\nv_max3_f32 v{t0}, v{S1+3}, v{S2}, v{S2+1}")
    e(f"v_max3_f32 v{mx}, v{mx}, v{S2+2}, v{S2+3}\nv_max3_f32 v{t0}, v{t0}, v{S0}, v{S0+1}\nv_max_f32 v{mx}, v{mx}, v{t0}\nv_max_f32 v{t0}, v{mx}, v{t0}")
    vstep(1); e("s_nop 0")
    e(f"v_permlane16_swap_b32 v{mx}, v{t0}\nv_max_f32 v{mx}, v{mx}, v{t0}\nv_mov_b32 v{t0}, v{mx}")
    vstep(1); e("s_nop 0"); assert vs["n"] == 16
    e(f"v_permlane32_swap_b32 v{mx}, v{t0}\nv_max_f32 v{mx}, v{mx}, v{t0}\nv_mul_f32 v{mx}, s{sC}, v{mx}")
    wro(2)
    order = [S0, S0 + 1, S1, S2, S1 + 1, S2 + 1, S1 + 2, S2 + 2, S1 + 3, S2 + 3]
    AC = [[MEM + 12, MEM + 16, MEM + 20, MEM + 24], [MEM, MEM + 4, MEM + 8, MEM + 28]]
    for n, r in enumerate(order):
        e(f"v_fma_f32 v{r}, v{r}, s{sC}, -v{mx}")
        if n in (1, 3, 5, 7): e(ZERO(AC[0][n >> 1]))
    wro(0)
    kx = kx_ops()
    for n, r in enumerate(order):
        e(f"v_exp_f32 v{r}, v{r}")
        if n == 0: s1(2); vm.wait("fl"); s1(3)
        if n == 1: fl_check()
        if n == 5: e(kx[0])
        if n in (6, 8): kx[1 if n == 6 else 2]()
    stamp(4)
    O0, O1, SU, OB = AQ, AQ + 4, AK, AK + 4
    for r in range(4): e(f"v_cvt_pk_bf16_f32 v{P+r}, v{S1+r}, v{S2+r}")
    fv = fold(AV, VB)
    e(f"v_cvt_pk_bf16_f32 v{PM+3}, v{S0}, v{S0+1}"); s1(4); vm.wait("vx"); s1(5)
    e(f"{MF} {vr(SU,4)}, {vr(ONES,4)}, {vr(P,4)}, 0\n{fv[0]}\n{fv[1]}")
    e(f"{MF} {vr(O0,4)}, {vr(VX,4)}, {vr(P,4)}, 0\n{fv[2]}\n{fv[3]}")
    e(f"{MF} {vr(SU,4)}, {vr(ONES,4)}, {vr(PM+2,4)}, {vr(SU,4)}\n{fv[4]}\n{fv[5]}")
    e(f"{MF} {vr(O1,4)}, {vr(VX+4,4)}, {vr(P,4)}, 0")
    e(f"v_cvt_pk_bf16_f32 v{PM}, v{S0}, v{S0+1}\nv_bfi_b32 v{AV}, 1, s{sKT}, v{VB}\nv_bfi_b32 v{AV+1}, 1, s{sKT}, v{VB+1}")
    vmop(f"buffer_store_dwordx2 {vr(AV,2)}, v{vVM}, {WS}, s{sKM} offen offset:2048 sc1", "vmst")()
    e(f"s_cmp_eq_u32 s{sI}, 63\ns_cbranch_scc1 L_ch_last_{m}")
    e(f"{MF} {vr(O0,4)}, {vr(VB,4)}, {vr(PM,4)}, {vr(O0,4)}")
    wro(3)
    e(f"{MF} {vr(O1,4)}, {vr(VB,4)}, {vr(PM+2,4)}, {vr(O1,4)}")
    e(f"s_nop 0\nv_rcp_f32 v{SU}, v{SU}\n{ZERO(AC[1][0])}\ns_nop 2")
    for r in range(4): e(f"v_mul_f32 v{O0+r}, v{O0+r}, v{SU}")
    for r in range(4): e(f"v_mul_f32 v{O1+r}, v{O1+r}, v{SU}\nv_cvt_pk_bf16_f32 v{OB+r}, v{O0+r}, v{O1+r}")
    e(f"ds_write_b128 v{vOW}, {vr(OB,4)}"); lg.issue("ow")
    for x in range(1, 4): e(ZERO(AC[1][x]))
    lg.wait("ow"); e("s_barrier")
    stamp(5)
    OF = AQ
    for kk in range(2):
        e(f"ds_read_b128 {vr(OF+4*kk,4)}, v{vLA} offset:{OX + kk*1024}"); lg.issue(("f", kk))
    PK = OB
    def wo_out(sg):
        A = AC[sg]
        if sg == 0: L = [f"v_add_f32 v{t+r}, v{t+r}, v{t+2+r}" for t in A for r in range(2)]
        else: L = [f"v_pk_add_f32 v[{t}:{t+1}], v[{t}:{t+1}], v[{t+2}:{t+3}]" for t in A]
        return L + [f"v_cvt_pk_bf16_f32 v{PK+2*hr+sd}, v{A[sd]+hr}, v{A[2+sd]+hr}" for hr in range(2) for sd in range(2)] + [f"s_add_u32 s{sT0}, s{sPs}, {sg*131072}"] + \
               [f"v_bfi_b32 v{PK+r}, 1, s{sTAG}, v{PK+r}" for r in range(4)] + [f"buffer_store_dwordx4 {vr(PK,4)}, v{vPst}, {WS}, s{sT0} offen{LS}"]
    for sg in range(2):
        for kk in range(2):
            for sd in range(2):
                n = (sg*2 + sd)*2 + kk
                lg.wait(("f", kk))
                if sg == 1 and (kk, sd) == (0, 1): F.add(*wo_out(0))
                F.mf(f"{SM} {vr(AC[sg][sd],4)}, {vr(OF+4*kk,4)}, {vr(WO0+8*n,8)}, v{IDX}", 3, 2)
                lg.wait(("o", n))
                e(f"{SM} {vr(AC[sg][2+sd],4)}, {vr(OF+4*kk,4)}, {vr(WOR+8*(n%4),8)}, v{IDX}")
                if n + 4 < 8: wro(n + 4)
                else: F.drain(3, 2)
    F.flush()
    e("\n".join(wo_out(1)))
    stamp(6)
    RD = AQ; SA = [MEM + 4*i for i in range(4)]; SB = [MEM + 16 + 4*i for i in range(4)]; t1, t2 = AQ + 4, AQ + 5
    Lw = a.lab("L_nored"); Ld = a.lab("L_redd"); La = a.lab("L_and"); Lo_ = a.lab("L_or")
    lg.set([])
    R2 = G.opt.get("red2", 0)
    def rpoll(S):
        for i in range(4): e(f"buffer_load_dwordx4 {vr(S[i],4)}, v{vL16}, {WS}, s{sRs} offen offset:{i*1024} sc1")
    for kp in range(3): rdw(kp)
    for r in range(AV, AQ): e(f"v_mov_b32 v{r}, 0")
    for r in range(AK, 128): e(f"v_mov_b32 v{r}, 0")
    e(f"s_cmp_ge_u32 s{sW}, 2\ns_cbranch_scc1 {Lw}\nv_mov_b32 v{AQ+6}, -1")
    if R2: rpoll(SA); e("s_waitcnt vmcnt(4)"); rpoll(SB)
    elif G.opt.get("redwait", 1): e("s_waitcnt vmcnt(0)")
    e(f"s_cmp_eq_u32 s{sTAG}, 1\ns_cbranch_scc1 {La}")
    for lab, op, cmp_ in ((Lo_, "v_or3_b32 {d}, {a}, {b}, {c}", "ne"), (La, "v_bitop3_b32 {d}, {a}, {b}, {c} bitop3:0x80", "eq")):
        e(f"{lab}:")
        for S in ((SA, SB) if R2 else (SA,)):
            if not R2: rpoll(S)
            for i in range(4):
                e(f"s_waitcnt vmcnt({(7 if R2 else 3)-i})\n{MF} {vr(RD,4)}, {vr(SEL,4)}, {vr(S[i],4)}, {'0' if i == 0 else vr(RD,4)}")
                b = S[i]
                if i == 0: e(op.format(d=f"v{t1}", a=f"v{b}", b=f"v{b+1}", c=f"v{b+2}") + "\n" + op.format(d=f"v{t2}", a=f"v{b+3}", b=f"v{b+3}", c=f"v{b+3}"))
                else: e(op.format(d=f"v{t1}", a=f"v{t1}", b=f"v{b}", c=f"v{b+1}") + "\n" + op.format(d=f"v{t2}", a=f"v{t2}", b=f"v{b+2}", c=f"v{b+3}"))
            e(op.format(d=f"v{t1}", a=f"v{t1}", b=f"v{t2}", c=f"v{t2}") + f"\nv_and_b32 v{t1}, 1, v{t1}\nv_cmp_{cmp_}_u32 vcc, 0, v{t1}\ns_cbranch_vccz {Ld}")
            G.timeout(2)
            if R2: rpoll(S)
        e(f"s_branch {lab}")
    e(f"{Ld}:")
    stamp(7)
    e(f"""v_cndmask_b32 v{RD}, v{RD}, v{RD+2}, s[{sUP}:{sUP+1}]
    v_cndmask_b32 v{RD+1}, v{RD+1}, v{RD+3}, s[{sUP}:{sUP+1}]
    v_add_f32_dpp v{RD}, v{RD}, v{RD} row_ror:8 row_mask:0xf bank_mask:0xf
    v_add_f32_dpp v{RD+1}, v{RD+1}, v{RD+1} row_ror:8 row_mask:0xf bank_mask:0xf
    v_cvt_pk_bf16_f32 v{t1}, v{RD}, v{RD+1}
    v_min_u32 v{t1}, -2, v{t1}
    buffer_store_dword v{t1}, v{vPub}, {WS}, s{sMp} offen{LS}
    s_xor_b32 s{sMp}, s{sMp}, 0x2000
    buffer_store_dword v{AQ+6}, v{vPub}, {WS}, s{sMp} offen{LS}""")
    if G.opt.get("pubwait"): e("s_waitcnt vmcnt(0)")
    e(f"""{Lw}:
    s_xor_b32 s{sRs}, s{sRs}, 0x40000
    s_xor_b32 s{sPs}, s{sPs}, 0x40000
    s_add_u32 s{sI}, s{sI}, 1
    s_barrier""")
    stamp(8)
    L = a.lab("L_g0"); G2 = G.opt.get("g2", 0); sets = (MEM + 16, VX) if G2 else (MEM + 16,)
    def gpoll(b):
        for i in range(2): e(f"buffer_load_dwordx4 {vr(b+4*i,4)}, v{vL16}, {WS}, s{sMr} offen offset:{i*1024} sc1")
    Ls = [a.lab("L_st") for _ in sets]; Le = a.lab("L_ste")
    if not G2:
        for r in range(AQ, AK): e(f"v_mov_b32 v{r}, 0")
    e(f"{L}:")
    gpoll(sets[0])
    if G2:
        for r in range(AQ, AK): e(f"v_mov_b32 v{r}, 0")
        for r in range(8*(G2 - 1)): e(f"v_mov_b32 v{AQ + r % 8}, 0")
        gpoll(sets[1])
    for n, (b, l_) in enumerate(zip(sets, Ls)):
        y = 2*(len(sets) - 1 - n)
        e(f"""s_waitcnt vmcnt({y+1})
        v_max3_u32 v{MEM}, v{b}, v{b+1}, v{b+2}
        s_waitcnt vmcnt({y})
        v_max3_u32 v{MEM+1}, v{b+3}, v{b+4}, v{b+5}
        v_max3_u32 v{MEM}, v{MEM}, v{b+6}, v{b+7}
        v_max_u32 v{MEM}, v{MEM}, v{MEM+1}
        v_cmp_eq_u32 vcc, -1, v{MEM}
        s_cbranch_vccz {l_}""")
        G.timeout(3)
    e(f"s_branch {L}")
    for b, l_ in reversed(list(zip(sets, Ls))):
        e(f"{l_}:"); stamp(9)
        for i in range(2): e(f"ds_write_b128 v{vST}, {vr(b+4*i,4)} offset:{MEMF + i*1024}")
        if b != sets[0]: e(f"s_branch {Le}")
    e(f"{Le}:\ns_xor_b32 s{sMr}, s{sMr}, 0x2000\ns_waitcnt lgkmcnt(0)")
    stamp(10)
    stamp(11, True); G.ts_flush(sI, vTS, store=False)
    e(f"s_barrier\ns_branch L_ch_loop_{m}")
    for f in cold: f()
    e(f"L_ch_last_{m}:"); G.wb_exit(m); e("s_endpgm")
    if m == "L": G.far_fallback("L_fb_chain")
```

```python
from asmlib import *
from gen import *
from red import *

def emit(G, m):
    e = G.e; a = G.a; lg = a.lg; F = Fill(a)
    R = Red(G, m, RL=88, RD=64, XR=28, T=68); T = R.T
    LS = R.LS
    sNI, sFI, sLG, sW8, sPF = 77, 78, 79, 80, 81
    vA, vFA, vFv, vH = 20, 24, 25, 26
    NR, AG, HT, PK = 32, 48, 80, 120
    HF, ACC = 48, (88, 48)
    W2 = 128; HB = 32768
    e(f"s_sub_u32 s{sL}, s{sGRP}, 5\ns_lshr_b32 s{sL}, s{sL}, 1")
    R.setup(); R.start("L_fb_ffn"); R.ring_init(); e("s_waitcnt vmcnt(0)\ns_barrier"); G.ready_add(T + 4); R.late()
    G.srd(S_A, P_W1, 512*1792*2); G.srd(S_C, P_W3, 512*1792*2); G.srd(S_D, P_W2, 512*1792*2)
    e(f"s_cmp_ge_u32 s{sCC}, 14\ns_cbranch_scc1 L_ffn_now_{m}")
    e(f"""
    s_lshl_b32 s{sT0}, s{sCC}, 8
    s_lshl_b32 s{sT1}, s{sW}, 6
    s_add_u32 s{sT2}, s{sT0}, s{sT1}
    s_mul_i32 s{sNI}, s{sW}, 40704
    v_lshlrev_b32 v23, 3, v{vG}""")
    G.wdma_addr(20, 22, 3584, 23, 24)
    e(f"v_add_u32 v22, s{sNI}, v22")
    G.wdma([((S_A, S_C)[u], f"s_add_u32 s{sT5}, s{sT2}, {k*114688}", G.sink_a(u*128 + 8*k), G.sink_a(u*128 + 8*k + 4))
            for k in range(16) for u in range(2)], [(sNI, i*2048, 22) for i in range(19)], 20, 32, list(range(8)))
    e(f"""
    s_lshl_b32 s{sT0}, s{sCC}, 17
    s_lshl_b32 s{sT1}, s{sW}, 8
    s_add_u32 s{sT0}, s{sT0}, s{sT1}
    v_lshlrev_b32 v20, 4, v{vRHO}
    v_lshl_add_u32 v20, v{vG}, 13, v20
    v_add_u32 v20, s{sT0}, v20
    v_add_u32 v21, 4096, v20""")
    wide_blocks(G, [(S_D, [(20 + (i >> 2), (i & 3) * 1024) for i in range(8)], f"s_mov_b32 s{sT5}, {kf*32768}", W2 + kf*32, "v") for kf in range(4)], 32, 3)
    e(f"L_ffn_now_{m}:")
    G.ready_wait(T + 4); e("s_barrier")
    G.srd(S_B, P_OUT, 2*MB)
    for kl in range(4):
        e(f"v_add_u32 v{T}, {4*kl}, v{vG}\nv_xor_b32 v{T}, v{T}, v{vRHO}\nv_lshlrev_b32 v{T}, 4, v{T}\nv_lshl_add_u32 v{vA+kl}, v{vRHO}, 11, v{T}")
    e(f"""
    s_lshl_b32 s{sW8}, s{sW}, 13
    s_lshl_b32 s{sT0}, s{sL}, 22
    s_add_u32 s{sXI}, s{sT0}, {XB}
    s_add_u32 s{sT0}, s{sT0}, s{sW8}
    s_lshl_b32 s{sT1}, s{sSUB}, 15
    s_add_u32 s{sT0}, s{sT0}, s{sT1}
    s_add_u32 s{sNI}, s{sT0}, {NB + 2*MB}
    s_cmp_eq_u32 s{sL}, 0
    s_cselect_b32 s{sXO}, {XB + 2*MB}, 0
    s_mov_b32 s{sNO}, {NB + 4*MB}
    s_lshl_b32 s{sT0}, s{sRANK}, 5
    s_lshl_b32 s{sT1}, s{sW}, 2
    s_add_u32 s{sT0}, s{sT0}, s{sT1}
    s_add_u32 s{sFO}, s{sT0}, {FN + 32*KB}
    s_lshl_b32 s{sT1}, s{sW}, 7
    s_lshl_b32 s{sT2}, s{sSUB}, 9
    s_add_u32 s{sT1}, s{sT1}, s{sT2}
    s_cmp_ge_u32 s{sCC}, 14
    s_cselect_b32 s{sT1}, s{sT0}, s{sT1}
    s_cselect_b32 s{sT3}, 4, 2
    s_lshl_b32 s{sT2}, s{sL}, 16
    s_add_u32 s{sT2}, s{sT2}, {FN}
    s_add_u32 s{sFI}, s{sT2}, s{sT1}
    s_mov_b32 s{sLG}, 0xbfb8aa3b
    s_cmp_ge_u32 s{sCC}, 14
    s_cselect_b32 s{sT1}, 1, 31
    v_and_b32 v{vFA}, s{sT1}, v{vLANE}
    v_lshlrev_b32 v{vFA}, s{sT3}, v{vFA}
    s_mov_b32 s{sPF}, 0
    s_lshl_b32 s{sT0}, s{sW}, 10
    s_add_u32 s{sT0}, s{sT0}, {HB}
    v_add_u32 v{vH}, s{sT0}, v{vL16}""")
    FLD = f"buffer_load_dword v{vFv}, v{vFA}, {WS}, s{sFI} offen sc1"
    def spin():
        L = a.lab("L_sp"); Lo = a.lab("L_spo")
        e("s_waitcnt vmcnt(0)"); R.flush_pend()
        e(f"{L}:\nv_cmp_eq_u32 vcc, 0, v{vFv}\ns_cbranch_vccz {Lo}")
        G.timeout(0)
        e(f"{FLD}\ns_waitcnt vmcnt(0)\ns_branch {L}\n{Lo}:")
    DMA = [f"s_add_u32 m0, s{sW8}, {h*4096}\ns_add_u32 s{sT4}, s{sNI}, {h*4096}\nbuffer_load_dwordx4 v{vL16}, {WS}, s{sT4} offen offset:{r*2048 + t*1024} sc1 lds"
           for t in range(2) for h in range(2) for r in range(2)]
    e(FLD)
    e(f"L_ffn_loop_{m}:\ns_cmp_ge_u32 s{sCC}, 14\ns_cbranch_scc1 L_ffn_idle_{m}")
    G.stamp(0)
    Lp, Lq = a.lab("L_pf"), a.lab("L_pfo")
    e(f"s_cmp_eq_u32 s{sPF}, 0\ns_cbranch_scc1 {Lp}\ns_waitcnt vmcnt(5)\n{Lq}:")
    def slow():
        e(f"{Lp}:"); spin(); G.stamp(10, True)
        e("\n".join(DMA) + f"\ns_waitcnt vmcnt(4)\ns_branch {Lq}")
    R.cold.append(slow)
    G.stamp(1)
    e(f"s_add_u32 s{sNI}, s{sNI}, 65536\ns_add_u32 s{sFI}, s{sFI}, 1024\ns_barrier")
    G.stamp(2)
    lg.set([])
    def rd(n):
        t, k = n >> 4, n & 15
        e(f"ds_read_b128 {vr(NR+4*(n%4),4)}, v{vA+(k&3)} offset:{t*1024 + (k>>2)*256}"); lg.issue(("n", n))
    def act(t):
        g_, u_ = AG + 16*t, AG + 16*t + 8; h = HT
        for r in range(8): F.add(f"v_mul_f32 v{h+r}, s{sLG}, v{g_+r}")
        for r in range(8): F.add(f"v_exp_f32 v{h+r}, v{h+r}\nv_mul_f32 v{g_+r}, v{g_+r}, v{u_+r}")
        for r in range(8): F.add(f"v_add_f32 v{h+r}, 1.0, v{h+r}")
        for r in range(8): F.add(f"v_rcp_f32 v{h+r}, v{h+r}")
        for r in range(8): F.add(f"v_mul_f32 v{h+r}, v{h+r}, v{g_+r}")
        for r in range(4): F.add(f"v_cvt_pk_bf16_f32 v{u_+r}, v{h+r}, v{h+4+r}")
        def wr(): e(f"ds_write_b128 v{vH}, {vr(u_,4)} offset:{t*4096}"); lg.issue(("hw", t))
        wr.cost = (3, 0); wr.text = 'ds_write'; F.add(wr)
    rd(0); rd(1); rd(2)
    for n in range(32):
        t, k = n >> 4, n & 15
        if n == 13: e(f"s_waitcnt vmcnt(0)\ns_barrier"); R.flush_pend(); e(R.x_load(S_WS))
        if n + 3 < 32: rd(n + 3)
        if n == 18: act(0)
        lg.wait(("n", n))
        for u in range(2):
            for j in range(2):
                acc = vr(AG + 16*t + 8*u + 4*j, 4)
                F.mf(f"{MF} {acc}, {ar(u*128 + 8*k + 4*j, 4)}, {vr(NR+4*(n%4),4)}, {'0' if k == 0 else acc}", 3 if u + j < 2 else 1)
    F.flush()
    G.stamp(3)
    for t in range(2):
        lg.wait(("hw", t)); e("s_barrier")
        if t == 1: G.stamp(4)
        else: e(FLD)
        for kf in range(4):
            e(f"ds_read_b128 {vr(NR+4*kf,4)}, v{vL16} offset:{HB + t*4096 + kf*1024}"); lg.issue(("h", t, kf))
        if t == 0: act(1); F.drain(12, 12)
        else:
            for r in range(4): F.add(R.out_pack(ACC[0], r, 0, PK + 4*(r & 1)))
        for kf in range(4):
            lg.wait(("h", t, kf))
            if t == 1 and kf == 3 and G.opt.get("fe", 0): F.flush(); F.mem(*R.early())
            for j in range(8):
                D = vr(ACC[t] + 4*j, 4)
                F.mf(f"{MF} {D}, {vr(NR+4*kf,4)}, {vr(W2 + kf*32 + 4*j, 4)}, {'0' if kf == 0 else D}", 3, 2)
        F.flush()
    for r in range(4): e(R.out_pack(ACC[1], r, 1, PK + 4*(r & 1)))
    if not G.opt.get("fe", 0): e("\n".join(R.early()))
    e(f"s_branch L_ffn_red_{m}")
    e(f"L_ffn_idle_{m}:")
    spin()
    e(f"s_add_u32 s{sFI}, s{sFI}, 1024\ns_barrier\n{R.x_load(S_WS)}\nv_mov_b32 v{vFv}, 0")
    for p in range(4): e(f"v_mov_b32 v{PK+p}, s{sTAG}")
    for n in range(8):
        e(f"s_add_u32 s{sT0}, s{sSLOT}, {n*16384}\nbuffer_store_dwordx4 {vr(PK,4)}, v{vPs}, {WS}, s{sT0} offen{LS}")
    e("\n".join(R.early()))
    e(f"L_ffn_red_{m}:")
    G.stamp(5)
    def nxt():
        Ln = a.lab("L_nx")
        e(f"v_cmp_eq_u32 vcc, 0, v{vFv}\ns_cmp_eq_u64 vcc, 0\ns_cselect_b32 s{sPF}, 1, 0\ns_cselect_b64 vcc, -1, 0\ns_cbranch_scc1 {Ln}\n{FLD}\n{Ln}:")
        if G.ts: e(f"s_add_u32 s73, s73, s{sPF}"); G.stamp(10, True)
    def guard(x):
        L = a.lab("L_gd"); return f"s_cbranch_vccz {L}\n{x}\n{L}:"
    R.reduce_rows(f"L_ffn_fin_{m}", after=nxt, side=[guard(x) for x in DMA])
    e(f"s_branch L_ffn_adv_{m}\nL_ffn_fin_{m}:")
    e(guard("\n".join(DMA)))
    e(f"buffer_store_dwordx2 v[{R.RD}:{R.RD+1}], v{vXo}, s[{S_B}:{S_B+3}], s{sXO} offen" + ("", " sc1", " nt")[G.opt.get("osc", 0)])
    e(f"L_ffn_adv_{m}:")
    G.stamp(8); G.stamp(11, True)
    R.advance()
    G.stamp(9)
    if G.ts: e(f"s_sub_u32 s{sT5}, s{sS}, 1"); G.ts_flush(sT5, 30)
    if G.tsi:
        Li = a.lab("L_tsi")
        e(f"""s_cmp_lt_u32 s{sCC}, 14
        s_cbranch_scc1 {Li}
        s_memrealtime s[94:95]
        s_mul_i32 s100, s{sGRP}, 80
        s_add_u32 s100, s100, s{sS}
        s_sub_u32 s100, s100, 1
        s_lshl_b32 s100, s100, 5
        s_add_u32 s100, s100, s{sRANK}
        s_lshl_b32 s100, s100, 2
        s_add_u32 s100, s100, s{sW}
        s_lshl_b32 s100, s100, 6
        s_add_u32 s100, s100, {TSB}
        s_waitcnt lgkmcnt(0)
        v_mov_b32 v30, s94
        v_mov_b32 v31, s96
        v_mov_b32 v27, 0
        buffer_store_dwordx2 v[30:31], v27, {WS}, s100 offen
        {Li}:""")
    G.wb_mid(m, sS)
    e(f"s_cmp_lt_u32 s{sS}, 64\ns_cbranch_scc1 L_ffn_loop_{m}\ns_waitcnt vmcnt(0)")
    R.flush_pend()
    G.wb_exit(m)
    e("s_endpgm")
    for f in R.cold: f()
    if m == "L": G.far_fallback("L_fb_ffn")
```

```python
from asmlib import *
from gen import *
MF = "v_mfma_f32_16x16x32_bf16"

def emit(G, m):
    e = G.e; a = G.a; lg = a.lg
    P = G.P
    WS = f"s[{S_WS}:{S_WS+3}]"
    sWH, sU, sN1, sN2, sO1, sO2, sF1, sF2, sFN, sW2, sBB, sQD, sISS = 37, 38, 39, 28, 29, 30, 31, 76, 77, 78, 79, 81, 86
    sP1, sP2, sE2, sE1, sQ1 = 82, 83, 84, 88, 89
    vA, vB = 4, 100
    vFO, vONE, vFL, vFA, vO, vD = 24, 25, 26, 27, 28, 30
    vW = 12
    R0, ACC1, ACC2, PK1, PK2 = 32, 64, 112, 88, 136
    DUMMY = 137*MB
    G.srd(S_A, P_WQ, 4*MB)
    e(f"""
    s_sub_u32 s{sWH}, s{sGRP}, 1                 ; 1 = K, 2 = V
    s_cmp_eq_u32 s{sWH}, 1
    s_cselect_b32 s{S_B}, s{P_WK}, s{P_WV}
    s_cselect_b32 s{S_B+1}, s{P_WK+1}, s{P_WV+1}
    s_mov_b32 s{S_B+2}, {4*MB}
    s_mov_b32 s{S_B+3}, 0x20000
    v_and_b32 v20, 15, v{vLANE}              ; rho
    v_lshrrev_b32 v21, 4, v{vLANE}           ; g
    v_lshlrev_b32 v22, 3, v21
    s_lshl_b32 s{sT0}, s{sRANK}, 8
    s_lshl_b32 s{sT2}, s{sW}, 6
    s_add_u32 s{sT2}, s{sT2}, s{sT0}
    s_lshr_b32 s{sT3}, s{sW}, 1
    s_lshl_b32 s{sT1}, s{sWH}, 1
    s_add_u32 s{sT3}, s{sT3}, s{sT1}
    s_sub_u32 s{sT3}, s{sT3}, 2
    s_lshl_b32 s{sT4}, s{sT3}, 6
    s_add_u32 s{sT4}, s{sT4}, s{sT0}
    s_mul_i32 s{sU}, s{sW}, 40960""")
    e('s_waitcnt vmcnt(0)\ns_barrier'); G.done_add(100, m)
    G.wdma_addr(vW, vW + 2, 8192, 22, 23)
    e(f"v_add_u32 v{vW+2}, s{sU}, v{vW+2}")
    blocks = [(S_B, f"s_add_u32 s{sT5}, s{sT2}, {k*262144}", G.sink_a(k * 8), G.sink_a(k * 8 + 4)) for k in range(16)]
    blocks += [(S_A, f"s_add_u32 s{sT5}, s{sT4}, {k*262144}", G.sink_a(128 + k * 8), G.sink_a(128 + k * 8 + 4)) for k in range(16)]
    G.wdma(blocks, [(sU, i*2048, vW + 2) for i in range(20)], vW, 32, list(range(8)))
    e(f"""s_lshl_b32 s{sT0}, s{sT3}, 11
    s_lshl_b32 s{sT1}, s{sW}, 11
    s_sub_u32 s{sT0}, s{sT0}, s{sT1}
    s_lshl_b32 s{sT1}, s{sWH}, 25
    s_sub_u32 s{sQD}, s{sT0}, s{sT1}""")
    G.stamp(5, True)
    G.census_issue(32, m); G.census_check(32, "L_fb_qkv", False, m)
    G.stamp(6, True)
    e("s_barrier")
    e(f"s_and_b32 s{sT2}, s{sW}, 1\ns_lshl_b32 s{sT3}, s{sT2}, 10\nv_add_u32 v{vO}, s{sT3}, v{vL16}\nv_xor_b32 v{vO+1}, 1024, v{vO}\ns_lshl_b32 s{sT2}, s{sT2}, 8")
    for kl in range(4):
        e(f"""v_add_u32 v23, {4*kl}, v21
        v_xor_b32 v23, v23, v20
        v_lshlrev_b32 v23, 4, v23
        v_lshl_add_u32 v23, v20, 9, v23
        v_add_u32 v{vA+kl}, s{sT2}, v23
        v_xor_b32 v{vA+4+kl}, 256, v{vA+kl}
        v_add_u32 v{vB+kl}, 65536, v{vA+kl}
        v_add_u32 v{vB+4+kl}, 65536, v{vA+4+kl}""")
    e(f"""
    v_mov_b32 v{vONE}, 1
    v_mov_b32 v{vFO}, 0
    v_and_b32 v23, 31, v{vLANE}
    v_lshlrev_b32 v{vFA}, 2, v23
    v_lshlrev_b32 v23, 4, v20
    v_lshl_add_u32 v{vD}, v21, 10, v23
    v_add_u32 v{vD+1}, 3072, v{vD}
    s_lshl_b32 s{sT0}, s{sW}, 13
    s_add_u32 s{sN1}, s{sT0}, {NB}
    s_add_u32 s{sN2}, s{sT0}, {NB + 4*MB}
    s_lshl_b32 s{sT0}, s{sWH}, 25
    s_lshl_b32 s{sT1}, s{sRANK}, 13
    s_add_u32 s{sT0}, s{sT0}, s{sT1}
    s_lshl_b32 s{sW2}, s{sW}, 11
    s_add_u32 s{sT0}, s{sT0}, s{sW2}
    s_add_u32 s{sO1}, s{sT0}, {QKV}
    s_add_u32 s{sO2}, s{sT0}, {QKV + 16*MB}
    s_add_u32 s{sE2}, s{sT0}, {DUMMY}
    s_lshl_b32 s{sT0}, s{sRANK}, 6
    s_lshl_b32 s{sT1}, s{sWH}, 4
    s_add_u32 s{sT0}, s{sT0}, s{sT1}
    s_lshl_b32 s{sT1}, s{sW}, 2
    s_add_u32 s{sT0}, s{sT0}, s{sT1}
    s_add_u32 s{sF1}, s{sT0}, {FQ}
    s_add_u32 s{sF2}, s{sT0}, {FQ + 128*KB}
    s_add_u32 s{sP1}, s{sT0}, {FQ + 256*KB}
    s_mov_b32 s{sP2}, s{sP1}
    s_lshl_b32 s{sT0}, s{sW}, 7
    s_add_u32 s{sFN}, s{sT0}, {FN + 32*KB}
    s_add_u32 s{sBB}, s{sW2}, 65536
    s_mov_b32 s{sU}, 0""")
    F = Fill(a)
    flag = lambda s_: f"buffer_store_dword v{vONE}, v{vFO}, {WS}, s{s_} offen sc1"
    FLD = f"buffer_load_dword v{vFL}, v{vFA}, {WS}, s{sFN} offen sc1"
    def dma(sN, sL):
        o = []
        for q in range(4):
            o.append(f"s_add_u32 m0, s{sL}, {q*8192}\ns_add_u32 s{sT1}, s{sN}, {q*256}")
            o += [f"buffer_load_dwordx4 v{vD+x}, {WS}, s{sT1} offen offset:{x*1024} sc1 lds" for x in range(2)]
        return o
    dma1 = lambda: dma(sN1, sBB) + [f"s_add_u32 s{sN1}, s{sN1}, 32768\ns_xor_b32 s{sBB}, s{sBB}, 32768"]
    dma2 = lambda: dma(sN2, sW2)
    adn2 = f"s_add_u32 s{sN2}, s{sN2}, 32768\ns_add_u32 s{sFN}, s{sFN}, 512"
    def rd(vX, k, n):
        for t in range(2):
            e(f"ds_read_b128 {vr(R0+(n%4)*8+4*t,4)}, v{vX+4*t+(k&3)} offset:{(k>>2)*8192}"); lg.issue(("n", n, t))
    def cvts(isv, ACC):
        PK = PK1 if ACC == ACC1 else PK2
        L = [f"v_cvt_pk_bf16_f32 v{PK+8+r}, v{ACC+16+r}, v{ACC+20+r}" for r in range(4)]
        if not isv: return L + [f"v_cvt_pk_bf16_f32 v{PK+4*x+r}, v{ACC+8*x+r}, v{ACC+8*x+4+r}" for x in range(2) for r in range(4)]
        L += [f"v_cvt_pk_bf16_f32 v{PK+4*x+r}, v{ACC+4*x+r}, v{ACC+8+4*x+r}" for x in range(2) for r in range(4)]
        return L + [f"v_alignbit_b32 v{PK+r}, v{PK+r}, v{PK+r}, s{sROT}" for r in range(8)]
    def stores(isv, sO, PK):
        L = [f"s_add_u32 s{sT0}, s{sO}, s{sQD}", f"buffer_store_dwordx4 {vr(PK+8,4)}, v{vO}, {WS}, s{sT0} offen sc1"]
        for x in range(2):
            L.append(f"buffer_store_dwordx4 {vr(PK+4*x,4)}, v{vL16}, {WS}, s{sO} offen offset:{x*1024} sc1" if isv else
                     f"buffer_store_dwordx4 {vr(PK+4*x,4)}, v{vO+x}, {WS}, s{sO} offen sc1")
        return L
    sROT = 85
    e(f"s_and_b32 s{sROT}, s{sW}, 1\ns_lshl_b32 s{sROT}, s{sROT}, 4")
    def compute(isv, vX, ACC, n0, hooks, nxt=None, pre=True, keep=False):
        if pre: rd(vX, 0, n0); rd(vX, 1, n0 + 1)
        for k in range(16):
            if k in hooks: hooks[k]()
            if k + 2 < 16: rd(vX, k + 2, n0 + k + 2)
            elif nxt is not None: rd(nxt, k - 14, n0 + k + 2)
            n = n0 + k
            for t in range(2):
                lg.wait(("n", n, t))
                nf = vr(R0 + (n % 4) * 8 + 4 * t, 4)
                for j in range(2):
                    acc = vr(ACC + (t * 2 + j) * 4, 4); wf = ar(k * 8 + j * 4, 4)
                    c = "0" if k == 0 else acc
                    sl = 0 if (t, j) == (1, 1) else 3
                    if isv: F.mf(f"{MF} {acc}, {nf}, {wf}, {c}", sl, 2)
                    else:   F.mf(f"{MF} {acc}, {wf}, {nf}, {c}", sl, 2)
                if t == 0:
                    for j in range(2):
                        acc = vr(ACC + 16 + j * 4, 4)
                        F.mf(f"{MF} {acc}, {ar(128 + k*8 + j*4, 4)}, {nf}, {'0' if k == 0 else acc}", 3 - j, 2)
        if not keep: F.flush()
    tog = [f"v_xor_b32 v{vB+i}, 32768, v{vB+i}" for i in range(8)]
    adv1 = f"s_mov_b32 s{sP1}, s{sF1}\ns_add_u32 s{sO1}, s{sO1}, 262144\ns_add_u32 s{sF1}, s{sF1}, 2048"
    e(f"s_cmp_eq_u32 s{sWH}, 2\ns_cbranch_scc1 L_qkv_v_{m}")
    for isv in (False, True):
        T = f"{'v' if isv else 'k'}_{m}"
        if isv: e(f"L_qkv_v_{m}:")
        e("\n".join(dma1()))
        e(f"L_qkv_p1_{T}:\ns_waitcnt vmcnt(0)\n{flag(sP1)}\ns_barrier")
        G.stamp(0)
        lg.set([]); F.mem(*dma1())
        compute(isv, vB, ACC1, 0, {})
        e("\n".join(cvts(isv, ACC1) + stores(isv, sO1, PK1) + tog) + f"\n{adv1}\ns_add_u32 s{sU}, s{sU}, 1")
        G.stamp(4); G.stamp(9, True); G.ts_flush(sU, 250)
        e(f"s_cmp_lt_u32 s{sU}, {P}\ns_cbranch_scc1 L_qkv_p1_{T}\n{FLD}\ns_waitcnt vmcnt(0)\n{flag(sP1)}\ns_barrier\n" + "\n".join(dma1()))
        e(f"s_mov_b32 s{sE1}, s{sE2}\ns_mov_b32 s{sQ1}, s{sP2}")
        lg.set([]); rd(vB, 0, 0); rd(vB, 1, 1)
        Lsp, Lgo = a.lab("L_spin"), a.lab("L_go")
        e(f"L_qkv_loop_{T}:")
        G.stamp(0)
        d2 = dma2()
        VG = G.opt.get("vg", 5)
        def h0():
            e(f"s_waitcnt vmcnt(8)\nv_cmp_eq_u32 s[{sISS}:{sISS+1}], 0, v{vFL}")
            G.stamp(5); F.vgap = 4; F.add(*cvts(isv, ACC2)); F.mem(*d2[:6])
        def h2a(): assert not F.q; e("s_barrier"); F.vgap = VG; F.mem(*stores(isv, sE2, PK2), *d2[6:], *stores(isv, sE1, PK1))
        def h14():
            F.flush()
            e(f"s_cmp_lg_u32 s{sISS}, 0\ns_cbranch_scc1 {Lsp}\n{Lgo}:"); G.stamp(1); G.stamp(10, True)
            e(f"s_waitcnt vmcnt(7)\ns_barrier\n{flag(sP2)}\n{adn2}")
        hk = {0: h0, 3: h2a, 14: h14}
        if G.opt.get("c1s"):
            hk[3] = lambda: (G.stamp(7), h2a(), G.stamp(8)); hk[G.opt["c1s"]] = lambda: G.stamp(6)
        compute(isv, vB, ACC1, 0, hk, nxt=vA, pre=False)
        G.stamp(2)
        def h2(): F.add(*cvts(isv, ACC1), *tog, f"s_mov_b32 s{sE1}, s{sO1}", adv1)
        def h4(): e(FLD)
        def h6():
            assert not F.q
            st = (lambda k: None) if G.opt.get("c1s") else G.stamp
            st(7); e(f"s_waitcnt vmcnt(2)\ns_barrier\n{flag(sQ1)}\ns_mov_b32 s{sQ1}, s{sP1}"); st(8); G.ts_store(250)
            F.vgap = VG; F.mem(*dma1())
        def h12(): e("s_barrier"); G.opt.get("c1s") or G.stamp(6)
        compute(isv, vA, ACC2, 16, {2: h2, G.opt.get("fk", 4): h4, 6: h6, 12: h12}, nxt=vB, pre=False)
        G.stamp(3); G.stamp(11, True)
        adv2 = f"""s_mov_b32 s{sE2}, s{sO2}
        s_mov_b32 s{sP2}, s{sF2}
        s_add_u32 s{sO2}, s{sO2}, 262144
        s_add_u32 s{sF2}, s{sF2}, 2048
        s_add_u32 s{sU}, s{sU}, 1"""
        e(adv2)
        G.stamp(4); G.stamp(9, True); G.ts_flush(sU, 250, store=False)
        e(f"s_cmp_lt_u32 s{sU}, 64\ns_cbranch_scc1 L_qkv_loop_{T}")
        e("\n".join(stores(isv, sE1, PK1)) + f"\ns_mov_b32 s{sP1}, s{sQ1}")
        e(f"L_qkv_p3_{T}:")
        e("\n".join(cvts(isv, ACC2) + stores(isv, sE2, PK2)))
        e(f"{FLD}\ns_waitcnt vmcnt(0) lgkmcnt(0)\n{flag(sP2)}\n{flag(sP1)}\ns_cmp_eq_u32 s{sU}, {64 + P}\ns_cbranch_scc1 {G.endlab}")
        L3, L3o = a.lab("L_p3"), a.lab("L_p3o")
        e(f"s_barrier\n{L3}:\nv_cmp_eq_u32 vcc, 0, v{vFL}\ns_cbranch_vccz {L3o}"); G.timeout()
        e(f"{FLD}\ns_waitcnt vmcnt(0)\ns_branch {L3}\n{L3o}:")
        G.stamp(0); G.stamp(1); G.stamp(10, True)
        e("\n".join(dma2()) + f"\n{adn2}\ns_waitcnt vmcnt(6)\ns_barrier")
        G.stamp(2)
        lg.set([])
        compute(isv, vA, ACC2, 0, {k: (lambda n=n: e(f"s_waitcnt vmcnt({n})\ns_barrier")) for k, n in ((2, 4), (6, 2), (10, 0))})
        G.stamp(3); G.stamp(11, True)
        e(adv2)
        G.stamp(4); G.stamp(9, True); G.ts_flush(sU, 250)
        e(f"s_branch L_qkv_p3_{T}")
        Ls2 = a.lab("L_spin2")
        e(f"{Lsp}:\n{FLD}\ns_waitcnt vmcnt(0)\n{flag(sP2)}\n{flag(sQ1)}\n{Ls2}:\nv_cmp_eq_u32 vcc, 0, v{vFL}\ns_cbranch_vccz {Ls2}o"); G.timeout(0)
        e(f"{FLD}\ns_waitcnt vmcnt(0)\ns_branch {Ls2}\n{Ls2}o:")
        if G.ts: e("s_add_u32 s73, s73, 1")
        e("\n".join(dma2()) + f"\ns_waitcnt vmcnt(4)\ns_branch {Lgo}")
    if m == "L": G.far_fallback("L_fb_qkv")
```

```python
import sys
from asmlib import *

KNAME = "interleave_layers__memory_aug_recurrent_mem_tr__glu_gated_swiglu__prompt_kernel"
KB = 1024; MB = 1 << 20
FN    = 16 * KB
FQ    = 128 * KB
MEMR  = 512 * KB
CPART = 1 * MB
APART = 2 * MB
NB    = 10 * MB
XB    = 18 * MB
KMVM  = 24 * MB
QKV   = 40 * MB
TSB   = 140 * MB
WS_BYTES = 268435456

S_WS, S_DBG, S_A, S_B, S_C, S_D = 4, 8, 12, 16, 20, 24
sW, sXCC, sRANK, sGRP, sTO = 32, 33, 34, 35, 36
P_X, P_MEM0, P_WQ, P_WK, P_WV, P_WO = 48, 50, 52, 54, 56, 58
P_W1, P_W3, P_W2, P_OUT, P_DBG, P_WSP = 64, 66, 68, 70, 72, 74
sT0, sT1, sT2, sT3, sT4, sT5 = 40, 41, 42, 43, 44, 45
sPLO, sPHI = 46, 47
vTID, vLANE, vL16 = 0, 1, 2
XV = 32

class Gen:
    def __init__(self, LAG=14, roles="cqaf", force_fallback=False, ts='', emit_global=True, dbgdump=False, opt=None):
        self.a = Asm(); self.LAG = LAG; self.roles = roles; self.ff = force_fallback; self.ts = ts
        self.emit_global = emit_global; self.endlab = 'L_end0'; self.vxk = 5; self.P = LAG; self.opt = opt or {}; self.dbgdump = dbgdump
    def e(self, s): self.a.e(s)
    def srd(self, d, p, nbytes):
        self.e(f"s_mov_b32 s{d}, s{p}\ns_mov_b32 s{d+1}, s{p+1}\ns_mov_b32 s{d+2}, {nbytes}\ns_mov_b32 s{d+3}, 0x20000")
    def timeout(self, cnt=None):
        if self.ts and cnt is not None: self.e(f"s_add_u32 s{72+cnt}, s{72+cnt}, 1")
        self.e(f"s_sub_u32 s{sTO}, s{sTO}, 1\ns_cbranch_scc1 {self.endlab}")
    def row_sum(self, v, op="v_add_f32"):
        for r in (8, 4, 2, 1):
            self.e(f"{op}_dpp v{v}, v{v}, v{v} row_ror:{r} row_mask:0xf bank_mask:0xf")
    def x16(self, v, t, op="v_add_f32"):
        self.e(f"v_mov_b32 v{t}, v{v}\nv_permlane16_swap_b32 v{v}, v{t}\n{op} v{v}, v{v}, v{t}")
    def x32(self, v, t, op="v_add_f32"):
        self.e(f"v_mov_b32 v{t}, v{v}\nv_permlane32_swap_b32 v{v}, v{t}\n{op} v{v}, v{v}, v{t}")

    def prologue(self):
        e = self.e
        e(f"""
        s_cmp_ge_u32 s2, 256
        s_cbranch_scc1 L_end0
        s_load_dwordx16 s[48:63], s[0:1], 0
        s_load_dwordx8 s[64:71], s[0:1], 64
        s_load_dwordx4 s[72:75], s[0:1], 96
        s_getreg_b32 s{sXCC}, hwreg(HW_REG_XCC_ID, 0, 4)
        v_lshrrev_b32 v3, 6, v0
        v_and_b32 v{vLANE}, 63, v0
        v_readfirstlane_b32 s{sW}, v3
        v_lshlrev_b32 v{vL16}, 4, v{vLANE}
        s_and_b32 s{sXCC}, s{sXCC}, 7
        s_mov_b32 s{sTO}, 0x100000
        s_mov_b32 s{sPLO}, 0x05040100
        s_mov_b32 s{sPHI}, 0x07060302
        s_waitcnt lgkmcnt(0)""")
        self.srd(S_WS, P_WSP, WS_BYTES); self.srd(S_DBG, P_DBG, 256)
        if self.ts:
            e("s_memrealtime s[98:99]\ns_memrealtime s[96:97]\ns_waitcnt lgkmcnt(0)\ns_mov_b32 s3, s96")
        e(f"""
        s_cmp_lg_u32 s{sW}, 0
        s_cbranch_scc1 L_noatom
        v_mov_b32 v4, 1
        s_lshl_b32 s{sT3}, s{sXCC}, 5
        v_mov_b32 v5, s{sT3}
        s_mov_b64 exec, 1
        buffer_atomic_add v4, v5, s[{S_DBG}:{S_DBG+3}], 0 offen sc0
        s_mov_b64 exec, -1
        L_noatom:""")
        self.n1_part()
        e(f"""s_cmp_lg_u32 s{sW}, 0
        s_cbranch_scc1 L_norank
        v_mov_b32 v5, 0
        s_mov_b64 exec, 1
        ds_write_b32 v5, v4
        s_mov_b64 exec, -1
        s_waitcnt lgkmcnt(0)
        L_norank:
        s_barrier
        v_mov_b32 v5, 0
        ds_read_b32 v4, v5
        s_waitcnt lgkmcnt(0)
        v_readfirstlane_b32 s{sRANK}, v4
        s_mov_b32 s{sGRP}, s{sXCC}
        s_barrier
        s_cmp_ge_u32 s{sRANK}, 32
        s_cbranch_scc1 L_wait_fallback""")
        if self.ff: e("s_branch L_wait_fallback")
        self.dispatch("L")
        e("L_wait_fallback:\ns_waitcnt vmcnt(0)\ns_barrier")
        self.done_add(4, "L")
        self.census_issue(4); self.census_check(4, None)
        e("L_fallback:")
        if self.emit_global:
            e(f"""s_waitcnt vmcnt(0) lgkmcnt(0)
            s_barrier
            s_lshr_b32 s{sGRP}, s2, 5
            s_and_b32 s{sRANK}, s2, 31""")
            self.dispatch("G")
        else:
            e("s_endpgm")
    def n1_part(self):
        e = self.e; d = XV + 16; t = XV + 24
        self.srd(S_A, P_X, 2 * MB)
        e(f"""s_lshl_b32 s{sT0}, s2, 2
        s_add_u32 s{sT0}, s{sT0}, s{sW}
        s_lshl_b32 s{sT1}, s{sT0}, 10""")
        for k in range(2):
            e(f"s_add_u32 s{sT2}, s{sT1}, {k*MB}\nbuffer_load_dwordx4 {vr(XV+4*k,4)}, v{vL16}, s[{S_A}:{S_A+3}], s{sT2} offen")
        e(f"""v_mov_b32 v{d}, 0
        v_mov_b32 v{d+1}, 0
        v_lshlrev_b32 v{t}, 3, v{vLANE}
        s_lshl_b32 s{sT2}, s{sT0}, 9
        buffer_store_dwordx2 {vr(d,2)}, v{t}, s[{S_WS}:{S_WS+3}], s{sT2} offen sc1
        s_add_u32 s{sT1}, s{sT1}, {NB}
        s_bfe_u32 s{sT0}, s{sT0}, 0x40001
        v_xor_b32 v{t+3}, s{sT0}, v{vLANE}
        v_lshlrev_b32 v{t+3}, 4, v{t+3}""")
        for k in range(2):
            src = XV + 4*k
            e("s_waitcnt vmcnt(2)")
            for i in range(4):
                e(f"v_lshlrev_b32 v{d+2*i}, 16, v{src+i}\nv_and_b32 v{d+2*i+1}, 0xffff0000, v{src+i}")
            e(f"v_add_f32 v{t}, v{d}, v{d+1}")
            for i in range(2, 8): e(f"v_add_f32 v{t}, v{t}, v{d+i}")
            self.row_sum(t); self.x16(t, t + 1); self.x32(t, t + 1)
            e(f"v_mul_f32 v{t}, 0x3b000000, v{t}")
            for i in range(8): e(f"v_sub_f32 v{d+i}, v{d+i}, v{t}")
            e(f"v_mul_f32 v{t+2}, v{d}, v{d}")
            for i in range(1, 8): e(f"v_fmac_f32 v{t+2}, v{d+i}, v{d+i}")
            self.row_sum(t + 2); self.x16(t + 2, t + 1); self.x32(t + 2, t + 1)
            e(f"v_mov_b32 v{t+1}, 0x3727c5ac\nv_fmac_f32 v{t+1}, 0x3b000000, v{t+2}\nv_rsq_f32 v{t+1}, v{t+1}")
            for i in range(8): e(f"v_mul_f32 v{d+i}, v{d+i}, v{t+1}")
            for i in range(4): e(f"v_cvt_pk_bf16_f32 v{src+i}, v{d+2*i}, v{d+2*i+1}")
            e(f"buffer_store_dwordx4 v[{src}:{src+3}], v{t+3}, s[{S_WS}:{S_WS+3}], s{sT1} offen sc1\ns_add_u32 s{sT1}, s{sT1}, {MB}")
    def done_add(self, v, m):
        L = self.a.lab("L_da")
        self.e(f"""s_cmp_lg_u32 s{sW}, 0
        s_cbranch_scc1 {L}
        v_mov_b32 v{v}, 1
        s_lshl_b32 s{sT0}, s{sXCC}, 5
        v_mov_b32 v{v+1}, s{sT0}
        s_mov_b64 exec, 1
        buffer_atomic_add v{v}, v{v+1}, s[{S_DBG}:{S_DBG+3}], 0 offen offset:{4 if m == "L" else 12}
        s_mov_b64 exec, -1
        {L}:""")
    def warm(self, idx_expr, nwg, XV):
        if not self.opt.get("warm", 1): return
        e = self.e; per = -(-4096 // (nwg * 4))
        e(f"{idx_expr}\ns_lshl_b32 s{sT0}, s{sT0}, 2\ns_add_u32 s{sT0}, s{sT0}, s{sW}\ns_mul_i32 s{sT0}, s{sT0}, {per*1024}")
        for p in (P_WK, P_WV, P_WQ, P_WO):
            self.srd(S_A, p, 4*MB)
            for i in range(per):
                if i % 4 == 0: e(f"s_add_u32 s{sT1}, s{sT0}, {i*1024}")
                e(f"buffer_load_dwordx4 v[{XV}:{XV+3}], v{vL16}, s[{S_A}:{S_A+3}], s{sT1} offen offset:{(i%4)*1024}")
    def dispatch(self, m):
        e = self.e
        tab = self.opt.get("map", 2)
        T = {0: [(g, h) for g in range(8) for h in range(2)],
             1: [(0, 0), (0, 1), (1, 0), (1, 1), (2, 0), (4, 0), (2, 1), (5, 0), (3, 0), (4, 1), (3, 1), (5, 1), (6, 0), (7, 0), (6, 1), (7, 1)],
             2: [(0, 0), (0, 1), (1, 0), (1, 1), (2, 0), (4, 0), (2, 1), (6, 0), (3, 0), (4, 1), (3, 1), (6, 1), (5, 0), (7, 0), (5, 1), (7, 1)]}[tab]
        word = sum((g*2 + h) << (4*i) for i, (g, h) in enumerate(T))
        e(f"""s_lshl_b32 s{sT0}, s{sGRP}, 1
        s_lshr_b32 s{sT1}, s{sRANK}, 4
        s_add_u32 s{sT0}, s{sT0}, s{sT1}
        s_lshl_b32 s{sT0}, s{sT0}, 2
        s_mov_b32 s{sT2}, {word & 0xffffffff}
        s_mov_b32 s{sT3}, {word >> 32}
        s_lshr_b64 s[{sT2}:{sT3}], s[{sT2}:{sT3}], s{sT0}
        s_bfe_u32 s{sGRP}, s{sT2}, 0x30001
        s_and_b32 s{sT2}, s{sT2}, 1
        s_lshl_b32 s{sT2}, s{sT2}, 4
        s_and_b32 s{sRANK}, s{sRANK}, 15
        s_or_b32 s{sRANK}, s{sRANK}, s{sT2}""")
        e(f"s_cmp_le_u32 s{sGRP}, 1\ns_cbranch_scc1 L_go_chain_{m}")
        e(f"s_cmp_le_u32 s{sGRP}, 3\ns_cbranch_scc1 L_go_qkv_{m}")
        e(f"s_bitcmp1_b32 s{sGRP}, 0\ns_cbranch_scc1 L_go_ffn_{m}")
        for r in ("att", "chain", "qkv", "ffn"):
            if r != "att": e(f"L_go_{r}_{m}:")
            if r[0] in self.roles:
                e(f"s_getpc_b64 s[{sT0}:{sT0+1}]\nL_pc_{r}_{m}:\ns_add_u32 s{sT0}, s{sT0}, R_{r}_{m}-L_pc_{r}_{m}\ns_addc_u32 s{sT0+1}, s{sT0+1}, 0\ns_setpc_b64 s[{sT0}:{sT0+1}]")
            else:
                e("s_endpgm")
    def census_ld(self, v, m):
        if m == "L": return f"buffer_load_dwordx2 v[{v}:{v+1}], v{v+2}, s[{S_DBG}:{S_DBG+3}], 0 offen sc1"
        return f"buffer_load_dword v{v+1}, v{v+2}, s[{S_DBG}:{S_DBG+3}], 0 offen offset:12 sc1"
    def census_issue(self, v, m="L"):
        self.e(f"v_lshlrev_b32 v{v+2}, 5, v{vLANE}\n" + self.census_ld(v, m))
    def census_check(self, v, fail, waited=False, m="L"):
        e = self.e; L = self.a.lab("L_cen"); Lok = self.a.lab("L_cenok")
        if not waited: e("s_waitcnt vmcnt(0)")
        e(f"{L}:\ns_mov_b32 s{sT0}, 0")
        for l in range(8):
            e(f"v_readlane_b32 s{sT1}, v{v+1}, {l}\ns_add_u32 s{sT0}, s{sT0}, s{sT1}")
        e(f"s_cmp_eq_u32 s{sT0}, 256\ns_cbranch_scc1 {Lok}")
        self.timeout()
        e(f"s_sleep 4\n{self.census_ld(v, m)}\ns_waitcnt vmcnt(0)\ns_branch {L}\n{Lok}:")
        if fail and m == "L":
            e(f"v_cmp_ne_u32 vcc, {33 if self.opt.get('failc') else 32}, v{v}\ns_and_b32 s{sT0}, vcc_lo, 0xff\ns_cbranch_scc1 {fail}")
    def ready_add(self, v):
        L = self.a.lab("L_ra")
        self.e(f"""s_cmp_lg_u32 s{sW}, 0
        s_cbranch_scc1 {L}
        v_mov_b32 v{v}, 1
        s_lshl_b32 s{sT0}, s{sGRP}, 5
        v_mov_b32 v{v+1}, s{sT0}
        s_mov_b64 exec, 1
        buffer_atomic_add v{v}, v{v+1}, s[{S_DBG}:{S_DBG+3}], 0 offen offset:8
        s_mov_b64 exec, -1
        {L}:""")
    def ready_wait(self, v, mul=32, add=0):
        L = self.a.lab("L_rw"); Lo = self.a.lab("L_rwo")
        self.e(f"""s_mul_i32 s{sT0}, s{sGRP}, {mul}
        s_add_u32 s{sT0}, s{sT0}, {add}
        v_mov_b32 v{v+1}, s{sT0}
        {L}:
        buffer_load_dword v{v}, v{v+1}, s[{S_DBG}:{S_DBG+3}], 0 offen offset:8 sc1
        s_waitcnt vmcnt(0)
        v_cmp_ne_u32 vcc, 32, v{v}
        s_cbranch_vccz {Lo}""")
        self.timeout()
        self.e(f"s_sleep 2\ns_branch {L}\n{Lo}:")
    def far_fallback(self, name):
        self.e(f"{name}:\ns_getpc_b64 s[{sT0}:{sT0+1}]\n{name}_pc:\ns_add_u32 s{sT0}, s{sT0}, L_fallback-{name}_pc\ns_addc_u32 s{sT0+1}, s{sT0+1}, -1\ns_setpc_b64 s[{sT0}:{sT0+1}]")

    def wstream(self, blocks, stage0, depth, hooks=None):
        e = self.e; hooks = hooks or {}
        n = len(blocks); T = stage0 + 8 * depth
        for b in range(n + depth - 1):
            if b in hooks: hooks[b]()
            if b < n:
                srd, addrs, so, _, _ = blocks[b]
                st = stage0 + 8 * (b % depth)
                e(so)
                for i, (va, imm) in enumerate(addrs):
                    e(f"buffer_load_dword v{st+i}, v{va}, s[{srd}:{srd+3}], s{sT5} offen" + (f" offset:{imm}" if imm else ""))
            c = b - (depth - 1)
            if c >= 0:
                later = min(n - 1, b) - c
                e(f"s_waitcnt vmcnt({8*later})")
                st = stage0 + 8 * (c % depth)
                for p in range(4):
                    e(f"v_perm_b32 v{T+p}, v{st+2*p+1}, v{st+2*p}, s{sPLO}")
                    e(f"v_perm_b32 v{T+4+p}, v{st+2*p+1}, v{st+2*p}, s{sPHI}")
                blocks[c][3](T); blocks[c][4](T + 4)
    def wdma(self, blocks, slots, vD, T, offs, hooks=None, tail=None):
        e = self.e; hooks = hooks or {}; n = len(blocks); ns = len(slots)
        def issue(b):
            srd, so = blocks[b][:2]; sb, off, _ = slots[b % ns]
            e(f"{so}\ns_add_u32 m0, s{sb}, {off}")
            for x in range(2): e(f"buffer_load_dwordx4 v{vD+x}, s[{srd}:{srd+3}], s{sT5} offen offset:{x*1024} lds")
        for b in range(min(ns, n)): issue(b)
        extra = 0
        for c in range(n):
            if c in hooks: hooks[c]()
            e(f"s_waitcnt vmcnt({2*(min(n, c + ns) - 1 - c) + extra})")
            _, off, va = slots[c % ns]
            for i in range(8): e(f"ds_read_b32 v{T+8+i}, v{va} offset:{off + offs[i]*64}")
            for p in range(4):
                e(f"s_waitcnt lgkmcnt({6-2*p})\nv_perm_b32 v{T+p}, v{T+9+2*p}, v{T+8+2*p}, s{sPLO}\nv_perm_b32 v{T+4+p}, v{T+9+2*p}, v{T+8+2*p}, s{sPHI}")
            if c + ns < n: issue(c + ns)
            elif tail: extra += tail(c + ns - n)
            blocks[c][2](T); blocks[c][3](T + 4)
    def wdma_addr(self, vD, vR, stride, rows, tmp):
        self.e(f"""v_lshrrev_b32 v{tmp}, 2, v{vLANE}
        v_mul_u32_u24 v{tmp}, {stride}, v{tmp}
        v_and_b32 v{vD}, 3, v{vLANE}
        v_lshl_add_u32 v{vD}, v{vD}, 4, v{tmp}
        v_add_u32 v{vD+1}, {16*stride - 1024}, v{vD}
        v_and_b32 v{tmp}, 15, v{vLANE}
        v_lshlrev_b32 v{tmp}, 2, v{tmp}
        v_lshl_add_u32 v{vR}, v{rows}, 6, v{tmp}""")
    def sink_a(self, base):
        return lambda T: [self.e(f"v_accvgpr_write_b32 a{base+p}, v{T+p}") for p in range(4)]
    def sink_v(self, base):
        return lambda T: [self.e(f"v_mov_b32 v{base+p}, v{T+p}") for p in range(4)]
    def sink_lds(self, va, off):
        return lambda T: self.e(f"ds_write_b128 v{va}, v[{T}:{T+3}] offset:{off}")

    def dump(self, base, n, slot, scond=None, val=0, cls="v"):
        if not self.dbgdump: return
        L = self.a.lab("L_dump")
        if scond is not None: self.e(f"s_cmp_lg_u32 s{scond}, {val}\ns_cbranch_scc1 {L}")
        self.e(f"""s_lshl_b32 s100, s{sRANK}, 2
        s_add_u32 s100, s100, s{sW}
        s_lshl_b32 s100, s100, 13
        s_add_u32 s100, s100, {TSB + 16*MB + slot*MB}
        s_mov_b64 s[96:97], exec
        s_mov_b64 exec, -1
        s_nop 15
        v_lshrrev_b32 v{vL16}, 2, v{vL16}""")
        for r in range(n):
            self.e(f"buffer_store_dword {cls}{base+r}, v{vL16}, s[{S_WS}:{S_WS+3}], s100 offen offset:{(r%16)*256}")
            if r % 16 == 15: self.e("s_add_u32 s100, s100, 4096")
        self.e(f"v_lshlrev_b32 v{vL16}, 2, v{vL16}\ns_waitcnt vmcnt(0)\ns_mov_b64 exec, s[96:97]\n{L}:")
    def stamp(self, k, real=False):
        if self.ts: self.e(f"{'s_memrealtime' if real else 's_memtime'} s[{48+2*k}:{49+2*k}]")
    def ts_store(self, v):
        if self.ts: self.e(f"s_mov_b64 exec, 0xffff\nbuffer_store_dword v{v}, v{v+1}, s[{S_WS}:{S_WS+3}], s100 offen\ns_mov_b64 exec, -1")
    def ts_flush(self, sitem, v, n=12, store=True):
        if not self.ts: return
        e = self.e
        e("s_waitcnt lgkmcnt(0)")
        for k in range(n): e(f"v_writelane_b32 v{v}, s{48+2*k}, {k}")
        for k in range(4): e(f"v_writelane_b32 v{v}, s{72+k}, {12+k}\ns_mov_b32 s{72+k}, 0")
        e(f"""s_mul_i32 s100, s{sGRP}, 80
        s_add_u32 s100, s100, s{sitem}
        s_lshl_b32 s100, s100, 5
        s_add_u32 s100, s100, s{sRANK}
        s_lshl_b32 s100, s100, 2
        s_add_u32 s100, s100, s{sW}
        s_lshl_b32 s100, s100, 6
        s_add_u32 s100, s100, {TSB}
        v_lshlrev_b32 v{v+1}, 2, v{vLANE}""")
        if store: self.ts_store(v)
    def wb_exit(self, m):
        if m == "L" and self.opt.get("wb", 0) & 1:
            L = self.a.lab("L_wb")
            self.e(f"s_and_b32 s{sT0}, s{sRANK}, 15\ns_or_b32 s{sT0}, s{sT0}, s{sW}\ns_cbranch_scc1 {L}\nbuffer_wbl2 sc1\n{L}:")
    def wb_mid(self, m, sS):
        if m == "L" and self.opt.get("wb", 0) & 2:
            L = self.a.lab("L_wb")
            self.e(f"s_and_b32 s{sT0}, s{sRANK}, 15\ns_cmp_lg_u32 s{sT0}, 15\ns_cbranch_scc1 {L}\ns_cmp_lg_u32 s{sW}, 0\ns_cbranch_scc1 {L}\ns_and_b32 s{sT0}, s{sS}, 62\ns_cmp_lg_u32 s{sT0}, 62\ns_cbranch_scc1 {L}\nbuffer_wbl2 sc1\n{L}:")
    def finish(self):
        e = self.e
        e(f""".section .rodata,"a"
        .p2align 6
        .amdhsa_kernel {KNAME}
        .amdhsa_next_free_vgpr 512
        .amdhsa_next_free_sgpr 102
        .amdhsa_accum_offset 256
        .amdhsa_group_segment_fixed_size 0
        .amdhsa_kernarg_size 112
        .amdhsa_user_sgpr_count 2
        .amdhsa_user_sgpr_kernarg_segment_ptr 1
        .amdhsa_system_sgpr_workgroup_id_x 1
        .end_amdhsa_kernel""")

    def build(self):
        import role_qkv, role_chain, role_att, role_ffn
        e = self.e
        e("""; One persistent launch, one workgroup per CU, weights resident in registers / LDS.
        ; 4/6 token attention + output projection, 5/7 SwiGLU.  Segments flow through the groups via d_ws.
        ; @launch grid=(256,1,1) block=(256,1,1) lds=163840""")
        e(f""".amdgcn_target "amdgcn-amd-amdhsa--gfx950"
        .text
        .globl {KNAME}
        .p2align 8
        .type {KNAME},@function
        {KNAME}:""")
        self.prologue()
        e("L_end0:\ns_endpgm")
        for m in (["L", "G"] if self.emit_global else ["L"]):
            for r, mod in (("chain", role_chain), ("qkv", role_qkv), ("att", role_att), ("ffn", role_ffn)):
                if r[0] in self.roles:
                    e(f".p2align 6\nR_{r}_{m}:")
                    self.endlab = f"L_end_{r}_{m}"
                    tsall = self.ts; self.ts = r[0] in tsall; self.tsi = 'i' in tsall
                    mod.emit(self, m)
                    self.ts = tsall
                    e(f"{self.endlab}:\ns_endpgm")
        self.finish()
        if 'e' in self.ts:
            out = []
            for l in self.a.lines:
                if l.strip() == "s_endpgm" and any(x.startswith("R_") for x in out):
                    out += [x.strip() for x in f"""s_mov_b64 exec, -1
                    s_memrealtime s[94:95]
                    s_lshl_b32 s100, s2, 2
                    s_add_u32 s100, s100, s{sW}
                    s_lshl_b32 s100, s100, 4
                    s_add_u32 s100, s100, {TSB + 8*MB}
                    s_waitcnt lgkmcnt(0)
                    v_mov_b32 v4, s94
                    v_mov_b32 v5, s3
                    v_mov_b32 v6, s{sGRP}
                    v_mov_b32 v7, s{sRANK}
                    v_mov_b32 v3, 0
                    buffer_store_dwordx4 v[4:7], v3, s[{S_WS}:{S_WS+3}], s100 offen""".split(chr(10))]
                out.append(l)
            self.a.lines = out
        return self.a.text()

if __name__ == "__main__":
    import argparse
    ap = argparse.ArgumentParser()
    ap.add_argument("-o", default="k.s"); ap.add_argument("--lag", type=int, default=14); ap.add_argument("--opt", default="")
    ap.add_argument("--roles", default="cqaf"); ap.add_argument("--ff", action="store_true")
    ap.add_argument("--ts", default=""); ap.add_argument("--noglobal", action="store_true"); ap.add_argument("--dump", action="store_true")
    A = ap.parse_args()
    t = Gen(A.lag, A.roles, A.ff, A.ts, not A.noglobal, A.dump, {k: int(v) for k, v in (x.split('=') for x in A.opt.split(',') if x)}).build()
    open(A.o, "w").write(t)
    print(A.o, len(t), "bytes", t.count("\n"), "lines")
```

```python
from asmlib import *
from gen import *
MF = "v_mfma_f32_16x16x32_bf16"
WS = f"s[{S_WS}:{S_WS+3}]"
sS, sL, sSLOT, sXI, sXO, sNO, sFO, sPEND = 37, 38, 39, 28, 29, 30, 31, 76
sCC, sSUB, sTAG = 98, 99, 101
vRHO, vG, vRd, vXo, vNo, vPs, vONE, vST, vSR = 3, 4, 5, 6, 7, 8, 9, 10, 11
sFT = 3
SELA, SELB = 12, 16
STATS = 163840 - 128

class Red:
    def __init__(self, G, m, RL, RD, XR, T, X3, rot):
        self.G, self.m, self.RL, self.RD, self.XR, self.T = G, m, RL, RD, XR, T
        self.LS = "" if m == "L" else " sc1"; self.cold = []
        self.vRe, self.vPt, self.vPv = X3, X3 + 1, X3 + 2; self.rot = rot
    def setup(self):
        G = self.G; e = G.e; T = self.T; vRe, vPt, vPv = self.vRe, self.vPt, self.vPv
        e(f"""
        v_and_b32 v{vRHO}, 15, v{vLANE}
        v_lshrrev_b32 v{vG}, 4, v{vLANE}
        s_and_b32 s{sCC}, s{sRANK}, 15
        s_lshr_b32 s{sSUB}, s{sRANK}, 4
        s_sub_u32 s{sT0}, s{sGRP}, 4
        s_lshl_b32 s{sT0}, s{sT0}, 1
        s_add_u32 s{sT0}, s{sT0}, s{sSUB}
        s_lshl_b32 s{sT0}, s{sT0}, 20
        s_add_u32 s{sSLOT}, s{sT0}, {APART}
        s_lshl_b32 s{sT0}, s{sCC}, 15
        s_lshl_b32 s{sT1}, s{sW}, 8
        s_add_u32 s{sT0}, s{sT0}, s{sT1}
        v_lshlrev_b32 v{T}, 4, v{vRHO}
        v_lshl_add_u32 v{T+1}, v{vG}, 10, v{T}
        v_add_u32 v{vRd}, s{sT0}, v{T+1}
        s_and_b32 s{sFT}, s{sW}, {1 if self.rot else 0}
        s_lshl_b32 s{sT2}, s{sFT}, 14
        v_add_u32 v{vRd}, s{sT2}, v{vRd}
        v_xor_b32 v{vRe}, 16384, v{vRd}
        s_lshl_b32 s{sT0}, s{sCC}, 10
        s_add_u32 s{sT0}, s{sT0}, s{sT1}
        v_lshl_add_u32 v{T+1}, v{vG}, 17, v{T}
        v_add3_u32 v{vPs}, v{T+1}, s{sT0}, 0
        v_add_u32 v{vPs}, s{sT2}, v{vPs}
        v_xor_b32 v{vPt}, 16384, v{vPs}
        v_and_b32 v{T+1}, 1, v{vG}
        v_lshlrev_b32 v{T+1}, 3, v{T+1}
        v_lshrrev_b32 v{T+2}, 1, v{vG}
        v_lshl_add_u32 v{T+1}, v{T+2}, 10, v{T+1}
        s_lshl_b32 s{sT0}, s{sRANK}, 11
        s_add_u32 s{sT0}, s{sT0}, s{sT1}
        v_add3_u32 v{vXo}, v{T}, v{T+1}, s{sT0}
        v_and_b32 v{vPv}, 0xfffffc00, v{vXo}
        v_xor_b32 v{T}, s{sCC}, v{vRHO}
        v_lshlrev_b32 v{T}, 4, v{T}
        v_add3_u32 v{vNo}, v{T}, v{T+1}, s{sT0}
        v_mov_b32 v{vONE}, 1
        v_lshlrev_b32 v{T+2}, 6, v{T+2}
        v_add_u32 v{vSR}, {STATS}, v{T+2}
        s_lshl_b32 s{sT0}, s{sW}, 2
        v_and_b32 v{T+2}, 1, v{vG}
        v_lshlrev_b32 v{T+2}, 4, v{T+2}
        v_add3_u32 v{vST}, v{T+2}, v{vSR}, s{sT0}
        s_mov_b32 s{sS}, s{sSUB}
        s_mov_b32 s{sPEND}, 0
        s_mov_b32 s{sTAG}, 0""")
        e(f"s_lshl_b32 s{sT2}, s{sFT}, 3\nv_xor_b32 v{T+2}, s{sT2}, v{vRHO}")
        for p in range(4):
            for S_, o in ((SELA, 0), (SELB, 8)):
                e(f"""v_mov_b32 v{S_+p}, 0
                v_cmp_eq_u32 vcc, {2*p+o}, v{T+2}
                v_mov_b32 v{T+1}, 0x3f80
                v_cndmask_b32 v{S_+p}, v{S_+p}, v{T+1}, vcc
                v_cmp_eq_u32 vcc, {2*p+1+o}, v{T+2}
                v_mov_b32 v{T+1}, 0x3f800000
                v_cndmask_b32 v{S_+p}, v{S_+p}, v{T+1}, vcc""")
    def start(self, fail):
        G = self.G; T = self.T
        G.e("s_waitcnt vmcnt(0)\ns_barrier"); G.done_add(T + 4, self.m)
        G.warm(f"s_sub_u32 s{sT0}, s{sGRP}, 4\ns_lshl_b32 s{sT0}, s{sT0}, 5\ns_add_u32 s{sT0}, s{sT0}, s{sRANK}", 160, T + 8)
        G.census_issue(T + 4, self.m); G.census_check(T + 4, fail, False, self.m)
    def ring_init(self):
        G = self.G; e = G.e; T = self.T
        for p in range(4): e(f"v_mov_b32 v{T+p}, -1")
        for sl in range(2):
            for j in range(8):
                e(f"s_add_u32 s{sT0}, s{sSLOT}, {sl*512*KB + (j & 3)*4096}\nbuffer_store_dwordx4 {vr(T,4)}, v{vRd if j < 4 else self.vRe}, {WS}, s{sT0} offen{self.LS}")
    def late(self, always=False):
        G = self.G
        if G.opt.get("late", 1):
            Lg = G.a.lab("L_go")
            if not always: G.e(f"s_cmp_eq_u32 s{sL}, 0\ns_cbranch_scc1 {Lg}")
            G.ready_wait(self.T + 4, 0, 0); G.e(f"{Lg}:")
    def flush_pend(self):
        G = self.G; L = G.a.lab("L_np")
        G.e(f"""s_cmp_eq_u32 s{sPEND}, 0
        s_cbranch_scc1 {L}
        s_mov_b64 exec, 3
        buffer_store_dword v{vONE}, v{vL16}, {WS}, s{sPEND} offen sc1
        s_mov_b64 exec, -1
        s_mov_b32 s{sPEND}, 0
        {L}:""")
    def x_load(self, srd):
        return (f"buffer_load_dwordx2 v[{self.XR}:{self.XR+1}], v{vXo}, s[{srd}:{srd+3}], s{sXI} offen sc1\n"
                f"buffer_load_ushort v{self.XR+2}, v{self.vPv}, s[{srd}:{srd+3}], s{sXI} offen sc1")
    def out_pack(self, acc, r, t, pk):
        L = [f"v_cvt_pk_bf16_f32 v{pk+p}, v{acc+8*p+r}, v{acc+8*p+4+r}" for p in range(4)]
        L += [f"v_bfi_b32 v{pk+p}, 1, s{sTAG}, v{pk+p}" for p in range(4)]
        L += [f"s_add_u32 s{sT0}, s{sSLOT}, {2*r*16384}", f"buffer_store_dwordx4 {vr(pk,4)}, v{self.vPt if t else vPs}, {WS}, s{sT0} offen{self.LS}"]
        return "\n".join(L)
    def ld(self, j):
        return [f"s_add_u32 s{sT3}, s{sSLOT}, {(j & 3)*4096}", f"buffer_load_dwordx4 {vr(self.RL+4*j,4)}, v{vRd if j < 4 else self.vRe}, {WS}, s{sT3} offen sc1"]
    def early(self):
        return sum((self.ld(j) for j in range(4)), [])
    def reduce_rows(self, final_label=None, after=None, side=(), cover=None, idle=None):
        G = self.G; e = G.e; a = G.a; RL, RD, XR, T = self.RL, self.RD, self.XR, self.T
        L = a.lab("L_red"); L2 = a.lab("L_red2")
        e("s_waitcnt vmcnt(0)\n" + "\n".join(sum((self.ld(j) for j in range(4, 8)), [])))
        nx = cover() if cover else 0
        RA = T + 8
        def part(js, acc, first):
            e(f"v_mov_b32 v{T}, 0\nv_mov_b32 v{T+1}, -1")
            for j in js:
                if j >= 4: e(f"s_waitcnt vmcnt({7-j+nx})")
                e(f"{MF} {vr(acc,4)}, {vr(SELA if j < 4 else SELB,4)}, {vr(RL+4*j,4)}, {first if j == js[0] else vr(acc,4)}")
                for h in range(2):
                    e(f"v_or3_b32 v{T}, v{T}, v{RL+4*j+2*h}, v{RL+4*j+2*h+1}")
                    e(f"v_bitop3_b32 v{T+1}, v{T+1}, v{RL+4*j+2*h}, v{RL+4*j+2*h+1} bitop3:0x80")
            e(f"v_xor_b32 v{T}, s{sTAG}, v{T}\nv_bitop3_b32 v{T}, v{T}, v{T+1}, s{sTAG} bitop3:0xf6\nv_and_b32 v{T}, 1, v{T}\nv_cmp_ne_u32 vcc, 0, v{T}")
        LA, LA2 = a.lab("L_rea"), a.lab("L_rea2")
        Y = T + 4
        e(f"{LA2}:"); part(range(4), RA, "0"); e(f"s_cbranch_vccnz {LA}")
        e(f"v_lshlrev_b32 v{Y}, 16, v{XR}\nv_and_b32 v{Y+1}, 0xffff0000, v{XR}\nv_lshlrev_b32 v{Y+2}, 16, v{XR+1}\nv_and_b32 v{Y+3}, 0xffff0000, v{XR+1}")
        e(f"{L2}:"); part(range(4, 8), RD, vr(RA, 4)); e(f"s_cbranch_vccnz {L}")
        def slow():
            for lab, js, back in ((LA, range(4), LA2), (L, range(4, 8), L2)):
                e(f"{lab}:"); G.timeout(2)
                e("\n".join(sum((self.ld(j) for j in js), [])) + f"\ns_waitcnt vmcnt(0)\ns_branch {back}")
        self.cold.append(slow)
        G.stamp(6)
        for r in range(4): e(f"v_add_f32 v{Y+r}, v{Y+r}, v{RD+r}")
        e(f"v_cvt_pk_bf16_f32 v{RD}, v{Y}, v{Y+1}\nv_cvt_pk_bf16_f32 v{RD+1}, v{Y+2}, v{Y+3}")
        if after: after()
        if final_label: e(f"s_cmp_eq_u32 s{sL}, 1\ns_cbranch_scc1 {final_label}")
        side = list(side); e0 = e; cnt = [0]; gap = 40 // max(len(side), 1)
        def e(text):
            for l in text.split("\n"):
                e0(l)
                if l.strip().startswith("v_") and "dpp" not in l and "readlane" not in l: cnt[0] += 1
                if side and cnt[0] >= gap and "exec" not in l and not masked[0]: e0(side.pop(0)); cnt[0] = 0
                if "exec" in l: masked[0] = not l.strip().endswith("-1")
        masked = [False]
        e(f"""v_lshlrev_b32 v{T+2}, 16, v{XR+2}
        v_lshlrev_b32 v{Y}, 16, v{RD}
        v_and_b32 v{Y+1}, 0xffff0000, v{RD}
        v_lshlrev_b32 v{Y+2}, 16, v{RD+1}
        v_and_b32 v{Y+3}, 0xffff0000, v{RD+1}""")
        for r in range(4): e(f"v_sub_f32 v{Y+r}, v{Y+r}, v{T+2}")
        e(f"""v_add_f32 v{T}, v{Y}, v{Y+1}
        v_mul_f32 v{T+1}, v{Y}, v{Y}
        v_add_f32 v{T}, v{T}, v{Y+2}
        v_fmac_f32 v{T+1}, v{Y+1}, v{Y+1}
        v_add_f32 v{T}, v{T}, v{Y+3}
        v_fmac_f32 v{T+1}, v{Y+2}, v{Y+2}
        v_fmac_f32 v{T+1}, v{Y+3}, v{Y+3}""")
        for r in (8, 4, 2, 1):
            for x in range(2): e(f"v_add_f32_dpp v{T+x}, v{T+x}, v{T+x} row_ror:{r} row_mask:0xf bank_mask:0xf")
        Z = RL
        e(f"""v_permlane16_swap_b32 v{T}, v{T+1}
        v_add_f32 v{T}, v{T}, v{T+1}""")
        G.stamp(7)
        e(f"ds_write_b32 v{vST}, v{T}")
        if idle: idle()
        e(f"""s_waitcnt lgkmcnt(0)
        s_barrier
        ds_read_b128 {vr(Z,4)}, v{vSR}
        ds_read_b128 {vr(Z+4,4)}, v{vSR} offset:16
        v_mov_b32 v{T+3}, 0x3727c5ac
        s_waitcnt lgkmcnt(1)
        v_add_f32 v{Z}, v{Z}, v{Z+1}
        v_add_f32 v{Z+2}, v{Z+2}, v{Z+3}
        v_add_f32 v{Z}, v{Z}, v{Z+2}
        s_waitcnt lgkmcnt(0)
        v_add_f32 v{Z+4}, v{Z+4}, v{Z+5}
        v_add_f32 v{Z+6}, v{Z+6}, v{Z+7}
        v_mul_f32 v{Z}, 0x3b000000, v{Z}
        v_add_f32 v{Z+4}, v{Z+4}, v{Z+6}
        v_mul_f32 v{Z+4}, 0x3b000000, v{Z+4}
        v_fma_f32 v{Z+4}, -v{Z}, v{Z}, v{Z+4}
        v_max_f32 v{Z+4}, 0, v{Z+4}
        v_add_f32 v{T+3}, v{T+3}, v{Z+4}
        v_rsq_f32 v{T+3}, v{T+3}""")
        for r in range(4): e(f"v_sub_f32 v{Y+r}, v{Y+r}, v{Z}")
        for r in range(4): e(f"v_mul_f32 v{Y+r}, v{Y+r}, v{T+3}")
        e(f"""v_cvt_pk_bf16_f32 v{Z}, v{Y}, v{Y+1}
        v_cvt_pk_bf16_f32 v{Z+1}, v{Y+2}, v{Y+3}
        buffer_store_dwordx2 v[{Z}:{Z+1}], v{vNo}, {WS}, s{sNO} offen sc1
        buffer_store_dwordx2 v[{RD}:{RD+1}], v{vXo}, {WS}, s{sXO} offen sc1
        s_mov_b32 s{sPEND}, s{sFO}""")
        assert not side
    def advance(self):
        self.G.e(f"""s_xor_b32 s{sSLOT}, s{sSLOT}, {512*KB}
        s_add_u32 s{sXI}, s{sXI}, 65536
        s_add_u32 s{sXO}, s{sXO}, 65536
        s_add_u32 s{sNO}, s{sNO}, 65536
        s_add_u32 s{sFO}, s{sFO}, 1024
        s_add_u32 s{sS}, s{sS}, 2
        s_bfe_u32 s{sTAG}, s{sS}, 0x10002""")

def wide_blocks(G, blocks, st0, depth, after_first=None):
    e = G.e; n = len(blocks); Tm = st0 + 32 * depth
    for b in range(n + depth - 1):
        if b < n:
            srd, addrs, so = blocks[b][:3]; st = st0 + 32 * (b % depth)
            e(so)
            for i, (va, imm) in enumerate(addrs):
                e(f"buffer_load_dwordx4 {vr(st+4*i,4)}, v{va}, s[{srd}:{srd+3}], s{sT5} offen" + (f" offset:{imm}" if imm else ""))
        c = b - (depth - 1)
        if c >= 0:
            e(f"s_waitcnt vmcnt({8*(min(n-1, b) - c)})")
            if c == 0 and after_first: after_first()
            st = st0 + 32 * (c % depth); ab, cls = blocks[c][3:]
            for j in range(8):
                for p in range(4):
                    t = Tm + (j * 4 + p) % 8 if cls == "a" else ab + 4*j + p
                    e(f"v_perm_b32 v{t}, v{st+4*(2*p+1)+(j>>1)}, v{st+4*(2*p)+(j>>1)}, s{sPHI if j & 1 else sPLO}")
                    if cls == "a": e(f"v_accvgpr_write_b32 a{ab+4*j+p}, v{t}")
```

```python
from asmlib import *
from gen import *
from red import *

def emit(G, m):
    e = G.e; a = G.a; lg = a.lg; F = Fill(a)
    R = Red(G, m, RL=192, RD=224, XR=228, T=232, X3=252, rot=True); T = R.T
    sQ, sKM, sFL, sBUF, sC, sKM0, sKT, sREL, sBK = 77, 78, 79, 80, 81, 24, 25, 26, 27
    sMK = 82
    vQA, vKMA, vVMA, vZ, vFv, vNEG, vOW, vHA, vFA = 20, 21, 22, 33, 24, 25, 26, 27, 38
    ONES, PZ, P = 28, 32, 40
    Q, K, KM, V, VM, S, O, SU, OF, PK = 44, 60, 92, 108, 140, 156, 168, 200, 204, 220
    BUFSZ, OXB = 49152, 98304
    e(f"s_sub_u32 s{sL}, s{sGRP}, 4\ns_lshr_b32 s{sL}, s{sL}, 1")
    R.setup()
    e(f"""
    s_cmp_eq_u32 s{sL}, 0
    s_cselect_b32 s{S_B}, s{P_X}, s{P_WSP}
    s_cselect_b32 s{S_B+1}, s{P_X+1}, s{P_WSP+1}
    s_cselect_b32 s{S_B+2}, {2*MB}, s{S_WS+2}
    s_mov_b32 s{S_B+3}, 0x20000
    s_cselect_b32 s{sXI}, 0, {XB + 2*MB}
    s_lshl_b32 s{sT0}, s{sL}, 22
    s_add_u32 s{sXO}, s{sT0}, {XB}
    s_add_u32 s{sNO}, s{sT0}, {NB + 2*MB}
    s_lshl_b32 s{sT0}, s{sL}, 16
    s_lshl_b32 s{sT1}, s{sRANK}, 5
    s_add_u32 s{sT0}, s{sT0}, s{sT1}
    s_lshl_b32 s{sT3}, s{sW}, 2
    s_add_u32 s{sT0}, s{sT0}, s{sT3}
    s_add_u32 s{sFO}, s{sT0}, {FN}
    s_lshl_b32 s{sT0}, s{sL}, 6
    s_add_u32 s{sT0}, s{sT0}, s{sSUB}
    s_lshl_b32 s{sT0}, s{sT0}, 5
    s_lshl_b32 s{sT1}, s{sCC}, 1
    s_add_u32 s{sT0}, s{sT0}, s{sT1}
    s_lshl_b32 s{sT1}, s{sT0}, 13
    s_lshl_b32 s{sT2}, s{sW}, 11
    s_add_u32 s{sT1}, s{sT1}, s{sT2}
    s_add_u32 s{sQ}, s{sT1}, {QKV}
    s_lshl_b32 s{sT1}, s{sT0}, 6
    s_add_u32 s{sFL}, s{sT1}, {FQ}
    s_lshr_b32 s{sT2}, s{sW}, 1
    s_lshl_b32 s{sT1}, s{sT2}, 6
    s_add_u32 s{sREL}, s{sFL}, s{sT1}
    s_and_b32 s{sT1}, s{sW}, 1
    s_lshl_b32 s{sT1}, s{sT1}, 2
    s_add_u32 s{sREL}, s{sREL}, s{sT1}
    s_add_u32 s{sREL}, s{sREL}, 48
    s_lshl_b32 s{sT1}, s{sCC}, 1
    s_add_u32 s{sT1}, s{sT1}, s{sT2}
    s_lshl_b32 s{sT1}, s{sT1}, 12
    s_lshl_b32 s{sT2}, s{sL}, 20
    s_add_u32 s{sT1}, s{sT1}, s{sT2}
    s_add_u32 s{sKM0}, s{sT1}, {KMVM}
    v_lshlrev_b32 v{vFA}, 2, v{vLANE}
    s_mov_b32 s{sBUF}, 0
    s_mov_b32 s{sC}, 0x3e0293ee
    v_mov_b32 v{vNEG}, 0xff800000
    s_and_b32 s{sT0}, s{sW}, 1                   ; qt
    s_lshr_b32 s{sT2}, s{sW}, 1                  ; hh
    s_mul_i32 s{sT1}, s{sT2}, 24576
    v_add_u32 v{vHA}, s{sT1}, v{vL16}
    s_lshl_b32 s{sT1}, s{sT0}, 10
    v_add_u32 v{vQA}, s{sT1}, v{vHA}
    v_lshrrev_b32 v{T}, 2, v{vRHO}
    v_and_b32 v{T+1}, 1, v{vRHO}
    v_lshl_add_u32 v{T}, v{T}, 1, v{T+1}
    v_lshlrev_b32 v{T}, 4, v{T}
    v_lshl_add_u32 v{vKMA}, v{vG}, 7, v{T}
    v_lshlrev_b32 v{vVMA}, 3, v{vLANE}
    s_lshl_b32 s{sT1}, s{sW}, 12
    s_add_u32 s{sT1}, s{sT1}, {OXB}
    v_add_u32 v{vOW}, s{sT1}, v{vL16}
    v_lshl_add_u32 v{T}, v{vRHO}, 1, s{sT0}
    v_lshlrev_b32 v{T+1}, 3, v{vG}
    v_sub_u32 v{T}, v{T}, v{T+1}""")
    for t in range(2):
        for r in range(4): e(f"v_cmp_le_i32 s[{sMK+2*(t*4+r)}:{sMK+2*(t*4+r)+1}], {2*r+t}, v{T}")
    for r in range(4): e(f"v_mov_b32 v{ONES+r}, 0x3f803f80")
    for r in list(range(32, 38)) + list(range(VM, VM + 16)): e(f"v_mov_b32 v{r}, 0")
    R.start("L_fb_att")
    for p in range(4): e(f"v_mov_b32 v{T+p}, -1")
    e(f"s_and_b32 s{sT1}, s{sW}, 1\ns_lshl_b32 s{sT1}, s{sT1}, 11\ns_lshl_b32 s{sT2}, s{sSUB}, 17\ns_add_u32 s{sT2}, s{sT2}, s{sT1}\ns_add_u32 s{sT2}, s{sT2}, s{sKM0}")
    for n in range(4):
        for x in range(2): e(f"buffer_store_dwordx4 {vr(T,4)}, v{vL16}, {WS}, s{sT2} offen offset:{x*1024} sc1")
        e(f"s_add_u32 s{sT2}, s{sT2}, 262144")
    R.ring_init()
    REL = f"buffer_store_dword v{vONE}, v{vZ}, {WS}, s{sREL} offen sc1\ns_add_u32 s{sREL}, s{sREL}, 4096"
    R.late()
    def armed():
        e("s_barrier"); G.ready_add(T + 4)
        for n in range(4): e(REL)
    G.srd(S_C, P_WO, 4*MB)
    e(f"""
    s_lshl_b32 s{sT0}, s{sCC}, 18
    s_lshl_b32 s{sT1}, s{sW}, 8
    s_add_u32 s{sT0}, s{sT0}, s{sT1}
    v_lshlrev_b32 v240, 4, v{vRHO}
    v_lshl_add_u32 v240, v{vG}, 13, v240
    v_add_u32 v240, s{sT0}, v240
    v_add_u32 v241, 4096, v240
    s_lshr_b32 s{sT4}, s{sW}, 1
    s_lshl_b32 s{sT4}, s{sT4}, 17""")
    wide_blocks(G, [(S_C, [(240 + (i >> 2), (i & 3) * 1024) for i in range(8)], f"s_xor_b32 s{sT5}, s{sT4}, {b*32768}", b*32, "a") for b in range(8)], 44, 4, armed)
    G.ready_wait(T + 4)
    for r in range(VM, VM + 16): e(f"v_mov_b32 v{r}, 0")
    FLD = f"buffer_load_dword v{vFv}, v{vFA}, {WS}, s{sFL} offen sc1"
    KP = 240
    def fl_check():
        L = a.lab("L_sp"); Lo = a.lab("L_spo")
        e(f"v_cmp_eq_u32 vcc, 0, v{vFv}\ns_and_b32 s{sT0}, vcc_lo, 0x0ff00ff0\ns_cbranch_scc1 {L}\n{Lo}:")
        def slow():
            e(f"{L}:\ns_cmp_ge_u32 s{sS}, 62\ns_cbranch_scc1 {Lo}"); G.timeout(0, far=True)
            e(f"{FLD}\ns_waitcnt vmcnt(0)\nv_cmp_eq_u32 vcc, 0, v{vFv}\ns_and_b32 s{sT0}, vcc_lo, 0x0ff00ff0\ns_cbranch_scc1 {L}\ns_branch {Lo}")
        R.cold.append(slow)
    KMS = lambda d: f"s_add_u32 s{sT1}, s{sS}, {d}\ns_bfe_u32 s{sKT}, s{sT1}, 0x10003\ns_and_b32 s{sT1}, s{sT1}, 7\ns_lshl_b32 s{sT1}, s{sT1}, 17\ns_add_u32 s{sKM}, s{sT1}, s{sKM0}"
    KMP = "\n".join(f"buffer_load_dwordx4 {vr(KM+4*w,4)}, v{vKMA}, {WS}, s{sKM} offen offset:{w*512} sc1" for w in range(4))
    VMP = "\n".join(f"buffer_load_dwordx2 {vr(VM+4*w,2)}, v{vVMA}, {WS}, s{sKM} offen offset:{2048 + w*512} sc1" for w in range(4))
    def tagc(regs, t):
        L = [f"v_bitop3_b32 v{t+i}, v{regs[2*i]}, v{regs[2*i+1]}, s{sKT} bitop3:0x7e" for i in range(len(regs)//2)]
        n = len(regs)//2; j = 1
        while j < n:
            L.append(f"v_or3_b32 v{t}, v{t}, v{t+j}, v{t+min(j+1, n-1)}"); j += 2
        return L + [f"v_and_b32 v{t}, 1, v{t}", f"v_cmp_ne_u32 vcc, 0, v{t}"]
    KMC = tagc(list(range(KM, KM + 16)), O)
    VMC = tagc([VM + 4*w + x for w in range(4) for x in range(2)], O)
    def qkv_dma(out):
        out(f"s_lshl_b32 s{sT2}, s{sW}, 11\ns_add_u32 s{sT2}, s{sT2}, s{sBUF}")
        for hh in range(2):
            for wh in range(3):
                out(f"s_add_u32 m0, s{sT2}, {hh*24576 + wh*8192}\ns_add_u32 s{sT1}, s{sQ}, {wh*32*MB + hh*8192}")
                for t in range(2): out(f"buffer_load_dwordx4 v{vL16}, {WS}, s{sT1} offen offset:{t*1024} sc1 lds")
        out(f"s_add_u32 s{sQ}, s{sQ}, 524288")
    def rd(dst, va, off, tag):
        e(f"ds_read_b128 {vr(dst,4)}, v{va} offset:{off}"); lg.issue(tag)
    S0, S1, S2 = S + 8, S, S + 4
    mx, t0, A0, A1 = 248, 249, 246, 247
    def sx(side=(), bar=True):
        e(("s_barrier\n" if bar else "") + f"v_add_u32 v{A0}, s{sBUF}, v{vHA}\nv_add_u32 v{A1}, s{sBUF}, v{vQA}\ns_xor_b32 s{sBUF}, s{sBUF}, {BUFSZ}")
        lg.set([]); side = list(side)
        for w in range(4):
            rd(Q + 4*w, A1, w*2048, ("q", w)); rd(K + 8*w, A0, 8192 + w*2048, ("k", w)); rd(K + 8*w + 4, A0, 8192 + w*2048 + 1024, ("k", w))
        for w in range(4):
            lg.wait(("k", w))
            for D, A in ((S1, K + 8*w), (S2, K + 8*w + 4)):
                e(f"{MF} {vr(D,4)}, {vr(A,4)}, {vr(Q+4*w,4)}, {'0' if w == 0 else vr(D,4)}")
            if w in (0, 3) and side: e(side.pop(0))
        for w in range(4):
            rd(V + 8*w, A0, 16384 + w*2048, ("v", w)); rd(V + 8*w + 4, A0, 16384 + w*2048 + 1024, ("v", w))
        for t, D in enumerate((S1, S2)):
            for r in range(4): e(f"v_cndmask_b32 v{D+r}, v{vNEG}, v{D+r}, s[{sMK+2*(t*4+r)}:{sMK+2*(t*4+r)+1}]")
            if t == 0 and side: e(side.pop(0))
        e(f"v_max3_f32 v{mx}, v{S1}, v{S1+1}, v{S1+2}\nv_max3_f32 v{t0}, v{S1+3}, v{S2}, v{S2+1}\nv_max3_f32 v{mx}, v{mx}, v{S2+2}, v{S2+3}")
        for x in side: e(x)
        if bar: lg.set([])
    e(f"v_and_b32 v{vFA}, 124, v{vFA}\n{FLD}\ns_waitcnt vmcnt(0)"); fl_check(); qkv_dma(e)
    e(f"s_add_u32 s{sFL}, s{sFL}, 4096\n{KMS(0)}\n{FLD}\n{KMP}\ns_mov_b32 s{sBK}, 0\ns_waitcnt vmcnt(5)")
    SXC = G.opt.get("sxc", 0)
    if SXC: sx(); e("s_waitcnt lgkmcnt(0)")
    else: e("s_barrier")
    e(f"L_att_loop_{m}:")
    G.stamp(0); G.mark(1)
    if not SXC: sx(bar=False)
    Lk, Lko, Lk2, Lv1, Lj = (a.lab(x) for x in ("L_km", "L_kmo", "L_km2", "L_kv", "L_kj"))
    e(f"s_cmp_eq_u32 s{sBK}, 1\ns_cbranch_scc1 {Lv1}\ns_cmp_lt_u32 s{sS}, 2\ns_cbranch_scc1 {Lk}\ns_waitcnt vmcnt(2)\n{Lko}:")
    smm = [f"{MF} {vr(S0,4)}, {vr(KM+4*w,4)}, {vr(Q+4*w,4)}, {'0' if w == 0 else vr(S0,4)}" for w in range(4)]
    F.add(*KMC)
    for x in smm: F.mf(x, 3, 3)
    F.flush()
    e(f"s_cbranch_vccnz {Lk2}\n{Lj}:")
    def slow():
        e(f"{Lk2}:"); G.timeout(1, far=True); e(f"{KMP}\n{Lk}:\ns_waitcnt vmcnt(0)"); R.flush_pend(); e(f"s_branch {Lko}")
        e(f"{Lv1}:\n" + "\n".join(smm) + f"\ns_branch {Lj}")
    R.cold.append(slow)
    G.stamp(1); G.stamp(10, True); G.mark()
    Lx = a.lab("L_vx")
    VREQ = f"s_cmp_eq_u32 s{sBK}, 1\ns_cbranch_scc1 {Lx}\n{VMP}\n{Lx}:"
    if G.opt.get("vq", 1) == 0: e(VREQ)
    e(f"v_max3_f32 v{t0}, v{t0}, v{S0}, v{S0+1}\nv_max_f32 v{mx}, v{mx}, v{t0}")
    G.x16(mx, t0, "v_max_f32"); G.x32(mx, t0, "v_max_f32")
    e(f"v_mul_f32 v{mx}, s{sC}, v{mx}")
    for r in range(10): e(f"v_fma_f32 v{S+r}, v{S+r}, s{sC}, -v{mx}")
    if G.opt.get("vq", 1) == 1: e(VREQ)
    for r in range(10): e(f"v_exp_f32 v{S+r}, v{S+r}")
    for r in range(4): e(f"v_cvt_pk_bf16_f32 v{P+r}, v{S1+r}, v{S2+r}")
    e(f"v_cvt_pk_bf16_f32 v{PZ+3}, v{S0}, v{S0+1}")
    e(f"{MF} {vr(SU,4)}, {vr(ONES,4)}, {vr(P,4)}, 0\n{MF} {vr(SU,4)}, {vr(ONES,4)}, {vr(PZ+2,4)}, {vr(SU,4)}")
    for w in range(4):
        lg.wait(("v", w))
        for j in range(2): F.mf(f"{MF} {vr(O+8*w+4*j,4)}, {vr(V+8*w+4*j,4)}, {vr(P,4)}, 0", 3, 2)
        if w == 2: F.add(f"v_rcp_f32 v{SU}, v{SU}\nv_mul_f32 v{S0}, v{S0}, v{SU}\nv_mul_f32 v{S0+1}, v{S0+1}, v{SU}")
    F.add(f"v_cvt_pk_bf16_f32 v{PZ}, v{S0}, v{S0+1}\nv_cvt_pk_bf16_f32 v{PZ+3}, v{S0}, v{S0+1}")
    F.add(*[f"v_mul_f32 v{O+r}, v{O+r}, v{SU}" for r in range(32)]); F.flush()
    def norm(w):
        for r in range(4): F.add(f"v_cvt_pk_bf16_f32 v{OF+4*w+r}, v{O+8*w+r}, v{O+8*w+4+r}")
        F.add(f"ds_write_b128 v{vOW}, {vr(OF+4*w,4)} offset:{w*1024}")
    Lv, Lvo = a.lab("L_vm"), a.lab("L_vmo")
    VMC = tagc([VM + 4*w + x for w in range(4) for x in range(2)], K)
    Ly = a.lab("L_vy")
    e(f"s_waitcnt vmcnt({2})\ns_cmp_eq_u32 s{sBK}, 1\ns_cbranch_scc1 {Ly}\n{Lvo}:\ns_waitcnt vmcnt(0)\n{Ly}:\n" + "\n".join(VMC) + f"\ns_cbranch_vccnz {Lv}")
    def slow(): e(f"{Lv}:"); G.timeout(3); e(f"{VMP}\ns_branch {Lvo}")
    R.cold.append(slow)
    for w in range(4):
        for j in range(2): F.mf(f"{MF} {vr(O+8*w+4*j,4)}, {vr(VM+4*w,4)}, {vr(PZ+2*j,4)}, {vr(O+8*w+4*j,4)}", 3, 2)
        if w == 2: norm(0)
    F.flush()
    G.stamp(4); G.mark(3)
    ACC = [44, 76]; AR = 108; XA = [None, 244, 245, T]
    lg.set(["ow"])
    def nrm(w):
        for r in range(4): F.add(f"v_cvt_pk_bf16_f32 v{OF+4*w+r}, v{O+8*w+r}, v{O+8*w+4+r}")
        def wr(): e(f"ds_write_b128 v{vOW}, {vr(OF+4*w,4)} offset:{w*1024}"); lg.issue("ow")
        wr.cost = (3, 0); wr.text = "ds_write"; F.add(wr)
    for w in range(1, 4): nrm(w)
    F.add(*[f"v_xor_b32 v{XA[x]}, {x*4096}, v{vOW}" for x in (2, 1, 3)])
    frs = [(b, a_, kd) for b in range(2) for a_ in range(2) for kd in range(4)]
    def ord_(n):
        b, a_, kd = frs[n]
        rd(AR + 4*(n % 3), XA[2*a_ + b], kd*1024, ("o", n))
    AN = G.opt.get("an", 4); EN = G.opt.get("en", 99)
    for n, (t, hh, kd) in enumerate(frs):
        if n == 2: assert not F.q; lg.wait("ow"); e("s_barrier")
        if 4 <= n + 2 < 16: ord_(n + 2)
        if n == 2:
            fl_check()
            F.mem(f"s_cmp_ge_u32 s{sS}, 62\ns_cselect_b32 s{sT2}, 524288, 0\ns_sub_u32 s{sQ}, s{sQ}, s{sT2}")
            Lr_ = a.lab("L_rel")
            e(f"s_cmp_ge_u32 s{sS}, 56\ns_cbranch_scc1 {Lr_}\n{REL}\n{Lr_}:")
            F.mem(f"s_add_u32 s{sFL}, s{sFL}, 4096", R.x_load(S_B)); qkv_dma(F.mem)
            nm = sum(t_.startswith("buffer_") for t_, _ in F.m)
        if n == AN:
            e(f"s_waitcnt vmcnt({nm - sum(t_.startswith('buffer_') for t_, _ in F.m)})"); R.flush_pend()
            G.stamp(2)
        if n == 8: G.stamp(3)
        if 8 <= n < 12: F.add(R.out_pack(ACC[0], n - 8, 0, PK - 4*(n & 1)))
        if n == EN: F.mem(*R.early())
        lg.wait(("o", n))
        A_ = OF + 4*kd if n < 4 else AR + 4*(n % 3)
        for j in range(8):
            D = vr(ACC[t] + 4*j, 4)
            F.mf(f"{MF} {D}, {vr(A_,4)}, {ar((hh*4+kd)*32+4*j,4)}, {'0' if n % 8 == 0 else D}", 3 if j < 7 else 1, 2)
    F.flush()
    for r in range(4): e(R.out_pack(ACC[1], r, 1, PK + 4*(r & 1) - 4))
    if EN > 15: e("\n".join(R.early()))
    G.stamp(5); G.mark(4)
    def cover(): e(KMS(2)); sx(KMP.split("\n")); return 4
    def idle():
        Lr, Ld = a.lab("L_kr"), a.lab("L_kd")
        e(f"s_waitcnt vmcnt(0)\n{FLD}\n" + "\n".join(KMC) + f"\ns_mov_b32 s{sBK}, 0\ns_cbranch_vccnz {Lr}\ns_mov_b32 s{sBK}, 1\n{VMP}\ns_branch {Ld}\n{Lr}:\n{KMP}\n{Ld}:")
    if SXC: R.reduce_rows(cover=cover, idle=idle)
    elif G.opt.get("k1", 0): R.reduce_rows(cover=lambda: (e(f"{KMS(2)}\n{KMP}"), 4)[1], idle=idle)
    else: R.reduce_rows(after=lambda: e(f"{KMS(2)}\n{FLD}"), side=KMP.split("\n"))
    G.stamp(8); G.stamp(11, True); G.mark(2)
    R.advance()
    G.stamp(9)
    if G.ts: e(f"s_sub_u32 s{sT5}, s{sS}, 1"); G.ts_flush(sT5, 250)
    e(f"s_cmp_lt_u32 s{sS}, 64\ns_cbranch_scc1 L_att_loop_{m}\ns_waitcnt vmcnt(0)")
    R.flush_pend()
    G.wb_exit(m)
    e("s_endpgm")
    for f in R.cold: f()
    if m == "L": G.far_fallback("L_fb_att")
```

```python
from asmlib import *
from gen import *
MF = "v_mfma_f32_16x16x32_bf16"
SM = "v_smfmac_f32_16x16x64_bf16"
OFFS = [0, 1, 8, 9, 2, 3, 10, 11]

def emit(G, m):
    e = G.e; a = G.a; vm = a.vm; lg = a.lg
    LS = "" if m == "L" else " sc1"
    WS = f"s[{S_WS}:{S_WS+3}]"
    sI, sK, sV, sTAG, sKM, sFL, sKB, sKM0, sKT = 37, 38, 39, 28, 29, 30, 31, 84, 85
    sPs, sRs, sMr, sMp, sC, sUP, sM2 = 76, 77, 78, 79, 80, 82, 81
    SPLIT = G.opt.get('split', 0)
    vFv, vLW, vLA, vST, vQW, vTR, vTK, vOW, vPst, vPub, vTS, vKM, vVM, vFl, IDX, vKR, vKW, vZ, vTO = 0, 3, 4, 5, 6, 7, 8, 9, 10, 11, 12, 14, 15, 16, 17, 18, 19, 21, 26
    PM, VB, SEL, ONES, VX = 20, 28, 32, 36, 40
    MEM, WR, AV, AQ, AK = 48, 80, 104, 112, 120
    WQ0, WO0 = 128, 192
    LB = 131072; MEMF, QX, KXX, OX, KB0 = 0, 8192, 8192 + 2112, 0, 16384
    F = Fill(a); cold = []
    stamp = G.stamp
    G.srd(S_A, P_WQ, 4*MB); G.srd(S_B, P_WK, 4*MB); G.srd(S_C, P_WV, 4*MB); G.srd(S_D, P_WO, 4*MB)
    sWB, sSC, sCO = 86, 87, 88
    e(f"""
    v_and_b32 v90, 15, v{vLANE}              ; rho
    v_lshrrev_b32 v91, 4, v{vLANE}           ; g
    v_lshrrev_b32 v94, 1, v91
    v_and_b32 v95, 1, v91
    v_lshlrev_b32 v95, 2, v95
    v_lshl_add_u32 v95, v94, 4, v95
    s_lshl_b32 s{sT0}, s{sRANK}, 8
    s_lshl_b32 s{sT1}, s{sW}, 6
    s_add_u32 s{sCO}, s{sT0}, s{sT1}
    s_lshl_b32 s{sT0}, s{sRANK}, 17
    s_lshl_b32 s{sT1}, s{sW}, 8
    s_add_u32 s{sT0}, s{sT0}, s{sT1}
    v_lshlrev_b32 v92, 4, v90
    v_lshl_add_u32 v93, v95, 10, v92
    v_add_u32 v88, s{sT0}, v93
    v_add_u32 v89, 8192, v88
    s_lshl_b32 s{sWB}, s{sW}, 15
    s_lshl_b32 s{sSC}, s{sW}, 13
    s_add_u32 s{sSC}, s{sSC}, {LB}
    v_add_u32 v{vLW}, s{sWB}, v{vL16}""")
    G.wdma_addr(80, 82, 8192, 95, 84)
    e(f"v_add_u32 v83, s{sSC}, v82\nv_add_u32 v82, s{sWB}, v82")
    pos = lambda k, j: (k >> 1) * 16 + j * 8 + (k & 1) * 4
    so = lambda k: f"s_add_u32 s{sT5}, s{sCO}, {k*262144}"
    blocks = [(S_B, so(k), G.sink_a(pos(k, 0)), G.sink_a(pos(k, 1))) for k in range(16)]
    blocks += [(S_C, so(k), G.sink_a(128 + pos(k, 0)), G.sink_a(128 + pos(k, 1))) for k in range(16)]
    blocks += [(S_A, so(k), G.sink_v(WQ0 + 4*k), G.sink_lds(vLW, k*1024)) for k in range(16)]
    slots = [(sWB, 16384 + i*2048, 82) for i in range(8)] + [(sSC, i*2048, 83) for i in range(4)]
    WST = [16, 48]
    def wo_issue(k):
        e(f"s_mov_b32 s{sT5}, {k*32768}")
        for i in range(8): e(f"buffer_load_dwordx4 {vr(WST[k%2]+4*i,4)}, v{88 + (OFFS[i] >> 3)}, s[{S_D}:{S_D+3}], s{sT5} offen offset:{(OFFS[i] & 7)*1024}")
    def wo_take(k):
        st = WST[k % 2]
        for u in range(4):
            for p in range(4): e(f"v_perm_b32 v{WO0+4*(u*4+k)+p}, v{st+4*(2*p+1)+u}, v{st+4*(2*p)+u}, s{sPLO}")
            for p in range(4): e(f"v_perm_b32 v{104+4*(u&1)+p}, v{st+4*(2*p+1)+u}, v{st+4*(2*p)+u}, s{sPHI}")
            e(f"ds_write_b128 v{vLW}, {vr(104+4*(u&1),4)} offset:{16384 + (u*4+k)*1024}")
    e(f"""
    s_lshl_b32 s{sT2}, s{sGRP}, 19
    s_add_u32 s{sPs}, s{sT2}, {CPART}
    s_and_b32 s{sT3}, s{sW}, 1
    s_lshl_b32 s{sT0}, s{sT3}, 17
    s_lshl_b32 s{sT1}, s{sRANK}, 12
    s_add_u32 s{sT0}, s{sT0}, s{sT1}
    s_add_u32 s{sRs}, s{sT0}, s{sPs}
    s_lshl_b32 s{sT2}, s{sGRP}, 14
    s_add_u32 s{sT2}, s{sT2}, {MEMR + 8192}
    s_lshl_b32 s{sT0}, s{sW}, {10 if SPLIT else 11}
    s_add_u32 s{sMr}, s{sT0}, s{sT2}
    s_lshr_b32 s{sT0}, s{sRANK}, 3
    s_lshl_b32 s{sT0}, s{sT0}, 11
    s_lshl_b32 s{sT1}, s{sT3}, 3
    s_add_u32 s{sT0}, s{sT0}, s{sT1}
    s_and_b32 s{sT1}, s{sRANK}, 1
    s_lshl_b32 s{sT1}, s{sT1}, 10
    s_add_u32 s{sT0}, s{sT0}, s{sT1}
    s_bfe_u32 s{sT1}, s{sRANK}, 0x20001
    s_lshl_b32 s{sT1}, s{sT1}, 5
    s_add_u32 s{sT0}, s{sT0}, s{sT1}
    s_add_u32 s{sMp}, s{sT0}, s{sT2}
    v_and_b32 v93, 7, v90
    v_lshlrev_b32 v93, 7, v93
    v_and_b32 v95, 1, v91
    v_lshl_add_u32 v93, v95, 4, v93
    v_lshl_add_u32 v{vPub}, v94, 2, v93
    v_and_b32 v93, 7, v90
    v_lshlrev_b32 v93, 4, v93                    ; (rho&7)*16""")
    Lg = a.lab("L_go")
    e("s_waitcnt vmcnt(0)\ns_barrier"); G.done_add(96, m)
    e(f"s_cmp_eq_u32 s{sGRP}, 0\ns_cbranch_scc1 {Lg}")
    G.warm(f"s_add_u32 s{sT0}, s{sRANK}, 128", 160, 104); G.srd(S_A, P_WQ, 4*MB)
    G.census_issue(96, m); G.census_check(96, "L_fb_chain", False, m)
    if G.opt.get("late", 1): G.ready_wait(96, 0, 0)
    e(f"{Lg}:")
    def h_issue(): G.census_issue(96, m)
    def h_arm():
        G.census_check(96, "L_fb_chain", True, m)
        for r in range(4): e(f"v_mov_b32 v{100+r}, -1")
        e(f"s_lshr_b32 s{sT1}, s{sW}, 1\ns_lshl_b32 s{sT0}, s{sT1}, 18\ns_xor_b32 s{sT0}, s{sT0}, s{sRs}")
        for i in range(4): e(f"buffer_store_dwordx4 v[100:103], v{vL16}, {WS}, s{sT0} offen offset:{i*1024}{LS}")
        e(f"s_lshl_b32 s{sT0}, s{sT1}, 13\ns_xor_b32 s{sT0}, s{sT0}, s{sMp}")
        e(f"buffer_store_dword v100, v{vPub}, {WS}, s{sT0} offen{LS}")
    def h_ready(): e("s_barrier"); G.ready_add(100)
    LBK = G.opt.get('lb', 8)
    def h_first():
        G.srd(S_A, P_MEM0, 8192)
        e(f"""
    v_and_b32 v86, 7, v{vLANE}
    v_lshlrev_b32 v86, 10, v86
    v_lshrrev_b32 v85, 3, v{vLANE}
    v_lshl_add_u32 v85, v85, 4, v86
    s_lshl_b32 s{sT0}, s{sW}, 8
    buffer_load_dwordx4 v[120:123], v85, s[{S_A}:{S_A+3}], s{sT0} offen
    buffer_load_dwordx4 v[124:127], v85, s[{S_A}:{S_A+3}], s{sT0} offen offset:128
    s_lshl_b32 s{sT2}, s{sGRP}, 11
    s_add_u32 s{sT2}, s{sT2}, s{sRANK}
    s_lshl_b32 s{sT0}, s{sT2}, 6
    s_lshl_b32 s{sT1}, s{sW}, 2
    s_add_u32 s{sT0}, s{sT0}, s{sT1}
    s_add_u32 s{sFL}, s{sT0}, {FQ}
    v_and_b32 v85, 1, v{vLANE}
    v_lshlrev_b32 v86, 4, v85
    v_add_u32 v86, 16, v86
    v_lshlrev_b32 v85, 2, v85
    v_subrev_u32 v85, s{sT1}, v85
    v_add_u32 v85, 48, v85
    v_and_b32 v87, 2, v{vLANE}
    v_cmp_eq_u32 vcc, 0, v87
    v_cndmask_b32 v102, v85, v86, vcc
    buffer_load_dword v{vFv}, v102, {WS}, s{sFL} offen sc1
    s_lshl_b32 s{sT0}, s{sT2}, 13
    s_lshl_b32 s{sT1}, s{sW}, 11
    s_add_u32 s{sT0}, s{sT0}, s{sT1}
    s_add_u32 s{sK}, s{sT0}, {QKV + 32*MB}
    s_add_u32 s{sKB}, s{sT1}, {LB + KB0}""")
    def h_k():
        if G.ts: e("s_memrealtime s[52:53]")
        L = a.lab("L_f0"); Lo = a.lab("L_f0o")
        e(f"{L}:\nv_cmp_eq_u32 vcc, 0, v{vFv}\ns_cbranch_vccz {Lo}"); G.timeout(far=True)
        e(f"buffer_load_dword v{vFv}, v102, {WS}, s{sFL} offen sc1\ns_waitcnt vmcnt(0)\ns_branch {L}\n{Lo}:")
        e(f"s_mov_b32 m0, s{sKB}\ns_xor_b32 s{sKB}, s{sKB}, {KB0 ^ (KB0 + 8192)}")
        for t in range(2): e(f"buffer_load_dwordx4 v{vL16}, {WS}, s{sK} offen offset:{t*1024} sc1 lds")
        e(f"s_lshl_b32 s{sT0}, s{sGRP}, 5\nv_mov_b32 v99, s{sT0}\nbuffer_load_dword v103, v99, s[{S_DBG}:{S_DBG+3}], 0 offen offset:8 sc1")
    def tail(x):
        if x in (0, 4): wo_issue(x // 4); return 8
        return 0
    G.wdma(blocks, slots, 80, 104, OFFS, {LBK: h_issue, LBK + 13: h_arm, LBK + 26: h_ready, 35: h_first}, tail)
    e("s_waitcnt vmcnt(8)"); wo_take(0); wo_issue(2)
    e("s_waitcnt vmcnt(8)"); wo_take(1); wo_issue(3)
    e("s_barrier")
    h_k()
    e("s_waitcnt vmcnt(11)"); wo_take(2)
    e("s_waitcnt vmcnt(3)"); wo_take(3)
    e("s_waitcnt vmcnt(0)")
    if G.ts: e("s_memrealtime s[100:101]")
    e(f"""
    s_lshl_b32 s{sT0}, s{sRANK}, 12
    s_lshl_b32 s{sT1}, s{sGRP}, 20
    s_add_u32 s{sT0}, s{sT0}, s{sT1}
    s_lshl_b32 s{sT1}, s{sW}, 9
    s_add_u32 s{sT0}, s{sT0}, s{sT1}
    s_add_u32 s{sKM0}, s{sT0}, {KMVM}
    v_lshl_add_u32 v96, v91, 7, v93              ; g*128 + (rho&7)*16
    s_add_u32 s{sT0}, s{sT1}, {LB + OX}
    v_add_u32 v{vOW}, s{sT0}, v96
    v_lshrrev_b32 v97, 2, v90                    ; rho>>2
    v_and_b32 v98, 1, v90                        ; rho&1
    v_lshl_add_u32 v96, v97, 1, v98
    v_lshlrev_b32 v96, 4, v96
    v_lshl_add_u32 v{vKM}, v91, 7, v96
    v_bfe_u32 v101, v90, 1, 1                    ; half
    v_lshl_add_u32 v{vKM}, v101, 30, v{vKM}
    v_lshlrev_b32 v{vVM}, 3, v{vLANE}
    v_lshl_add_u32 v96, v101, 7, v96
    v_lshl_add_u32 v96, v91, 8, v96
    v_add_u32 v{vLA}, {LB}, v96
    v_add_u32 v{vKR}, {LB + KB0}, v{vL16}
    s_lshl_b32 s{sT0}, s{sW}, 11
    s_add_u32 s{sT0}, s{sT0}, {LB}
    v_add_u32 v{vST}, s{sT0}, v{vL16}
    v_and_b32 v95, 1, v91
    v_lshlrev_b32 v96, 3, v90
    v_lshl_add_u32 v96, v95, 2, v96
    v_mul_u32_u24 v99, 1088, v94
    s_lshl_b32 s{sT0}, s{sW}, 8
    s_add_u32 s{sT0}, s{sT0}, {LB + QX}
    v_add3_u32 v{vQW}, v96, v99, s{sT0}
    v_mul_u32_u24 v96, 192, v91
    v_lshl_add_u32 v96, v90, 3, v96
    s_mul_i32 s{sT0}, s{sW}, 1488
    s_add_u32 s{sT0}, s{sT0}, {LB + KXX}
    v_add_u32 v{vKW}, s{sT0}, v96
    v_lshrrev_b32 v96, 1, v97
    v_lshl_add_u32 v96, v91, 2, v96
    v_lshlrev_b32 v96, 3, v96                    ; (4G + (r>>1))*8
    v_and_b32 v95, 1, v97
    v_lshl_add_u32 v99, v95, 7, v96
    v_mul_u32_u24 v100, 1088, v98
    v_add_u32 v99, v99, v100
    v_add_u32 v{vTR}, {LB + QX}, v99
    v_mul_u32_u24 v99, 784, v95
    v_and_b32 v95, 3, v90
    v_mul_u32_u24 v95, 192, v95
    v_add3_u32 v96, v96, v99, v95
    v_add_u32 v{vTK}, {LB + KXX}, v96
    v_add_u32 v{vTO}, s{sT0}, v96
    v_lshrrev_b32 v95, 3, v90
    v_lshl_add_u32 v96, v91, 1, v95
    v_lshlrev_b32 v96, 12, v96
    s_lshl_b32 s{sT0}, s{sW}, 15
    s_lshl_b32 s{sT1}, s{sRANK}, 7
    s_add_u32 s{sT0}, s{sT0}, s{sT1}
    v_add3_u32 v{vPst}, v96, v93, s{sT0}
    v_mul_u32_u24 v95, 0xaaaa, v101
    v_add_u32 v{IDX}, 0x4444, v95
    s_mov_b32 s{sC}, 0x3e0293ee
    s_mov_b32 s{sUP}, 0
    s_mov_b32 s{sUP+1}, -1
    s_mov_b32 s{sI}, 0
    v_and_b32 v94, 7, v90""")
    for p in range(4):
        e(f"""v_mov_b32 v{SEL+p}, 0
        v_cmp_eq_u32 vcc, {2*p}, v94
        v_mov_b32 v95, 0x3f80
        v_cndmask_b32 v{SEL+p}, v{SEL+p}, v95, vcc
        v_cmp_eq_u32 vcc, {2*p+1}, v94
        v_mov_b32 v95, 0x3f800000
        v_cndmask_b32 v{SEL+p}, v{SEL+p}, v95, vcc
        v_mov_b32 v{ONES+p}, 0x3f803f80""")
    for r in [12, 13, 30, 31] + list(range(20, 26)): e(f"v_mov_b32 v{r}, 0")
    FLD = f"buffer_load_dword v{vFv}, v{vFl}, {WS}, s{sFL} offen sc1"
    def fl_check(first=False):
        L = a.lab("L_fl"); Lo = a.lab("L_flo")
        e(f"v_cmp_eq_u32 vcc, 0, v{vFv}\ns_cbranch_vccnz {L}\n{Lo}:")
        def slow():
            e(f"{L}:")
            if not first: e(f"s_cmp_eq_u32 s{sI}, 63\ns_cbranch_scc1 {Lo}")
            G.timeout(0, far=True)
            e(f"{FLD}\ns_waitcnt vmcnt(0)\nv_cmp_eq_u32 vcc, 0, v{vFv}\ns_cbranch_vccnz {L}\ns_branch {Lo}")
        cold.append(slow)
    def vmop(text, tag):
        def f(): e(text); vm.issue(tag)
        f.cost = Fill.cost(text); f.text = text; return f
    kx_ops = lambda: [f"s_mov_b32 m0, s{sKB}\ns_xor_b32 s{sKB}, s{sKB}, {KB0 ^ (KB0 + 8192)}"] + \
        [vmop(f"buffer_load_dwordx4 v{vL16}, {WS}, s{sK} offen offset:{t*1024} sc1 lds", "kx") for t in range(2)]
    vx_ops = lambda: [vmop(f"buffer_load_dwordx4 {vr(VX+4*t,4)}, v{vL16}, {WS}, s{sV} offen offset:{t*1024} sc1", "vx") for t in range(2)]
    def rdw(kp):
        for h in range(2):
            e(f"ds_read_b128 {vr(WR+8*(kp%3)+4*h,4)}, v{vLW} offset:{(2*kp+h)*1024}"); lg.issue(("w", kp))
    def pre_qk():
        for r in range(AV, 128): e(f"v_mov_b32 v{r}, 0")
        for kp in range(3): rdw(kp)
    for r in range(72, 76): e(f"v_mov_b32 v{r}, 0")
    for i in range(2): e(f"ds_write_b128 v{vST}, v[72:75] offset:{QX + i*1024}")
    e(f"v_mov_b32 v{vFl}, v102")
    for i in range(2): e(f"ds_write_b128 v{vST}, {vr(120+4*i,4)} offset:{MEMF + i*1024}")
    Lr = a.lab("L_rdy")
    e(f"v_cmp_ne_u32 vcc, 32, v103\ns_cbranch_vccz {Lr}"); G.ready_wait(100); e(f"{Lr}:")
    pre_qk()
    e("s_waitcnt lgkmcnt(0)\ns_barrier")
    if SPLIT:
        e(f"""s_lshl_b32 s{sT0}, s{sW}, 10
        v_subrev_u32 v{vST}, s{sT0}, v{vST}
        ds_read_b128 {vr(VX,4)}, v{vST} offset:{MEMF + 4096}
        s_xor_b32 s{sMr}, s{sMr}, 0x2000
        s_add_u32 s{sM2}, s{sMr}, 4096
        s_waitcnt lgkmcnt(0)""")
        for r in range(4): e(f"v_min_u32 v{VX+r}, -2, v{VX+r}")
    if G.ts:
        e("s_waitcnt lgkmcnt(0)\ns_mov_b32 s48, s98\ns_mov_b32 s50, s100"); stamp(11, True); G.ts_flush(sI, vTS, store=False)
    e(f".p2align 5\nL_ch_loop_{m}:")
    vm.set([]); lg.set([])
    stamp(0)
    FLP = G.opt.get('flp', 1)
    SEC = f"buffer_load_dwordx4 {vr(VX,4)}, v{vL16}, {WS}, s{sM2} offen sc1"
    def mrd(kp): e(f"ds_read_b128 {vr(MEM+4*kp,4)}, v{vLA} offset:{MEMF + kp*1024}"); lg.issue(("m", kp))
    for kp in range(4 if SPLIT else 8): mrd(kp)
    if SPLIT:
        L2, L2t = a.lab("L_g1"), a.lab("L_g1t")
        e(f"{L2}:\ns_waitcnt vmcnt(0)\nv_max3_u32 v{VX+4}, v{VX}, v{VX+1}, v{VX+2}\nv_max_u32 v{VX+4}, v{VX+4}, v{VX+3}\nv_cmp_eq_u32 vcc, -1, v{VX+4}\ns_cbranch_vccnz {L2t}")
        def slow(): e(f"{L2t}:"); G.timeout(1); e(f"{SEC}\ns_branch {L2}")
        cold.append(slow)
        e(f"ds_write_b128 v{vST}, {vr(VX,4)} offset:{MEMF + 4096}"); lg.issue("st")
    F.mem(f"s_and_b32 s{sKM}, s{sI}, 7\ns_lshl_b32 s{sKM}, s{sKM}, 17\ns_add_u32 s{sKM}, s{sKM}, s{sKM0}\ns_bfe_u32 s{sKT}, s{sI}, 0x10003",
          f"s_add_u32 s{sFL}, s{sFL}, 2048", *([vmop(FLD, "fl")] if FLP == 0 else []), f"s_add_u32 s{sV}, s{sK}, {32*MB}\ns_add_u32 s{sK}, s{sK}, 262144", *vx_ops())
    s1 = lambda k: stamp(1) if G.opt.get('s1', 0) == k else None
    def mq(kp):
        M = vr(MEM + 4*kp, 4)
        lg.wait(("m", kp))
        F.mf(f"{SM} {vr(AQ,4)}, {M}, {vr(WQ0+8*kp,8)}, v{IDX}", 2, 1)
        lg.wait(("w", kp))
        e(f"{SM} {vr(AQ+4,4)}, {M}, {vr(WR+8*(kp%3),8)}, v{IDX}")
        if kp + 3 < 8: rdw(kp + 3)
        else: F.drain(3, 2)
    def mk(kp, sl=(3, 1)):
        for j in range(2): F.mf(f"{SM} {vr(AK+4*j,4)}, {vr(MEM+4*kp,4)}, {ar(16*kp+8*j,8)}, v{IDX}", *sl)
    vs = {"n": 0}
    def vstep(n, sl=0, va=0):
        for _ in range(n):
            if vs["n"] < 16:
                kp, j = vs["n"] >> 1, vs["n"] & 1; vs["n"] += 1
                e(f"{SM} {vr(AV+4*j,4)}, {vr(MEM+4*kp,4)}, {ar(128+16*kp+8*j,8)}, v{IDX}")
            F.drain(sl, va)
    def fold(A0, D):
        return [f"v_add_f32 v{A0+4*j+r}, v{A0+4*j+r}, v{A0+4*j+2+r}" for j in range(2) for r in range(2)] + [f"v_cvt_pk_bf16_f32 v{D+j}, v{A0+4*j}, v{A0+4*j+1}" for j in range(2)]
    def lop(text, tag):
        def f(): e(text); lg.issue(tag)
        f.cost = Fill.cost(text); f.text = text; return f
    KXR = lambda kd, t: (WR + 8*kd + 4*t) if kd < 3 else (MEM + 12 + 4*t)
    krd = lambda kd, t: lop(f"ds_read_b128 {vr(KXR(kd,t),4)}, v{vKR} offset:{kd*2048 + t*1024}", ("kx", kd))
    MEMQ = list(F.m); F.m.clear() if SPLIT else None
    for kp in range(4):
        mq(kp); mk(kp)
        if SPLIT and kp == 0:
            lg.wait("st"); e(f"s_barrier\ns_xor_b32 s{sMr}, s{sMr}, 0x2000\ns_xor_b32 s{sM2}, s{sM2}, 0x2000")
            for x in range(4, 8): mrd(x)
            F.m += MEMQ
    F.flush(); s1(0); G.ts_store(vTS)
    if FLP == 1: vmop(FLD, "fl")()
    for kp in range(4, 8): mq(kp)
    if FLP == 2: vmop(FLD, "fl")()
    F.add(krd(0, 0), krd(0, 1), krd(1, 0), krd(1, 1)); mk(4, (3, 0))
    F.flush()
    F.add(krd(2, 0), krd(2, 1), *fold(AQ, AQ), lop(f"ds_write2_b32 v{vQW}, v{AQ}, v{AQ+1} offset0:0 offset1:32", "qw"))
    mk(5, (3, 1)); mk(6, (3, 1)); mk(7, (3, 1))
    stamp(2)
    vstep(2, 3, 1); F.flush()
    e("\n".join(fold(AK, AK)))
    lop(f"ds_write2_b32 v{vKW}, v{AK}, v{AK+1} offset0:0 offset1:196", "qw")()
    vstep(5)
    lg.wait("qw"); e("s_barrier")
    stamp(3)
    S1, S2, S0, KOWN, P = MEM, MEM + 4, MEM + 8, WR, MEM + 28
    def trd(kd):
        sl = AQ + 8*(kd & 1)
        for x in range(2):
            for h in range(2):
                e(f"ds_read_b64_tr_b16 {vr(sl+4*x+2*h,2)}, v{(vTR, vTK)[x]} offset:{kd*(256, 1488)[x] + h*16}"); lg.issue(("t", kd, x))
    trd(0); trd(1)
    vstep(3)
    krd(3, 0)(); krd(3, 1)(); s1(6)
    WOR = WR
    def wro(n):
        for h in range(2):
            e(f"ds_read_b128 {vr(WOR+8*(n%4)+4*h,4)}, v{vLW} offset:{16384 + (2*n+h)*1024}"); lg.issue(("o", n))
    for kd in range(4):
        sl = AQ + 8*(kd & 1); c = lambda D: "0" if kd == 0 else vr(D, 4)
        lg.wait(("t", kd, 0)); lg.wait(("kx", kd))
        bf = lambda r: e(f"v_bfi_b32 v{KOWN+r}, 1, s{sKT}, v{KOWN+r}\nv_bfi_b32 v{KOWN+r+1}, 1, s{sKT}, v{KOWN+r+1}") if kd == 3 else None
        if kd == 3: lg.wait("ko")
        e(f"{MF} {vr(S1,4)}, {vr(KXR(kd,0),4)}, {vr(sl,4)}, {c(S1)}"); bf(0)
        e(f"{MF} {vr(S2,4)}, {vr(KXR(kd,1),4)}, {vr(sl,4)}, {c(S2)}"); bf(2)
        if kd == 1:
            for h in range(2):
                e(f"ds_read_b64_tr_b16 {vr(KOWN+2*h,2)}, v{vTO} offset:{h*16}"); lg.issue("ko")
        lg.wait(("t", kd, 1))
        e(f"{MF} {vr(S0,4)}, {vr(sl+4,4)}, {vr(sl,4)}, {c(S0)}")
        if kd + 2 < 4: trd(kd + 2)
        if kd in (1, 2): vstep(1)
    s1(1); [G.mark(k) for k in range(5)]
    vstep(1)
    vmop(f"buffer_store_dwordx4 {vr(KOWN,4)}, v{vKM}, {WS}, s{sKM} offen sc1", "km")()
    e(f"v_xor_b32 v{vKR}, {KB0 ^ (KB0 + 8192)}, v{vKR}\ns_bfe_u32 s{sTAG}, s{sI}, 0x10001")
    vstep(1)
    wro(1)
    mx, t0 = S0 + 2, S0 + 3
    ZERO = lambda D: f"v_mfma_f32_16x16x16_bf16 {vr(D,4)}, v[24:25], v[24:25], 0"
    e(f"v_max3_f32 v{mx}, v{S1}, v{S1+1}, v{S1+2}\nv_max3_f32 v{t0}, v{S1+3}, v{S2}, v{S2+1}")
    e(f"v_max3_f32 v{mx}, v{mx}, v{S2+2}, v{S2+3}\nv_max3_f32 v{t0}, v{t0}, v{S0}, v{S0+1}\nv_max_f32 v{mx}, v{mx}, v{t0}\nv_max_f32 v{t0}, v{mx}, v{t0}")
    vstep(1); e("s_nop 0")
    e(f"v_permlane16_swap_b32 v{mx}, v{t0}\nv_max_f32 v{mx}, v{mx}, v{t0}\nv_mov_b32 v{t0}, v{mx}")
    vstep(1); e("s_nop 0"); assert vs["n"] == 16
    e(f"v_permlane32_swap_b32 v{mx}, v{t0}\nv_max_f32 v{mx}, v{mx}, v{t0}\nv_mul_f32 v{mx}, s{sC}, v{mx}")
    wro(2)
    order = [S0, S0 + 1, S1, S2, S1 + 1, S2 + 1, S1 + 2, S2 + 2, S1 + 3, S2 + 3]
    AC = [[MEM + 12, MEM + 16, MEM + 20, MEM + 24], [MEM, MEM + 4, MEM + 8, MEM + 28]]
    for n, r in enumerate(order):
        e(f"v_fma_f32 v{r}, v{r}, s{sC}, -v{mx}")
        if n in (1, 3, 5, 7): e(ZERO(AC[0][n >> 1]))
    wro(0)
    kx = kx_ops()
    for n, r in enumerate(order):
        e(f"v_exp_f32 v{r}, v{r}")
        if n == 0: s1(2); vm.wait("fl"); s1(3)
        if n == 1: fl_check()
        if n == 5: e(kx[0])
        if n in (6, 8): kx[1 if n == 6 else 2]()
    stamp(4)
    O0, O1, SU, OB = AQ, AQ + 4, AK, AK + 4
    for r in range(4): e(f"v_cvt_pk_bf16_f32 v{P+r}, v{S1+r}, v{S2+r}")
    fv = fold(AV, VB)
    e(f"v_cvt_pk_bf16_f32 v{PM+3}, v{S0}, v{S0+1}"); s1(4); vm.wait("vx"); s1(5)
    e(f"{MF} {vr(SU,4)}, {vr(ONES,4)}, {vr(P,4)}, 0\n{fv[0]}\n{fv[1]}")
    e(f"{MF} {vr(O0,4)}, {vr(VX,4)}, {vr(P,4)}, 0\n{fv[2]}\n{fv[3]}")
    e(f"{MF} {vr(SU,4)}, {vr(ONES,4)}, {vr(PM+2,4)}, {vr(SU,4)}\n{fv[4]}\n{fv[5]}")
    e(f"{MF} {vr(O1,4)}, {vr(VX+4,4)}, {vr(P,4)}, 0")
    e(f"v_cvt_pk_bf16_f32 v{PM}, v{S0}, v{S0+1}\nv_bfi_b32 v{AV}, 1, s{sKT}, v{VB}\nv_bfi_b32 v{AV+1}, 1, s{sKT}, v{VB+1}")
    vmop(f"buffer_store_dwordx2 {vr(AV,2)}, v{vVM}, {WS}, s{sKM} offen offset:2048 sc1", "vmst")()
    e(f"s_cmp_eq_u32 s{sI}, 63\ns_cbranch_scc1 L_ch_last_{m}")
    e(f"{MF} {vr(O0,4)}, {vr(VB,4)}, {vr(PM,4)}, {vr(O0,4)}")
    wro(3)
    e(f"{MF} {vr(O1,4)}, {vr(VB,4)}, {vr(PM+2,4)}, {vr(O1,4)}")
    e(f"s_nop 0\nv_rcp_f32 v{SU}, v{SU}\n{ZERO(AC[1][0])}\ns_nop 2")
    for r in range(4): e(f"v_mul_f32 v{O0+r}, v{O0+r}, v{SU}")
    for r in range(4): e(f"v_mul_f32 v{O1+r}, v{O1+r}, v{SU}\nv_cvt_pk_bf16_f32 v{OB+r}, v{O0+r}, v{O1+r}")
    e(f"ds_write_b128 v{vOW}, {vr(OB,4)}"); lg.issue("ow")
    for x in range(1, 4): e(ZERO(AC[1][x]))
    lg.wait("ow"); e("s_barrier")
    stamp(5)
    OF = AQ
    for kk in range(2):
        e(f"ds_read_b128 {vr(OF+4*kk,4)}, v{vLA} offset:{OX + kk*1024}"); lg.issue(("f", kk))
    PK = OB
    def wo_out(sg):
        A = AC[sg]
        if sg == 0: L = [f"v_add_f32 v{t+r}, v{t+r}, v{t+2+r}" for t in A for r in range(2)]
        else: L = [f"v_pk_add_f32 v[{t}:{t+1}], v[{t}:{t+1}], v[{t+2}:{t+3}]" for t in A]
        return L + [f"v_cvt_pk_bf16_f32 v{PK+2*hr+sd}, v{A[sd]+hr}, v{A[2+sd]+hr}" for hr in range(2) for sd in range(2)] + [f"s_add_u32 s{sT0}, s{sPs}, {sg*131072}"] + \
               [f"v_bfi_b32 v{PK+r}, 1, s{sTAG}, v{PK+r}" for r in range(4)] + [f"buffer_store_dwordx4 {vr(PK,4)}, v{vPst}, {WS}, s{sT0} offen{LS}"]
    for sg in range(2):
        for kk in range(2):
            for sd in range(2):
                n = (sg*2 + sd)*2 + kk
                lg.wait(("f", kk))
                if sg == 1 and (kk, sd) == (0, 1): F.add(*wo_out(0))
                F.mf(f"{SM} {vr(AC[sg][sd],4)}, {vr(OF+4*kk,4)}, {vr(WO0+8*n,8)}, v{IDX}", 3, 2)
                lg.wait(("o", n))
                e(f"{SM} {vr(AC[sg][2+sd],4)}, {vr(OF+4*kk,4)}, {vr(WOR+8*(n%4),8)}, v{IDX}")
                if n + 4 < 8: wro(n + 4)
                else: F.drain(3, 2)
    F.flush()
    e("\n".join(wo_out(1)))
    stamp(6)
    RD = AQ; SA = [MEM + 4*i for i in range(4)]; SB = [MEM + 16 + 4*i for i in range(4)]; t1, t2 = AQ + 4, AQ + 5
    Lw = a.lab("L_nored"); Ld = a.lab("L_redd"); La = a.lab("L_and"); Lo_ = a.lab("L_or")
    lg.set([])
    R2 = G.opt.get("red2", 0)
    def rpoll(S):
        for i in range(4): e(f"buffer_load_dwordx4 {vr(S[i],4)}, v{vL16}, {WS}, s{sRs} offen offset:{i*1024} sc1")
    for kp in range(3): rdw(kp)
    for r in range(AV, AQ): e(f"v_mov_b32 v{r}, 0")
    for r in range(AK, 128): e(f"v_mov_b32 v{r}, 0")
    e(f"s_cmp_ge_u32 s{sW}, 2\ns_cbranch_scc1 {Lw}\nv_mov_b32 v{AQ+6}, -1")
    if R2: rpoll(SA); e("s_waitcnt vmcnt(4)"); rpoll(SB)
    elif G.opt.get("redwait", 1) == 1: e("s_waitcnt vmcnt(0)")
    elif G.opt.get("redwait", 1) == 2:
        L1 = a.lab("L_w1")
        e(f"s_waitcnt vmcnt(1)\ns_cmp_eq_u32 s{sW}, 0\ns_cbranch_scc1 {L1}\ns_waitcnt vmcnt(0)\n{L1}:")
    e(f"s_cmp_eq_u32 s{sTAG}, 1\ns_cbranch_scc1 {La}")
    for lab, op, cmp_ in ((Lo_, "v_or3_b32 {d}, {a}, {b}, {c}", "ne"), (La, "v_bitop3_b32 {d}, {a}, {b}, {c} bitop3:0x80", "eq")):
        e(f"{lab}:")
        for S in ((SA, SB) if R2 else (SA,)):
            if not R2: rpoll(S)
            for i in range(4):
                e(f"s_waitcnt vmcnt({(7 if R2 else 3)-i})\n{MF} {vr(RD,4)}, {vr(SEL,4)}, {vr(S[i],4)}, {'0' if i == 0 else vr(RD,4)}")
                b = S[i]
                if i == 0: e(op.format(d=f"v{t1}", a=f"v{b}", b=f"v{b+1}", c=f"v{b+2}") + "\n" + op.format(d=f"v{t2}", a=f"v{b+3}", b=f"v{b+3}", c=f"v{b+3}"))
                else: e(op.format(d=f"v{t1}", a=f"v{t1}", b=f"v{b}", c=f"v{b+1}") + "\n" + op.format(d=f"v{t2}", a=f"v{t2}", b=f"v{b+2}", c=f"v{b+3}"))
            e(op.format(d=f"v{t1}", a=f"v{t1}", b=f"v{t2}", c=f"v{t2}") + f"\nv_and_b32 v{t1}, 1, v{t1}\nv_cmp_{cmp_}_u32 vcc, 0, v{t1}\ns_cbranch_vccz {Ld}")
            G.timeout(2)
            if R2: rpoll(S)
        e(f"s_branch {lab}")
    e(f"{Ld}:")
    stamp(7)
    e(f"""v_cndmask_b32 v{RD}, v{RD}, v{RD+2}, s[{sUP}:{sUP+1}]
    v_cndmask_b32 v{RD+1}, v{RD+1}, v{RD+3}, s[{sUP}:{sUP+1}]
    v_add_f32_dpp v{RD}, v{RD}, v{RD} row_ror:8 row_mask:0xf bank_mask:0xf
    v_add_f32_dpp v{RD+1}, v{RD+1}, v{RD+1} row_ror:8 row_mask:0xf bank_mask:0xf
    v_cvt_pk_bf16_f32 v{t1}, v{RD}, v{RD+1}
    v_min_u32 v{t1}, -2, v{t1}
    buffer_store_dword v{t1}, v{vPub}, {WS}, s{sMp} offen{LS}
    s_xor_b32 s{sMp}, s{sMp}, 0x2000
    buffer_store_dword v{AQ+6}, v{vPub}, {WS}, s{sMp} offen{LS}""")
    if G.opt.get("pubwait"): e("s_waitcnt vmcnt(0)")
    e(f"""{Lw}:
    s_xor_b32 s{sRs}, s{sRs}, 0x40000
    s_xor_b32 s{sPs}, s{sPs}, 0x40000
    s_add_u32 s{sI}, s{sI}, 1
    s_barrier""")
    stamp(8)
    if SPLIT:
        L = a.lab("L_g0"); Lt = a.lab("L_g0t"); b = MEM + 16
        e(f"{L}:\nbuffer_load_dwordx4 {vr(b,4)}, v{vL16}, {WS}, s{sMr} offen sc1")
        for r in range(AQ, AK): e(f"v_mov_b32 v{r}, 0")
        e(f"""{SEC}
        s_waitcnt vmcnt(1)
        v_max3_u32 v{MEM}, v{b}, v{b+1}, v{b+2}
        v_max_u32 v{MEM}, v{MEM}, v{b+3}
        v_cmp_eq_u32 vcc, -1, v{MEM}
        s_cbranch_vccnz {Lt}""")
        def slow(L=L, Lt=Lt): e(f"{Lt}:"); G.timeout(3); e(f"s_branch {L}")
        cold.append(slow)
        stamp(9)
        e(f"ds_write_b128 v{vST}, {vr(b,4)} offset:{MEMF}\ns_waitcnt lgkmcnt(0)")
    else:
        L = a.lab("L_g0"); G2 = G.opt.get("g2", 0); sets = (MEM + 16, VX) if G2 else (MEM + 16,)
        def gpoll(b):
            for i in range(2): e(f"buffer_load_dwordx4 {vr(b+4*i,4)}, v{vL16}, {WS}, s{sMr} offen offset:{i*1024} sc1")
        Ls = [a.lab("L_st") for _ in sets]; Le = a.lab("L_ste")
        if not G2:
            for r in range(AQ, AK): e(f"v_mov_b32 v{r}, 0")
        e(f"{L}:")
        gpoll(sets[0])
        if G2:
            for r in range(AQ, AK): e(f"v_mov_b32 v{r}, 0")
            for r in range(8*(G2 - 1)): e(f"v_mov_b32 v{AQ + r % 8}, 0")
            gpoll(sets[1])
        for n, (b, l_) in enumerate(zip(sets, Ls)):
            y = 2*(len(sets) - 1 - n)
            e(f"""s_waitcnt vmcnt({y+1})
            v_max3_u32 v{MEM}, v{b}, v{b+1}, v{b+2}
            s_waitcnt vmcnt({y})
            v_max3_u32 v{MEM+1}, v{b+3}, v{b+4}, v{b+5}
            v_max3_u32 v{MEM}, v{MEM}, v{b+6}, v{b+7}
            v_max_u32 v{MEM}, v{MEM}, v{MEM+1}
            v_cmp_eq_u32 vcc, -1, v{MEM}
            s_cbranch_vccz {l_}""")
            G.timeout(3)
        e(f"s_branch {L}")
        for b, l_ in reversed(list(zip(sets, Ls))):
            e(f"{l_}:"); stamp(9)
            for i in range(2): e(f"ds_write_b128 v{vST}, {vr(b+4*i,4)} offset:{MEMF + i*1024}")
            if b != sets[0]: e(f"s_branch {Le}")
        e(f"{Le}:\ns_xor_b32 s{sMr}, s{sMr}, 0x2000\ns_waitcnt lgkmcnt(0)")
    stamp(10)
    stamp(11, True); G.ts_flush(sI, vTS, store=False)
    e(f"s_barrier\ns_branch L_ch_loop_{m}")
    for f in cold: f()
    e(f"L_ch_last_{m}:"); G.wb_exit(m); e("s_endpgm")
    if m == "L": G.far_fallback("L_fb_chain")
```

```python
from asmlib import *
from gen import *
from red import *

def emit(G, m):
    e = G.e; a = G.a; lg = a.lg; F = Fill(a)
    R = Red(G, m, RL=88, RD=64, XR=28, T=68, X3=0, rot=False); R.vRe, R.vPt, R.vPv = 0, 27, 31; T = R.T
    LS = R.LS
    sNI, sFI, sLG, sW8, sPF = 77, 78, 79, 80, 81
    vA, vFA, vFv, vH = 20, 24, 25, 26
    NR, AG, HT, PK = 32, 48, 80, 120
    HF, ACC = 48, (88, 48)
    W2 = 128; HB = 32768
    e(f"s_sub_u32 s{sL}, s{sGRP}, 5\ns_lshr_b32 s{sL}, s{sL}, 1")
    R.setup(); R.start("L_fb_ffn"); R.ring_init(); e("s_waitcnt vmcnt(0)\ns_barrier"); G.ready_add(T + 4); R.late(G.opt.get('late', 1) >= 2)
    G.srd(S_A, P_W1, 512*1792*2); G.srd(S_C, P_W3, 512*1792*2); G.srd(S_D, P_W2, 512*1792*2)
    e(f"s_cmp_ge_u32 s{sCC}, 14\ns_cbranch_scc1 L_ffn_now_{m}")
    e(f"""
    s_lshl_b32 s{sT0}, s{sCC}, 8
    s_lshl_b32 s{sT1}, s{sW}, 6
    s_add_u32 s{sT2}, s{sT0}, s{sT1}
    s_mul_i32 s{sNI}, s{sW}, 40704
    v_lshlrev_b32 v23, 3, v{vG}""")
    G.wdma_addr(20, 22, 3584, 23, 24)
    e(f"v_add_u32 v22, s{sNI}, v22")
    G.wdma([((S_A, S_C)[u], f"s_add_u32 s{sT5}, s{sT2}, {k*114688}", G.sink_a(u*128 + 8*k), G.sink_a(u*128 + 8*k + 4))
            for k in range(16) for u in range(2)], [(sNI, i*2048, 22) for i in range(19)], 20, 32, list(range(8)))
    e(f"""
    s_lshl_b32 s{sT0}, s{sCC}, 17
    s_lshl_b32 s{sT1}, s{sW}, 8
    s_add_u32 s{sT0}, s{sT0}, s{sT1}
    v_lshlrev_b32 v20, 4, v{vRHO}
    v_lshl_add_u32 v20, v{vG}, 13, v20
    v_add_u32 v20, s{sT0}, v20
    v_add_u32 v21, 4096, v20""")
    wide_blocks(G, [(S_D, [(20 + (i >> 2), (i & 3) * 1024) for i in range(8)], f"s_mov_b32 s{sT5}, {kf*32768}", W2 + kf*32, "v") for kf in range(4)], 32, 3)
    e(f"L_ffn_now_{m}:")
    G.ready_wait(T + 4); e("s_barrier")
    G.srd(S_B, P_OUT, 2*MB)
    for kl in range(4):
        e(f"v_add_u32 v{T}, {4*kl}, v{vG}\nv_xor_b32 v{T}, v{T}, v{vRHO}\nv_lshlrev_b32 v{T}, 4, v{T}\nv_lshl_add_u32 v{vA+kl}, v{vRHO}, 11, v{T}")
    e(f"""
    s_lshl_b32 s{sW8}, s{sW}, 13
    s_lshl_b32 s{sT0}, s{sL}, 22
    s_add_u32 s{sXI}, s{sT0}, {XB}
    s_add_u32 s{sT0}, s{sT0}, s{sW8}
    s_lshl_b32 s{sT1}, s{sSUB}, 15
    s_add_u32 s{sT0}, s{sT0}, s{sT1}
    s_add_u32 s{sNI}, s{sT0}, {NB + 2*MB}
    s_cmp_eq_u32 s{sL}, 0
    s_cselect_b32 s{sXO}, {XB + 2*MB}, 0
    s_mov_b32 s{sNO}, {NB + 4*MB}
    s_lshl_b32 s{sT0}, s{sRANK}, 5
    s_lshl_b32 s{sT1}, s{sW}, 2
    s_add_u32 s{sT0}, s{sT0}, s{sT1}
    s_add_u32 s{sFO}, s{sT0}, {FN + 32*KB}
    s_lshl_b32 s{sT1}, s{sW}, 7
    s_lshl_b32 s{sT2}, s{sSUB}, 9
    s_add_u32 s{sT1}, s{sT1}, s{sT2}
    s_cmp_ge_u32 s{sCC}, 14
    s_cselect_b32 s{sT1}, s{sT0}, s{sT1}
    s_cselect_b32 s{sT3}, 4, 2
    s_lshl_b32 s{sT2}, s{sL}, 16
    s_add_u32 s{sT2}, s{sT2}, {FN}
    s_add_u32 s{sFI}, s{sT2}, s{sT1}
    s_mov_b32 s{sLG}, 0xbfb8aa3b
    s_cmp_ge_u32 s{sCC}, 14
    s_cselect_b32 s{sT1}, 1, 31
    v_and_b32 v{vFA}, s{sT1}, v{vLANE}
    v_lshlrev_b32 v{vFA}, s{sT3}, v{vFA}
    s_mov_b32 s{sPF}, 0
    s_lshl_b32 s{sT0}, s{sW}, 10
    s_add_u32 s{sT0}, s{sT0}, {HB}
    v_add_u32 v{vH}, s{sT0}, v{vL16}""")
    FLD = f"buffer_load_dword v{vFv}, v{vFA}, {WS}, s{sFI} offen sc1"
    def spin():
        L = a.lab("L_sp"); Lo = a.lab("L_spo")
        e("s_waitcnt vmcnt(0)"); R.flush_pend()
        e(f"{L}:\nv_cmp_eq_u32 vcc, 0, v{vFv}\ns_cbranch_vccz {Lo}")
        G.timeout(0, far=True)
        e(f"{FLD}\ns_waitcnt vmcnt(0)\ns_branch {L}\n{Lo}:")
    DMA = [f"s_add_u32 m0, s{sW8}, {h*4096}\ns_add_u32 s{sT4}, s{sNI}, {h*4096}\nbuffer_load_dwordx4 v{vL16}, {WS}, s{sT4} offen offset:{r*2048 + t*1024} sc1 lds"
           for t in range(2) for h in range(2) for r in range(2)]
    e(FLD)
    e(f"L_ffn_loop_{m}:\ns_cmp_ge_u32 s{sCC}, 14\ns_cbranch_scc1 L_ffn_idle_{m}")
    G.stamp(0); G.mark(1)
    Lp, Lq = a.lab("L_pf"), a.lab("L_pfo")
    e(f"s_cmp_eq_u32 s{sPF}, 0\ns_cbranch_scc1 {Lp}\ns_waitcnt vmcnt(5)\n{Lq}:")
    def slow():
        Lz = a.lab("L_pz")
        e(f"{Lp}:\ns_waitcnt vmcnt(2)\ns_cmp_eq_u32 s{sL}, 0\ns_cbranch_scc1 {Lz}w\ns_waitcnt vmcnt(1)\n{Lz}w:\nv_cmp_eq_u32 vcc, 0, v{vFv}\ns_cmp_lt_u32 s{sS}, 2\ns_cselect_b64 vcc, -1, vcc\ns_cbranch_vccz {Lz}"); spin(); e(f"{Lz}:"); G.stamp(10, True); G.mark(3)
        e("\n".join(DMA) + f"\ns_waitcnt vmcnt(4)\ns_branch {Lq}")
    R.cold.append(slow)
    G.stamp(1)
    e(f"s_add_u32 s{sNI}, s{sNI}, 65536\ns_add_u32 s{sFI}, s{sFI}, 1024\ns_barrier")
    G.stamp(2); G.mark()
    lg.set([])
    def rd(n):
        t, k = n >> 4, n & 15
        e(f"ds_read_b128 {vr(NR+4*(n%4),4)}, v{vA+(k&3)} offset:{t*1024 + (k>>2)*256}"); lg.issue(("n", n))
    def act(t):
        g_, u_ = AG + 16*t, AG + 16*t + 8; h = HT
        for r in range(8): F.add(f"v_mul_f32 v{h+r}, s{sLG}, v{g_+r}")
        for r in range(8): F.add(f"v_exp_f32 v{h+r}, v{h+r}\nv_mul_f32 v{g_+r}, v{g_+r}, v{u_+r}")
        for r in range(8): F.add(f"v_add_f32 v{h+r}, 1.0, v{h+r}")
        for r in range(8): F.add(f"v_rcp_f32 v{h+r}, v{h+r}")
        for r in range(8): F.add(f"v_mul_f32 v{h+r}, v{h+r}, v{g_+r}")
        for r in range(4): F.add(f"v_cvt_pk_bf16_f32 v{u_+r}, v{h+r}, v{h+4+r}")
        def wr(): e(f"ds_write_b128 v{vH}, {vr(u_,4)} offset:{t*4096}"); lg.issue(("hw", t))
        wr.cost = (3, 0); wr.text = 'ds_write'; F.add(wr)
    rd(0); rd(1); rd(2)
    for n in range(32):
        t, k = n >> 4, n & 15
        if n == 13: e(f"s_waitcnt vmcnt(0)\ns_barrier"); R.flush_pend(); e(R.x_load(S_WS))
        if n + 3 < 32: rd(n + 3)
        if n == 18: act(0)
        lg.wait(("n", n))
        for u in range(2):
            for j in range(2):
                acc = vr(AG + 16*t + 8*u + 4*j, 4)
                F.mf(f"{MF} {acc}, {ar(u*128 + 8*k + 4*j, 4)}, {vr(NR+4*(n%4),4)}, {'0' if k == 0 else acc}", 3 if u + j < 2 else 1)
    F.flush()
    G.stamp(3)
    for t in range(2):
        lg.wait(("hw", t)); e("s_barrier")
        if t == 1: G.stamp(4)
        for kf in range(4):
            e(f"ds_read_b128 {vr(NR+4*kf,4)}, v{vL16} offset:{HB + t*4096 + kf*1024}"); lg.issue(("h", t, kf))
        if t == 0: act(1); F.drain(12, 12)
        else:
            for r in range(4): F.add(R.out_pack(ACC[0], r, 0, PK + 4*(r & 1)))
        for kf in range(4):
            lg.wait(("h", t, kf))
            if t == 1 and kf == 3 and G.opt.get("fe", 0): F.flush(); F.mem(*R.early())
            for j in range(8):
                D = vr(ACC[t] + 4*j, 4)
                F.mf(f"{MF} {D}, {vr(NR+4*kf,4)}, {vr(W2 + kf*32 + 4*j, 4)}, {'0' if kf == 0 else D}", 3, 2)
        F.flush()
    for r in range(4): e(R.out_pack(ACC[1], r, 1, PK + 4*(r & 1)))
    if not G.opt.get("fe", 0): e("\n".join(R.early()))
    e(f"s_branch L_ffn_red_{m}")
    e(f"L_ffn_idle_{m}:")
    spin()
    e(f"s_add_u32 s{sFI}, s{sFI}, 1024\ns_barrier\n{R.x_load(S_WS)}")
    for p in range(4): e(f"v_mov_b32 v{PK+p}, s{sTAG}")
    for n in range(8):
        e(f"s_add_u32 s{sT0}, s{sSLOT}, {n*16384}\nbuffer_store_dwordx4 {vr(PK,4)}, v{vPs}, {WS}, s{sT0} offen{LS}")
    e("\n".join(R.early()))
    e(f"L_ffn_red_{m}:")
    G.stamp(5); G.mark(4)
    def nxt():
        Ln = a.lab("L_nx")
        e(f"""s_waitcnt vmcnt(0)
        v_cmp_eq_u32 vcc, 0, v{vFv}
        s_cmp_ge_u32 s{sCC}, 14
        s_cselect_b64 vcc, -1, vcc
        s_cmp_eq_u64 vcc, 0
        s_cselect_b32 s{sPF}, 1, 0
        s_cselect_b64 vcc, -1, 0
        s_cbranch_scc1 {Ln}
        {FLD}
        {Ln}:""")
        if G.ts: e(f"s_add_u32 s73, s73, s{sPF}"); G.stamp(10, True)
    def guard(x):
        L = a.lab("L_gd"); return f"s_cbranch_vccz {L}\n{x}\n{L}:"
    R.reduce_rows(f"L_ffn_fin_{m}", cover=lambda: (e(FLD), 1)[1], after=nxt, side=[guard(x) for x in DMA])
    e(f"s_branch L_ffn_adv_{m}\nL_ffn_fin_{m}:")
    e(guard("\n".join(DMA)))
    e(f"buffer_store_dwordx2 v[{R.RD}:{R.RD+1}], v{vXo}, s[{S_B}:{S_B+3}], s{sXO} offen" + ("", " sc1", " nt")[G.opt.get("osc", 0)])
    e(f"L_ffn_adv_{m}:")
    G.stamp(8); G.stamp(11, True); G.mark(2)
    R.advance()
    G.stamp(9)
    if G.ts: e(f"s_sub_u32 s{sT5}, s{sS}, 1"); G.ts_flush(sT5, 126)
    if G.tsi:
        Li = a.lab("L_tsi")
        e(f"""s_cmp_lt_u32 s{sCC}, 14
        s_cbranch_scc1 {Li}
        s_memrealtime s[94:95]
        s_mul_i32 s100, s{sGRP}, 80
        s_add_u32 s100, s100, s{sS}
        s_sub_u32 s100, s100, 1
        s_lshl_b32 s100, s100, 5
        s_add_u32 s100, s100, s{sRANK}
        s_lshl_b32 s100, s100, 2
        s_add_u32 s100, s100, s{sW}
        s_lshl_b32 s100, s100, 6
        s_add_u32 s100, s100, {TSB}
        s_waitcnt lgkmcnt(0)
        v_mov_b32 v124, s94
        v_mov_b32 v125, s96
        v_mov_b32 v126, 0
        buffer_store_dwordx2 v[124:125], v126, {WS}, s100 offen
        {Li}:""")
    G.wb_mid(m, sS)
    e(f"s_cmp_lt_u32 s{sS}, 64\ns_cbranch_scc1 L_ffn_loop_{m}\ns_waitcnt vmcnt(0)")
    R.flush_pend()
    G.wb_exit(m)
    e("s_endpgm")
    for f in R.cold: f()
    if m == "L": G.far_fallback("L_fb_ffn")
```

```python
from asmlib import *
from gen import *
MF = "v_mfma_f32_16x16x32_bf16"

def emit(G, m):
    e = G.e; a = G.a; lg = a.lg
    P = G.P
    WS = f"s[{S_WS}:{S_WS+3}]"
    sWH, sU, sN1, sN2, sO1, sO2, sF1, sF2, sFN, sW2, sBB, sQD, sISS = 37, 38, 39, 28, 29, 30, 31, 76, 77, 78, 79, 81, 86
    sP1, sP2, sE2, sE1, sQ1, sNE = 82, 83, 84, 88, 89, 90
    vA, vB = 4, 100
    vFO, vONE, vFL, vFA, vO, vD = 24, 25, 26, 27, 28, 30
    vW = 12
    R0, ACC1, ACC2, PK1, PK2 = 32, 64, 112, 88, 136
    DUMMY = 137*MB
    G.srd(S_A, P_WQ, 4*MB)
    e(f"""
    s_sub_u32 s{sWH}, s{sGRP}, 1                 ; 1 = K, 2 = V
    s_cmp_eq_u32 s{sWH}, 1
    s_cselect_b32 s{S_B}, s{P_WK}, s{P_WV}
    s_cselect_b32 s{S_B+1}, s{P_WK+1}, s{P_WV+1}
    s_mov_b32 s{S_B+2}, {4*MB}
    s_mov_b32 s{S_B+3}, 0x20000
    v_and_b32 v20, 15, v{vLANE}              ; rho
    v_lshrrev_b32 v21, 4, v{vLANE}           ; g
    v_lshlrev_b32 v22, 3, v21
    s_lshl_b32 s{sT0}, s{sRANK}, 8
    s_lshl_b32 s{sT2}, s{sW}, 6
    s_add_u32 s{sT2}, s{sT2}, s{sT0}
    s_lshr_b32 s{sT3}, s{sW}, 1
    s_lshl_b32 s{sT1}, s{sWH}, 1
    s_add_u32 s{sT3}, s{sT3}, s{sT1}
    s_sub_u32 s{sT3}, s{sT3}, 2
    s_lshl_b32 s{sT4}, s{sT3}, 6
    s_add_u32 s{sT4}, s{sT4}, s{sT0}
    s_mul_i32 s{sU}, s{sW}, 40960""")
    e('s_waitcnt vmcnt(0)\ns_barrier'); G.done_add(100, m)
    G.wdma_addr(vW, vW + 2, 8192, 22, 23)
    e(f"v_add_u32 v{vW+2}, s{sU}, v{vW+2}")
    blocks = [(S_B, f"s_add_u32 s{sT5}, s{sT2}, {k*262144}", G.sink_a(k * 8), G.sink_a(k * 8 + 4)) for k in range(16)]
    blocks += [(S_A, f"s_add_u32 s{sT5}, s{sT4}, {k*262144}", G.sink_a(128 + k * 8), G.sink_a(128 + k * 8 + 4)) for k in range(16)]
    G.wdma(blocks, [(sU, i*2048, vW + 2) for i in range(20)], vW, 32, list(range(8)))
    e(f"""s_lshl_b32 s{sT0}, s{sT3}, 11
    s_lshl_b32 s{sT1}, s{sW}, 11
    s_sub_u32 s{sT0}, s{sT0}, s{sT1}
    s_lshl_b32 s{sT1}, s{sWH}, 25
    s_sub_u32 s{sQD}, s{sT0}, s{sT1}""")
    G.stamp(5, True)
    G.census_issue(32, m); G.census_check(32, "L_fb_qkv", False, m)
    G.stamp(6, True)
    e("s_barrier")
    e(f"s_and_b32 s{sT2}, s{sW}, 1\ns_lshl_b32 s{sT3}, s{sT2}, 10\nv_add_u32 v{vO}, s{sT3}, v{vL16}\nv_xor_b32 v{vO+1}, 1024, v{vO}\ns_lshl_b32 s{sT2}, s{sT2}, 8")
    for kl in range(4):
        e(f"""v_add_u32 v23, {4*kl}, v21
        v_xor_b32 v23, v23, v20
        v_lshlrev_b32 v23, 4, v23
        v_lshl_add_u32 v23, v20, 9, v23
        v_add_u32 v{vA+kl}, s{sT2}, v23
        v_xor_b32 v{vA+4+kl}, 256, v{vA+kl}
        v_add_u32 v{vB+kl}, 65536, v{vA+kl}
        v_add_u32 v{vB+4+kl}, 65536, v{vA+4+kl}""")
    e(f"""
    v_mov_b32 v{vONE}, 1
    v_mov_b32 v{vFO}, 0
    v_and_b32 v23, 31, v{vLANE}
    v_lshlrev_b32 v{vFA}, 2, v23
    v_lshlrev_b32 v23, 4, v20
    v_lshl_add_u32 v{vD}, v21, 10, v23
    v_add_u32 v{vD+1}, 3072, v{vD}
    s_lshl_b32 s{sT0}, s{sW}, 13
    s_add_u32 s{sN1}, s{sT0}, {NB}
    s_add_u32 s{sNE}, s{sT0}, {NB + 63*32768}
    s_add_u32 s{sN2}, s{sT0}, {NB + 4*MB}
    s_lshl_b32 s{sT0}, s{sWH}, 25
    s_lshl_b32 s{sT1}, s{sRANK}, 13
    s_add_u32 s{sT0}, s{sT0}, s{sT1}
    s_lshl_b32 s{sW2}, s{sW}, 11
    s_add_u32 s{sT0}, s{sT0}, s{sW2}
    s_add_u32 s{sO1}, s{sT0}, {QKV}
    s_add_u32 s{sO2}, s{sT0}, {QKV + 16*MB}
    s_add_u32 s{sE2}, s{sT0}, {DUMMY}
    s_lshl_b32 s{sT0}, s{sRANK}, 6
    s_lshl_b32 s{sT1}, s{sWH}, 4
    s_add_u32 s{sT0}, s{sT0}, s{sT1}
    s_lshl_b32 s{sT1}, s{sW}, 2
    s_add_u32 s{sT0}, s{sT0}, s{sT1}
    s_add_u32 s{sF1}, s{sT0}, {FQ}
    s_add_u32 s{sF2}, s{sT0}, {FQ + 128*KB}
    s_add_u32 s{sP1}, s{sT0}, {FQ + 256*KB}
    s_mov_b32 s{sP2}, s{sP1}
    s_lshl_b32 s{sT0}, s{sW}, 7
    s_add_u32 s{sFN}, s{sT0}, {FN + 32*KB}
    s_add_u32 s{sBB}, s{sW2}, 65536
    s_mov_b32 s{sU}, 0""")
    F = Fill(a)
    flag = lambda s_: f"buffer_store_dword v{vONE}, v{vFO}, {WS}, s{s_} offen sc1"
    FLD = f"buffer_load_dword v{vFL}, v{vFA}, {WS}, s{sFN} offen sc1"
    def dma(sN, sL):
        o = []
        for q in range(4):
            o.append(f"s_add_u32 m0, s{sL}, {q*8192}\ns_add_u32 s{sT1}, s{sN}, {q*256}")
            o += [f"buffer_load_dwordx4 v{vD+x}, {WS}, s{sT1} offen offset:{x*1024} sc1 lds" for x in range(2)]
        return o
    dma1 = lambda: dma(sN1, sBB) + [f"s_add_u32 s{sN1}, s{sN1}, 32768\ns_min_u32 s{sN1}, s{sN1}, s{sNE}\ns_xor_b32 s{sBB}, s{sBB}, 32768"]
    dma2 = lambda: dma(sN2, sW2)
    adn2 = f"s_add_u32 s{sN2}, s{sN2}, 32768\ns_add_u32 s{sFN}, s{sFN}, 512"
    def rd(vX, k, n):
        for t in range(2):
            e(f"ds_read_b128 {vr(R0+(n%4)*8+4*t,4)}, v{vX+4*t+(k&3)} offset:{(k>>2)*8192}"); lg.issue(("n", n, t))
    def cvts(isv, ACC):
        PK = PK1 if ACC == ACC1 else PK2
        L = [f"v_cvt_pk_bf16_f32 v{PK+8+r}, v{ACC+16+r}, v{ACC+20+r}" for r in range(4)]
        if not isv: return L + [f"v_cvt_pk_bf16_f32 v{PK+4*x+r}, v{ACC+8*x+r}, v{ACC+8*x+4+r}" for x in range(2) for r in range(4)]
        L += [f"v_cvt_pk_bf16_f32 v{PK+4*x+r}, v{ACC+4*x+r}, v{ACC+8+4*x+r}" for x in range(2) for r in range(4)]
        return L + [f"v_alignbit_b32 v{PK+r}, v{PK+r}, v{PK+r}, s{sROT}" for r in range(8)]
    def stores(isv, sO, PK):
        L = [f"s_add_u32 s{sT0}, s{sO}, s{sQD}", f"buffer_store_dwordx4 {vr(PK+8,4)}, v{vO}, {WS}, s{sT0} offen sc1"]
        for x in range(2):
            L.append(f"buffer_store_dwordx4 {vr(PK+4*x,4)}, v{vL16}, {WS}, s{sO} offen offset:{x*1024} sc1" if isv else
                     f"buffer_store_dwordx4 {vr(PK+4*x,4)}, v{vO+x}, {WS}, s{sO} offen sc1")
        return L
    sROT = 85
    e(f"s_and_b32 s{sROT}, s{sW}, 1\ns_lshl_b32 s{sROT}, s{sROT}, 4")
    def compute(isv, vX, ACC, n0, hooks, nxt=None, pre=True, keep=False):
        if pre: rd(vX, 0, n0); rd(vX, 1, n0 + 1)
        for k in range(16):
            if k in hooks: hooks[k]()
            if k + 2 < 16: rd(vX, k + 2, n0 + k + 2)
            elif nxt is not None: rd(nxt, k - 14, n0 + k + 2)
            n = n0 + k
            for t in range(2):
                lg.wait(("n", n, t))
                nf = vr(R0 + (n % 4) * 8 + 4 * t, 4)
                for j in range(2):
                    acc = vr(ACC + (t * 2 + j) * 4, 4); wf = ar(k * 8 + j * 4, 4)
                    c = "0" if k == 0 else acc
                    sl = 0 if (t, j) == (1, 1) else 3
                    if isv: F.mf(f"{MF} {acc}, {nf}, {wf}, {c}", sl, 2)
                    else:   F.mf(f"{MF} {acc}, {wf}, {nf}, {c}", sl, 2)
                if t == 0:
                    for j in range(2):
                        acc = vr(ACC + 16 + j * 4, 4)
                        F.mf(f"{MF} {acc}, {ar(128 + k*8 + j*4, 4)}, {nf}, {'0' if k == 0 else acc}", 3 - j, 2)
        if not keep: F.flush()
    tog = [f"v_xor_b32 v{vB+i}, 32768, v{vB+i}" for i in range(8)]
    adv1 = f"s_mov_b32 s{sP1}, s{sF1}\ns_add_u32 s{sO1}, s{sO1}, 262144\ns_add_u32 s{sF1}, s{sF1}, 2048"
    e(f"s_cmp_eq_u32 s{sWH}, 2\ns_cbranch_scc1 L_qkv_v_{m}")
    for isv in (False, True):
        T = f"{'v' if isv else 'k'}_{m}"
        if isv: e(f"L_qkv_v_{m}:")
        e("\n".join(dma1()))
        e(f"L_qkv_p1_{T}:\ns_waitcnt vmcnt(0)\n{flag(sP1)}\ns_barrier")
        G.stamp(0)
        lg.set([]); F.mem(*dma1())
        compute(isv, vB, ACC1, 0, {})
        e("\n".join(cvts(isv, ACC1) + stores(isv, sO1, PK1) + tog) + f"\n{adv1}\ns_add_u32 s{sU}, s{sU}, 1")
        G.stamp(4); G.stamp(9, True); G.ts_flush(sU, 250)
        e(f"s_cmp_lt_u32 s{sU}, {P}\ns_cbranch_scc1 L_qkv_p1_{T}\n{FLD}\ns_waitcnt vmcnt(0)\n{flag(sP1)}\ns_barrier\n" + "\n".join(dma1()))
        e(f"s_mov_b32 s{sE1}, s{sE2}\ns_mov_b32 s{sQ1}, s{sP2}")
        lg.set([]); rd(vB, 0, 0); rd(vB, 1, 1)
        Lsp, Lgo = a.lab("L_spin"), a.lab("L_go")
        e(f"L_qkv_loop_{T}:"); G.mark(2, sU, P + 1)
        G.stamp(0)
        d2 = dma2()
        VG = G.opt.get("vg", 5)
        def h0():
            e(f"s_waitcnt vmcnt(8)\nv_cmp_eq_u32 s[{sISS}:{sISS+1}], 0, v{vFL}")
            G.stamp(5); F.vgap = 4; F.add(*cvts(isv, ACC2)); F.mem(*d2[:6])
        def h2a(): assert not F.q; e("s_barrier"); F.vgap = VG; F.mem(*stores(isv, sE2, PK2), *d2[6:], *stores(isv, sE1, PK1))
        def h14():
            F.flush()
            e(f"s_cmp_lg_u32 s{sISS}, 0\ns_cbranch_scc1 {Lsp}\n{Lgo}:"); G.stamp(1); G.stamp(10, True)
            e(f"s_waitcnt vmcnt(7)\ns_barrier\n{flag(sP2)}\n{adn2}")
        hk = {0: h0, 3: h2a, 14: h14}
        if G.opt.get("c1s"):
            hk[3] = lambda: (G.stamp(7), h2a(), G.stamp(8)); hk[G.opt["c1s"]] = lambda: G.stamp(6)
        compute(isv, vB, ACC1, 0, hk, nxt=vA, pre=False)
        G.stamp(2); [G.mark(k, sU, P) for k in (0, 1, 3, 4)]
        def h2(): F.add(*cvts(isv, ACC1), *tog, f"s_mov_b32 s{sE1}, s{sO1}", adv1)
        def h4(): e(FLD)
        def h6():
            assert not F.q
            st = (lambda k: None) if G.opt.get("c1s") else G.stamp
            st(7); e(f"s_waitcnt vmcnt(2)\ns_barrier\n{flag(sQ1)}\ns_mov_b32 s{sQ1}, s{sP1}"); st(8); G.ts_store(250)
            F.vgap = VG; F.mem(*dma1())
        def h12(): e("s_barrier"); G.opt.get("c1s") or G.stamp(6)
        compute(isv, vA, ACC2, 16, {2: h2, G.opt.get("fk", 4): h4, 6: h6, 12: h12}, nxt=vB, pre=False)
        G.stamp(3); G.stamp(11, True)
        adv2 = f"""s_mov_b32 s{sE2}, s{sO2}
        s_mov_b32 s{sP2}, s{sF2}
        s_add_u32 s{sO2}, s{sO2}, 262144
        s_add_u32 s{sF2}, s{sF2}, 2048
        s_add_u32 s{sU}, s{sU}, 1"""
        e(adv2)
        G.stamp(4); G.stamp(9, True); G.ts_flush(sU, 250, store=False)
        e(f"s_cmp_lt_u32 s{sU}, 64\ns_cbranch_scc1 L_qkv_loop_{T}")
        e("\n".join(stores(isv, sE1, PK1)) + f"\ns_mov_b32 s{sP1}, s{sQ1}")
        e(f"L_qkv_p3_{T}:"); G.mark(2, sU, P + 1)
        e("\n".join(cvts(isv, ACC2) + stores(isv, sE2, PK2)))
        e(f"{FLD}\ns_waitcnt vmcnt(0) lgkmcnt(0)\n{flag(sP2)}\n{flag(sP1)}\ns_cmp_eq_u32 s{sU}, {64 + P}\ns_cbranch_scc1 {G.endlab}")
        L3, L3o = a.lab("L_p3"), a.lab("L_p3o")
        e(f"s_barrier\n{L3}:\nv_cmp_eq_u32 vcc, 0, v{vFL}\ns_cbranch_vccz {L3o}"); G.timeout(far=True)
        e(f"{FLD}\ns_waitcnt vmcnt(0)\ns_branch {L3}\n{L3o}:")
        G.stamp(0); G.stamp(1); G.stamp(10, True); G.mark(3, sU, P); G.mark(1, sU, P); G.mark(4, sU, P)
        e("\n".join(dma2()) + f"\n{adn2}\ns_waitcnt vmcnt(6)\ns_barrier")
        G.stamp(2); G.mark(0, sU, P)
        lg.set([])
        compute(isv, vA, ACC2, 0, {k: (lambda n=n: e(f"s_waitcnt vmcnt({n})\ns_barrier")) for k, n in ((2, 4), (6, 2), (10, 0))})
        G.stamp(3); G.stamp(11, True)
        e(adv2)
        G.stamp(4); G.stamp(9, True); G.ts_flush(sU, 250)
        e(f"s_branch L_qkv_p3_{T}")
        Ls2 = a.lab("L_spin2")
        e(f"{Lsp}:\n{FLD}\ns_waitcnt vmcnt(0)\n{flag(sP2)}\n{flag(sQ1)}\n{Ls2}:\nv_cmp_eq_u32 vcc, 0, v{vFL}\ns_cbranch_vccz {Ls2}o"); G.timeout(0, far=True)
        e(f"{FLD}\ns_waitcnt vmcnt(0)\ns_branch {Ls2}\n{Ls2}o:")
        if G.ts: e("s_add_u32 s73, s73, 1")
        e("\n".join(dma2()) + f"\ns_waitcnt vmcnt(4)\ns_branch {Lgo}")
    if m == "L": G.far_fallback("L_fb_qkv")
```

```python
import sys
from asmlib import *

KNAME = "interleave_layers__memory_aug_recurrent_mem_tr__glu_gated_swiglu__prompt_kernel"
KB = 1024; MB = 1 << 20
FN    = 16 * KB
FQ    = 128 * KB
MEMR  = 512 * KB
CPART = 1 * MB
APART = 2 * MB
NB    = 10 * MB
XB    = 18 * MB
KMVM  = 24 * MB
QKV   = 40 * MB
TSB   = 140 * MB
WS_BYTES = 268435456

S_WS, S_DBG, S_A, S_B, S_C, S_D = 4, 8, 12, 16, 20, 24
sW, sXCC, sRANK, sGRP, sTO = 32, 33, 34, 35, 36
P_X, P_MEM0, P_WQ, P_WK, P_WV, P_WO = 48, 50, 52, 54, 56, 58
P_W1, P_W3, P_W2, P_OUT, P_DBG, P_WSP = 64, 66, 68, 70, 72, 74
sT0, sT1, sT2, sT3, sT4, sT5 = 40, 41, 42, 43, 44, 45
sPLO, sPHI = 46, 47
vTID, vLANE, vL16 = 0, 1, 2
XV = 32

class Gen:
    def __init__(self, LAG=14, roles="cqaf", force_fallback=False, ts='', emit_global=True, dbgdump=False, opt=None):
        self.a = Asm(); self.LAG = LAG; self.roles = roles; self.ff = force_fallback; self.ts = ts
        self.emit_global = emit_global; self.endlab = 'L_end0'; self.vxk = 5; self.P = LAG; self.opt = opt or {}; self.dbgdump = dbgdump
    def e(self, s): self.a.e(s)
    def srd(self, d, p, nbytes):
        self.e(f"s_mov_b32 s{d}, s{p}\ns_mov_b32 s{d+1}, s{p+1}\ns_mov_b32 s{d+2}, {nbytes}\ns_mov_b32 s{d+3}, 0x20000")
    def timeout(self, cnt=None, far=False):
        if far and self.opt.get("sl", 0): self.e(f"s_sleep {self.opt['sl']}")
        if self.ts and cnt is not None: self.e(f"s_add_u32 s{72+cnt}, s{72+cnt}, 1")
        self.e(f"s_sub_u32 s{sTO}, s{sTO}, 1\ns_cbranch_scc1 {self.endlab}")
    def row_sum(self, v, op="v_add_f32"):
        for r in (8, 4, 2, 1):
            self.e(f"{op}_dpp v{v}, v{v}, v{v} row_ror:{r} row_mask:0xf bank_mask:0xf")
    def x16(self, v, t, op="v_add_f32"):
        self.e(f"v_mov_b32 v{t}, v{v}\nv_permlane16_swap_b32 v{v}, v{t}\n{op} v{v}, v{v}, v{t}")
    def x32(self, v, t, op="v_add_f32"):
        self.e(f"v_mov_b32 v{t}, v{v}\nv_permlane32_swap_b32 v{v}, v{t}\n{op} v{v}, v{v}, v{t}")

    def prologue(self):
        e = self.e
        e(f"""
        s_cmp_ge_u32 s2, 256
        s_cbranch_scc1 L_end0
        s_load_dwordx16 s[48:63], s[0:1], 0
        s_load_dwordx8 s[64:71], s[0:1], 64
        s_load_dwordx4 s[72:75], s[0:1], 96
        s_getreg_b32 s{sXCC}, hwreg(HW_REG_XCC_ID, 0, 4)
        v_lshrrev_b32 v3, 6, v0
        v_and_b32 v{vLANE}, 63, v0
        v_readfirstlane_b32 s{sW}, v3
        v_lshlrev_b32 v{vL16}, 4, v{vLANE}
        s_and_b32 s{sXCC}, s{sXCC}, 7
        s_mov_b32 s{sTO}, 0x100000
        s_mov_b32 s{sPLO}, 0x05040100
        s_mov_b32 s{sPHI}, 0x07060302
        s_waitcnt lgkmcnt(0)""")
        self.srd(S_WS, P_WSP, WS_BYTES); self.srd(S_DBG, P_DBG, 256)
        if self.ts:
            e("s_memrealtime s[98:99]\ns_memrealtime s[96:97]\ns_waitcnt lgkmcnt(0)\ns_mov_b32 s73, s96")
        e(f"""
        s_cmp_lg_u32 s{sW}, 0
        s_cbranch_scc1 L_noatom
        v_mov_b32 v4, 1
        s_lshl_b32 s{sT3}, s{sXCC}, 5
        v_mov_b32 v5, s{sT3}
        s_mov_b64 exec, 1
        buffer_atomic_add v4, v5, s[{S_DBG}:{S_DBG+3}], 0 offen sc0
        s_mov_b64 exec, -1
        L_noatom:""")
        self.n1_part()
        e(f"""s_cmp_lg_u32 s{sW}, 0
        s_cbranch_scc1 L_norank
        v_mov_b32 v5, 0
        s_mov_b64 exec, 1
        ds_write_b32 v5, v4
        s_mov_b64 exec, -1
        s_waitcnt lgkmcnt(0)
        L_norank:
        s_barrier
        v_mov_b32 v5, 0
        ds_read_b32 v4, v5
        s_waitcnt lgkmcnt(0)
        v_readfirstlane_b32 s{sRANK}, v4
        s_mov_b32 s{sGRP}, s{sXCC}
        s_barrier
        s_cmp_ge_u32 s{sRANK}, 32
        s_cbranch_scc1 L_wait_fallback""")
        if self.ff: e("s_branch L_wait_fallback")
        self.dispatch("L")
        e("L_wait_fallback:\ns_waitcnt vmcnt(0)\ns_barrier")
        self.done_add(4, "L")
        self.census_issue(4); self.census_check(4, None)
        e("L_fallback:")
        if self.emit_global:
            e(f"""s_waitcnt vmcnt(0) lgkmcnt(0)
            s_barrier
            s_lshr_b32 s{sGRP}, s2, 5
            s_and_b32 s{sRANK}, s2, 31""")
            self.dispatch("G")
        else:
            e("s_endpgm")
    def n1_part(self):
        e = self.e; d = XV + 16; t = XV + 24
        self.srd(S_A, P_X, 2 * MB)
        e(f"""s_lshl_b32 s{sT0}, s2, 2
        s_add_u32 s{sT0}, s{sT0}, s{sW}
        s_lshl_b32 s{sT1}, s{sT0}, 10""")
        for k in range(2):
            e(f"s_add_u32 s{sT2}, s{sT1}, {k*MB}\nbuffer_load_dwordx4 {vr(XV+4*k,4)}, v{vL16}, s[{S_A}:{S_A+3}], s{sT2} offen")
        e(f"""v_mov_b32 v{d}, 0
        v_mov_b32 v{d+1}, 0
        v_lshlrev_b32 v{t}, 3, v{vLANE}
        s_lshl_b32 s{sT2}, s{sT0}, 9
        buffer_store_dwordx2 {vr(d,2)}, v{t}, s[{S_WS}:{S_WS+3}], s{sT2} offen sc1
        s_add_u32 s{sT1}, s{sT1}, {NB}
        s_bfe_u32 s{sT0}, s{sT0}, 0x40001
        v_xor_b32 v{t+3}, s{sT0}, v{vLANE}
        v_lshlrev_b32 v{t+3}, 4, v{t+3}""")
        for k in range(2):
            src = XV + 4*k
            e("s_waitcnt vmcnt(2)")
            for i in range(4):
                e(f"v_lshlrev_b32 v{d+2*i}, 16, v{src+i}\nv_and_b32 v{d+2*i+1}, 0xffff0000, v{src+i}")
            e(f"v_add_f32 v{t}, v{d}, v{d+1}")
            for i in range(2, 8): e(f"v_add_f32 v{t}, v{t}, v{d+i}")
            self.row_sum(t); self.x16(t, t + 1); self.x32(t, t + 1)
            e(f"v_mul_f32 v{t}, 0x3b000000, v{t}")
            for i in range(8): e(f"v_sub_f32 v{d+i}, v{d+i}, v{t}")
            e(f"v_mul_f32 v{t+2}, v{d}, v{d}")
            for i in range(1, 8): e(f"v_fmac_f32 v{t+2}, v{d+i}, v{d+i}")
            self.row_sum(t + 2); self.x16(t + 2, t + 1); self.x32(t + 2, t + 1)
            e(f"v_mov_b32 v{t+1}, 0x3727c5ac\nv_fmac_f32 v{t+1}, 0x3b000000, v{t+2}\nv_rsq_f32 v{t+1}, v{t+1}")
            for i in range(8): e(f"v_mul_f32 v{d+i}, v{d+i}, v{t+1}")
            for i in range(4): e(f"v_cvt_pk_bf16_f32 v{src+i}, v{d+2*i}, v{d+2*i+1}")
            e(f"buffer_store_dwordx4 v[{src}:{src+3}], v{t+3}, s[{S_WS}:{S_WS+3}], s{sT1} offen sc1\ns_add_u32 s{sT1}, s{sT1}, {MB}")
    def done_add(self, v, m):
        L = self.a.lab("L_da")
        self.e(f"""s_cmp_lg_u32 s{sW}, 0
        s_cbranch_scc1 {L}
        v_mov_b32 v{v}, 1
        s_lshl_b32 s{sT0}, s{sXCC}, 5
        v_mov_b32 v{v+1}, s{sT0}
        s_mov_b64 exec, 1
        buffer_atomic_add v{v}, v{v+1}, s[{S_DBG}:{S_DBG+3}], 0 offen offset:{4 if m == "L" else 12}
        s_mov_b64 exec, -1
        {L}:""")
    def warm(self, idx_expr, nwg, XV):
        if not self.opt.get("warm", 1): return
        e = self.e; per = -(-4096 // (nwg * 4))
        e(f"{idx_expr}\ns_lshl_b32 s{sT0}, s{sT0}, 2\ns_add_u32 s{sT0}, s{sT0}, s{sW}\ns_mul_i32 s{sT0}, s{sT0}, {per*1024}")
        for p in (P_WK, P_WV, P_WQ, P_WO):
            self.srd(S_A, p, 4*MB)
            for i in range(per):
                if i % 4 == 0: e(f"s_add_u32 s{sT1}, s{sT0}, {i*1024}")
                e(f"buffer_load_dwordx4 v[{XV}:{XV+3}], v{vL16}, s[{S_A}:{S_A+3}], s{sT1} offen offset:{(i%4)*1024}")
    def dispatch(self, m):
        e = self.e
        tab = self.opt.get("map", 3)
        T = {0: [(g, h) for g in range(8) for h in range(2)],
             1: [(0, 0), (0, 1), (1, 0), (1, 1), (2, 0), (4, 0), (2, 1), (5, 0), (3, 0), (4, 1), (3, 1), (5, 1), (6, 0), (7, 0), (6, 1), (7, 1)],
             2: [(0, 0), (0, 1), (1, 0), (1, 1), (2, 0), (4, 0), (2, 1), (6, 0), (3, 0), (4, 1), (3, 1), (6, 1), (5, 0), (7, 0), (5, 1), (7, 1)],
             3: [(0, 0), (0, 1), (1, 0), (1, 1), (2, 0), (4, 0), (2, 1), (7, 0), (3, 0), (4, 1), (3, 1), (7, 1), (5, 0), (6, 0), (5, 1), (6, 1)],
             4: [(0, 0), (0, 1), (1, 0), (1, 1), (2, 0), (6, 0), (2, 1), (7, 0), (3, 0), (6, 1), (3, 1), (7, 1), (4, 0), (5, 0), (4, 1), (5, 1)]}[tab]
        word = sum((g*2 + h) << (4*i) for i, (g, h) in enumerate(T))
        e(f"""s_lshl_b32 s{sT0}, s{sGRP}, 1
        s_lshr_b32 s{sT1}, s{sRANK}, 4
        s_add_u32 s{sT0}, s{sT0}, s{sT1}
        s_lshl_b32 s{sT0}, s{sT0}, 2
        s_mov_b32 s{sT2}, {word & 0xffffffff}
        s_mov_b32 s{sT3}, {word >> 32}
        s_lshr_b64 s[{sT2}:{sT3}], s[{sT2}:{sT3}], s{sT0}
        s_bfe_u32 s{sGRP}, s{sT2}, 0x30001
        s_and_b32 s{sT2}, s{sT2}, 1
        s_lshl_b32 s{sT2}, s{sT2}, 4
        s_and_b32 s{sRANK}, s{sRANK}, 15
        s_or_b32 s{sRANK}, s{sRANK}, s{sT2}""")
        e(f"s_cmp_le_u32 s{sGRP}, 1\ns_cbranch_scc1 L_go_chain_{m}")
        e(f"s_cmp_le_u32 s{sGRP}, 3\ns_cbranch_scc1 L_go_qkv_{m}")
        e(f"s_bitcmp1_b32 s{sGRP}, 0\ns_cbranch_scc1 L_go_ffn_{m}")
        for r in ("att", "chain", "qkv", "ffn"):
            if r != "att": e(f"L_go_{r}_{m}:")
            if r[0] in self.roles:
                e(f"s_getpc_b64 s[{sT0}:{sT0+1}]\nL_pc_{r}_{m}:\ns_add_u32 s{sT0}, s{sT0}, R_{r}_{m}-L_pc_{r}_{m}\ns_addc_u32 s{sT0+1}, s{sT0+1}, 0\ns_setpc_b64 s[{sT0}:{sT0+1}]")
            else:
                e("s_endpgm")
    def census_ld(self, v, m):
        if m == "L": return f"buffer_load_dwordx2 v[{v}:{v+1}], v{v+2}, s[{S_DBG}:{S_DBG+3}], 0 offen sc1"
        return f"buffer_load_dword v{v+1}, v{v+2}, s[{S_DBG}:{S_DBG+3}], 0 offen offset:12 sc1"
    def census_issue(self, v, m="L"):
        self.e(f"v_lshlrev_b32 v{v+2}, 5, v{vLANE}\n" + self.census_ld(v, m))
    def census_check(self, v, fail, waited=False, m="L"):
        e = self.e; L = self.a.lab("L_cen"); Lok = self.a.lab("L_cenok")
        if not waited: e("s_waitcnt vmcnt(0)")
        e(f"{L}:\ns_mov_b32 s{sT0}, 0")
        for l in range(8):
            e(f"v_readlane_b32 s{sT1}, v{v+1}, {l}\ns_add_u32 s{sT0}, s{sT0}, s{sT1}")
        e(f"s_cmp_eq_u32 s{sT0}, 256\ns_cbranch_scc1 {Lok}")
        self.timeout()
        e(f"s_sleep 4\n{self.census_ld(v, m)}\ns_waitcnt vmcnt(0)\ns_branch {L}\n{Lok}:")
        if fail and m == "L":
            e(f"v_cmp_ne_u32 vcc, {33 if self.opt.get('failc') else 32}, v{v}\ns_and_b32 s{sT0}, vcc_lo, 0xff\ns_cbranch_scc1 {fail}")
    def ready_add(self, v):
        L = self.a.lab("L_ra")
        self.e(f"""s_cmp_lg_u32 s{sW}, 0
        s_cbranch_scc1 {L}
        v_mov_b32 v{v}, 1
        s_lshl_b32 s{sT0}, s{sGRP}, 5
        v_mov_b32 v{v+1}, s{sT0}
        s_mov_b64 exec, 1
        buffer_atomic_add v{v}, v{v+1}, s[{S_DBG}:{S_DBG+3}], 0 offen offset:8
        s_mov_b64 exec, -1
        {L}:""")
    def ready_wait(self, v, mul=32, add=0):
        L = self.a.lab("L_rw"); Lo = self.a.lab("L_rwo")
        self.e(f"""s_mul_i32 s{sT0}, s{sGRP}, {mul}
        s_add_u32 s{sT0}, s{sT0}, {add}
        v_mov_b32 v{v+1}, s{sT0}
        {L}:
        buffer_load_dword v{v}, v{v+1}, s[{S_DBG}:{S_DBG+3}], 0 offen offset:8 sc1
        s_waitcnt vmcnt(0)
        v_cmp_ne_u32 vcc, 32, v{v}
        s_cbranch_vccz {Lo}""")
        self.timeout()
        self.e(f"s_sleep 2\ns_branch {L}\n{Lo}:")
    def far_fallback(self, name):
        self.e(f"{name}:\ns_getpc_b64 s[{sT0}:{sT0+1}]\n{name}_pc:\ns_add_u32 s{sT0}, s{sT0}, L_fallback-{name}_pc\ns_addc_u32 s{sT0+1}, s{sT0+1}, -1\ns_setpc_b64 s[{sT0}:{sT0+1}]")

    def wstream(self, blocks, stage0, depth, hooks=None):
        e = self.e; hooks = hooks or {}
        n = len(blocks); T = stage0 + 8 * depth
        for b in range(n + depth - 1):
            if b in hooks: hooks[b]()
            if b < n:
                srd, addrs, so, _, _ = blocks[b]
                st = stage0 + 8 * (b % depth)
                e(so)
                for i, (va, imm) in enumerate(addrs):
                    e(f"buffer_load_dword v{st+i}, v{va}, s[{srd}:{srd+3}], s{sT5} offen" + (f" offset:{imm}" if imm else ""))
            c = b - (depth - 1)
            if c >= 0:
                later = min(n - 1, b) - c
                e(f"s_waitcnt vmcnt({8*later})")
                st = stage0 + 8 * (c % depth)
                for p in range(4):
                    e(f"v_perm_b32 v{T+p}, v{st+2*p+1}, v{st+2*p}, s{sPLO}")
                    e(f"v_perm_b32 v{T+4+p}, v{st+2*p+1}, v{st+2*p}, s{sPHI}")
                blocks[c][3](T); blocks[c][4](T + 4)
    def wdma(self, blocks, slots, vD, T, offs, hooks=None, tail=None):
        e = self.e; hooks = hooks or {}; n = len(blocks); ns = len(slots)
        def issue(b):
            srd, so = blocks[b][:2]; sb, off, _ = slots[b % ns]
            e(f"{so}\ns_add_u32 m0, s{sb}, {off}")
            for x in range(2): e(f"buffer_load_dwordx4 v{vD+x}, s[{srd}:{srd+3}], s{sT5} offen offset:{x*1024} lds")
        for b in range(min(ns, n)): issue(b)
        extra = 0
        for c in range(n):
            if c in hooks: hooks[c]()
            e(f"s_waitcnt vmcnt({2*(min(n, c + ns) - 1 - c) + extra})")
            _, off, va = slots[c % ns]
            for i in range(8): e(f"ds_read_b32 v{T+8+i}, v{va} offset:{off + offs[i]*64}")
            for p in range(4):
                e(f"s_waitcnt lgkmcnt({6-2*p})\nv_perm_b32 v{T+p}, v{T+9+2*p}, v{T+8+2*p}, s{sPLO}\nv_perm_b32 v{T+4+p}, v{T+9+2*p}, v{T+8+2*p}, s{sPHI}")
            if c + ns < n: issue(c + ns)
            elif tail: extra += tail(c + ns - n)
            blocks[c][2](T); blocks[c][3](T + 4)
    def wdma_addr(self, vD, vR, stride, rows, tmp):
        self.e(f"""v_lshrrev_b32 v{tmp}, 2, v{vLANE}
        v_mul_u32_u24 v{tmp}, {stride}, v{tmp}
        v_and_b32 v{vD}, 3, v{vLANE}
        v_lshl_add_u32 v{vD}, v{vD}, 4, v{tmp}
        v_add_u32 v{vD+1}, {16*stride - 1024}, v{vD}
        v_and_b32 v{tmp}, 15, v{vLANE}
        v_lshlrev_b32 v{tmp}, 2, v{tmp}
        v_lshl_add_u32 v{vR}, v{rows}, 6, v{tmp}""")
    def sink_a(self, base):
        return lambda T: [self.e(f"v_accvgpr_write_b32 a{base+p}, v{T+p}") for p in range(4)]
    def sink_v(self, base):
        return lambda T: [self.e(f"v_mov_b32 v{base+p}, v{T+p}") for p in range(4)]
    def sink_lds(self, va, off):
        return lambda T: self.e(f"ds_write_b128 v{va}, v[{T}:{T+3}] offset:{off}")

    def dump(self, base, n, slot, scond=None, val=0, cls="v"):
        if not self.dbgdump: return
        L = self.a.lab("L_dump")
        if scond is not None: self.e(f"s_cmp_lg_u32 s{scond}, {val}\ns_cbranch_scc1 {L}")
        self.e(f"""s_lshl_b32 s100, s{sRANK}, 2
        s_add_u32 s100, s100, s{sW}
        s_lshl_b32 s100, s100, 13
        s_add_u32 s100, s100, {TSB + 16*MB + slot*MB}
        s_mov_b64 s[96:97], exec
        s_mov_b64 exec, -1
        s_nop 15
        v_lshrrev_b32 v{vL16}, 2, v{vL16}""")
        for r in range(n):
            self.e(f"buffer_store_dword {cls}{base+r}, v{vL16}, s[{S_WS}:{S_WS+3}], s100 offen offset:{(r%16)*256}")
            if r % 16 == 15: self.e("s_add_u32 s100, s100, 4096")
        self.e(f"v_lshlrev_b32 v{vL16}, 2, v{vL16}\ns_waitcnt vmcnt(0)\ns_mov_b64 exec, s[96:97]\n{L}:")
    def stamp(self, k, real=False):
        if self.ts: self.e(f"{'s_memrealtime' if real else 's_memtime'} s[{48+2*k}:{49+2*k}]")
    def mark(self, k=0, sreg=37, add=0):
        if self.tse and self.opt.get("mk", 0) == k:
            L = self.a.lab("L_mk"); ms = self.opt.get("ms", 63)
            self.e(f"s_cmp_lg_u32 s{sreg}, {ms + add}\ns_cbranch_scc1 {L}\ns_memrealtime s[74:75]\n{L}:")
    def ts_store(self, v):
        if self.ts: self.e(f"s_mov_b64 exec, 0xffff\nbuffer_store_dword v{v}, v{v+1}, s[{S_WS}:{S_WS+3}], s100 offen\ns_mov_b64 exec, -1")
    def ts_flush(self, sitem, v, n=12, store=True):
        if not self.ts: return
        e = self.e
        e("s_waitcnt lgkmcnt(0)")
        for k in range(n): e(f"v_writelane_b32 v{v}, s{48+2*k}, {k}")
        for k in range(4): e(f"v_writelane_b32 v{v}, s{72+k}, {12+k}\ns_mov_b32 s{72+k}, 0")
        e(f"""s_mul_i32 s100, s{sGRP}, 80
        s_add_u32 s100, s100, s{sitem}
        s_lshl_b32 s100, s100, 5
        s_add_u32 s100, s100, s{sRANK}
        s_lshl_b32 s100, s100, 2
        s_add_u32 s100, s100, s{sW}
        s_lshl_b32 s100, s100, 6
        s_add_u32 s100, s100, {TSB}
        v_lshlrev_b32 v{v+1}, 2, v{vLANE}""")
        if store: self.ts_store(v)
    def wb_exit(self, m):
        if m == "L" and self.opt.get("wb", 0) & 1:
            L = self.a.lab("L_wb")
            self.e(f"s_and_b32 s{sT0}, s{sRANK}, 15\ns_or_b32 s{sT0}, s{sT0}, s{sW}\ns_cbranch_scc1 {L}\nbuffer_wbl2 sc1\n{L}:")
    def wb_mid(self, m, sS):
        if m == "L" and self.opt.get("wb", 0) & 2:
            L = self.a.lab("L_wb")
            self.e(f"s_and_b32 s{sT0}, s{sRANK}, 15\ns_cmp_lg_u32 s{sT0}, 15\ns_cbranch_scc1 {L}\ns_cmp_lg_u32 s{sW}, 0\ns_cbranch_scc1 {L}\ns_and_b32 s{sT0}, s{sS}, 62\ns_cmp_lg_u32 s{sT0}, 62\ns_cbranch_scc1 {L}\nbuffer_wbl2 sc1\n{L}:")
    def finish(self):
        e = self.e
        e(f""".section .rodata,"a"
        .p2align 6
        .amdhsa_kernel {KNAME}
        .amdhsa_next_free_vgpr 512
        .amdhsa_next_free_sgpr 102
        .amdhsa_accum_offset 256
        .amdhsa_group_segment_fixed_size 0
        .amdhsa_kernarg_size 112
        .amdhsa_user_sgpr_count 2
        .amdhsa_user_sgpr_kernarg_segment_ptr 1
        .amdhsa_system_sgpr_workgroup_id_x 1
        .end_amdhsa_kernel""")

    def build(self):
        import role_qkv, role_chain, role_att, role_ffn
        e = self.e
        e("""; One persistent launch, one workgroup per CU, weights resident in registers / LDS.
        ; 4/6 token attention + output projection, 5/7 SwiGLU.  Segments flow through the groups via d_ws.
        ; @launch grid=(256,1,1) block=(256,1,1) lds=163840""")
        e(f""".amdgcn_target "amdgcn-amd-amdhsa--gfx950"
        .text
        .globl {KNAME}
        .p2align 8
        .type {KNAME},@function
        {KNAME}:""")
        self.prologue()
        e("L_end0:\ns_endpgm")
        for m in (["L", "G"] if self.emit_global else ["L"]):
            for r, mod in (("chain", role_chain), ("qkv", role_qkv), ("att", role_att), ("ffn", role_ffn)):
                if r[0] in self.roles:
                    e(f".p2align 6\nR_{r}_{m}:")
                    self.endlab = f"L_end_{r}_{m}"
                    if self.opt.get("quit"): e("s_waitcnt vmcnt(0)\ns_endpgm")
                    tsall = self.ts; self.ts = r[0] in tsall; self.tsi = 'i' in tsall; self.tse = 'e' in tsall
                    mod.emit(self, m)
                    self.ts = tsall
                    e(f"{self.endlab}:\ns_endpgm")
        self.finish()
        if 'e' in self.ts:
            out = []
            for l in self.a.lines:
                if l.strip() == "s_endpgm" and any(x.startswith("R_") for x in out):
                    out += [x.strip() for x in f"""s_mov_b64 exec, -1
                    s_memrealtime s[94:95]
                    s_lshl_b32 s100, s2, 2
                    s_add_u32 s100, s100, s{sW}
                    s_lshl_b32 s100, s100, 4
                    s_add_u32 s100, s100, {TSB + 8*MB}
                    s_waitcnt lgkmcnt(0)
                    v_mov_b32 v4, s94
                    v_mov_b32 v5, s73
                    v_mov_b32 v6, s{sGRP}
                    v_mov_b32 v7, s74
                    v_mov_b32 v3, 0
                    buffer_store_dwordx4 v[4:7], v3, s[{S_WS}:{S_WS+3}], s100 offen""".split(chr(10))]
                out.append(l)
            self.a.lines = out
        return self.a.text()

if __name__ == "__main__":
    import argparse
    ap = argparse.ArgumentParser()
    ap.add_argument("-o", default="k.s"); ap.add_argument("--lag", type=int, default=14); ap.add_argument("--opt", default="")
    ap.add_argument("--roles", default="cqaf"); ap.add_argument("--ff", action="store_true")
    ap.add_argument("--ts", default=""); ap.add_argument("--noglobal", action="store_true"); ap.add_argument("--dump", action="store_true")
    A = ap.parse_args()
    t = Gen(A.lag, A.roles, A.ff, A.ts, not A.noglobal, A.dump, {k: int(v) for k, v in (x.split('=') for x in A.opt.split(',') if x)}).build()
    open(A.o, "w").write(t)
    print(A.o, len(t), "bytes", t.count("\n"), "lines")
```

```python
from asmlib import *
from gen import *
from red import *

def emit(G, m):
    e = G.e; a = G.a; lg = a.lg; F = Fill(a)
    R = Red(G, m, RL=192, RD=224, XR=228, T=232, X3=252, rot=True); T = R.T
    sQ, sKM, sFL, sBUF, sC, sKM0, sKT, sREL, sBK = 77, 78, 79, 80, 81, 24, 25, 26, 27
    sMK = 82
    vQA, vKMA, vVMA, vZ, vFv, vNEG, vOW, vHA, vFA, vLIM = 20, 21, 22, 33, 24, 25, 26, 27, 38, 39
    ONES, PZ, P = 28, 32, 40
    Q, K, KM, V, VM, S, O, SU, OF, PK = 44, 60, 92, 108, 140, 156, 168, 200, 204, 220
    BUFSZ, OXB = 49152, 98304
    e(f"s_sub_u32 s{sL}, s{sGRP}, 4\ns_lshr_b32 s{sL}, s{sL}, 1")
    R.setup()
    e(f"""
    s_cmp_eq_u32 s{sL}, 0
    s_cselect_b32 s{S_B}, s{P_X}, s{P_WSP}
    s_cselect_b32 s{S_B+1}, s{P_X+1}, s{P_WSP+1}
    s_cselect_b32 s{S_B+2}, {2*MB}, s{S_WS+2}
    s_mov_b32 s{S_B+3}, 0x20000
    s_cselect_b32 s{sXI}, 0, {XB + 2*MB}
    s_lshl_b32 s{sT0}, s{sL}, 22
    s_add_u32 s{sXO}, s{sT0}, {XB}
    s_add_u32 s{sNO}, s{sT0}, {NB + 2*MB}
    s_lshl_b32 s{sT0}, s{sL}, 16
    s_lshl_b32 s{sT1}, s{sRANK}, 5
    s_add_u32 s{sT0}, s{sT0}, s{sT1}
    s_lshl_b32 s{sT3}, s{sW}, 2
    s_add_u32 s{sT0}, s{sT0}, s{sT3}
    s_add_u32 s{sFO}, s{sT0}, {FN}
    s_lshl_b32 s{sT0}, s{sL}, 6
    s_add_u32 s{sT0}, s{sT0}, s{sSUB}
    s_lshl_b32 s{sT0}, s{sT0}, 5
    s_lshl_b32 s{sT1}, s{sCC}, 1
    s_add_u32 s{sT0}, s{sT0}, s{sT1}
    s_lshl_b32 s{sT1}, s{sT0}, 13
    s_lshl_b32 s{sT2}, s{sW}, 11
    s_add_u32 s{sT1}, s{sT1}, s{sT2}
    s_add_u32 s{sQ}, s{sT1}, {QKV}
    s_lshl_b32 s{sT1}, s{sT0}, 6
    s_add_u32 s{sFL}, s{sT1}, {FQ}
    s_lshr_b32 s{sT2}, s{sW}, 1
    s_lshl_b32 s{sT1}, s{sT2}, 6
    s_add_u32 s{sREL}, s{sFL}, s{sT1}
    s_and_b32 s{sT1}, s{sW}, 1
    s_lshl_b32 s{sT1}, s{sT1}, 2
    s_add_u32 s{sREL}, s{sREL}, s{sT1}
    s_add_u32 s{sREL}, s{sREL}, 48
    s_lshl_b32 s{sT1}, s{sCC}, 1
    s_add_u32 s{sT1}, s{sT1}, s{sT2}
    s_lshl_b32 s{sT1}, s{sT1}, 12
    s_lshl_b32 s{sT2}, s{sL}, 20
    s_add_u32 s{sT1}, s{sT1}, s{sT2}
    s_add_u32 s{sKM0}, s{sT1}, {KMVM}
    v_lshlrev_b32 v{vFA}, 2, v{vLANE}
    s_mov_b32 s{sBUF}, 0
    s_mov_b32 s{sC}, 0x3e0293ee
    v_mov_b32 v{vNEG}, 0xff800000
    v_mov_b32 v{vLIM}, {0x43960000 if not G.opt.get('lim0') else 0x3f000000}
    s_and_b32 s{sT0}, s{sW}, 1                   ; qt
    s_lshr_b32 s{sT2}, s{sW}, 1                  ; hh
    s_mul_i32 s{sT1}, s{sT2}, 24576
    v_add_u32 v{vHA}, s{sT1}, v{vL16}
    s_lshl_b32 s{sT1}, s{sT0}, 10
    v_add_u32 v{vQA}, s{sT1}, v{vHA}
    v_lshrrev_b32 v{T}, 2, v{vRHO}
    v_and_b32 v{T+1}, 1, v{vRHO}
    v_lshl_add_u32 v{T}, v{T}, 1, v{T+1}
    v_lshlrev_b32 v{T}, 4, v{T}
    v_lshl_add_u32 v{vKMA}, v{vG}, 7, v{T}
    v_lshlrev_b32 v{vVMA}, 3, v{vLANE}
    s_lshl_b32 s{sT1}, s{sW}, 12
    s_add_u32 s{sT1}, s{sT1}, {OXB}
    v_add_u32 v{vOW}, s{sT1}, v{vL16}
    v_lshl_add_u32 v{T}, v{vRHO}, 1, s{sT0}
    v_lshlrev_b32 v{T+1}, 3, v{vG}
    v_sub_u32 v{T}, v{T}, v{T+1}""")
    for t in range(2):
        for r in range(4): e(f"v_cmp_le_i32 s[{sMK+2*(t*4+r)}:{sMK+2*(t*4+r)+1}], {2*r+t}, v{T}")
    for r in range(4): e(f"v_mov_b32 v{ONES+r}, 0x3f803f80")
    for r in list(range(32, 38)) + list(range(VM, VM + 16)): e(f"v_mov_b32 v{r}, 0")
    R.start("L_fb_att")
    for p in range(4): e(f"v_mov_b32 v{T+p}, -1")
    e(f"s_and_b32 s{sT1}, s{sW}, 1\ns_lshl_b32 s{sT1}, s{sT1}, 11\ns_lshl_b32 s{sT2}, s{sSUB}, 17\ns_add_u32 s{sT2}, s{sT2}, s{sT1}\ns_add_u32 s{sT2}, s{sT2}, s{sKM0}")
    for n in range(4):
        for x in range(2): e(f"buffer_store_dwordx4 {vr(T,4)}, v{vL16}, {WS}, s{sT2} offen offset:{x*1024} sc1")
        e(f"s_add_u32 s{sT2}, s{sT2}, 262144")
    R.ring_init()
    REL = f"buffer_store_dword v{vONE}, v{vZ}, {WS}, s{sREL} offen sc1\ns_add_u32 s{sREL}, s{sREL}, 4096"
    R.late()
    def armed():
        e("s_barrier"); G.ready_add(T + 4)
        for n in range(4): e(REL)
    G.srd(S_C, P_WO, 4*MB)
    e(f"""
    s_lshl_b32 s{sT0}, s{sCC}, 18
    s_lshl_b32 s{sT1}, s{sW}, 8
    s_add_u32 s{sT0}, s{sT0}, s{sT1}
    v_lshlrev_b32 v240, 4, v{vRHO}
    v_lshl_add_u32 v240, v{vG}, 13, v240
    v_add_u32 v240, s{sT0}, v240
    v_add_u32 v241, 4096, v240
    s_lshr_b32 s{sT4}, s{sW}, 1
    s_lshl_b32 s{sT4}, s{sT4}, 17""")
    wide_blocks(G, [(S_C, [(240 + (i >> 2), (i & 3) * 1024) for i in range(8)], f"s_xor_b32 s{sT5}, s{sT4}, {b*32768}", b*32, "a") for b in range(8)], 44, 4, armed)
    G.ready_wait(T + 4)
    for r in range(VM, VM + 16): e(f"v_mov_b32 v{r}, 0")
    FLD = f"buffer_load_dword v{vFv}, v{vFA}, {WS}, s{sFL} offen sc1"
    KP = 240
    def fl_check():
        L = a.lab("L_sp"); Lo = a.lab("L_spo")
        e(f"v_cmp_eq_u32 vcc, 0, v{vFv}\ns_and_b32 s{sT0}, vcc_lo, 0x0ff00ff0\ns_cbranch_scc1 {L}\n{Lo}:")
        def slow():
            e(f"{L}:\ns_cmp_ge_u32 s{sS}, 62\ns_cbranch_scc1 {Lo}"); G.timeout(0, far=True)
            e(f"{FLD}\ns_waitcnt vmcnt(0)\nv_cmp_eq_u32 vcc, 0, v{vFv}\ns_and_b32 s{sT0}, vcc_lo, 0x0ff00ff0\ns_cbranch_scc1 {L}\ns_branch {Lo}")
        R.cold.append(slow)
    KMS = lambda d: f"s_add_u32 s{sT1}, s{sS}, {d}\ns_bfe_u32 s{sKT}, s{sT1}, 0x10003\ns_and_b32 s{sT1}, s{sT1}, 7\ns_lshl_b32 s{sT1}, s{sT1}, 17\ns_add_u32 s{sKM}, s{sT1}, s{sKM0}"
    KMP = "\n".join(f"buffer_load_dwordx4 {vr(KM+4*w,4)}, v{vKMA}, {WS}, s{sKM} offen offset:{w*512} sc1" for w in range(4))
    VMP = "\n".join(f"buffer_load_dwordx2 {vr(VM+4*w,2)}, v{vVMA}, {WS}, s{sKM} offen offset:{2048 + w*512} sc1" for w in range(4))
    def tagc(regs, t):
        L = [f"v_bitop3_b32 v{t+i}, v{regs[2*i]}, v{regs[2*i+1]}, s{sKT} bitop3:0x7e" for i in range(len(regs)//2)]
        n = len(regs)//2; j = 1
        while j < n:
            L.append(f"v_or3_b32 v{t}, v{t}, v{t+j}, v{t+min(j+1, n-1)}"); j += 2
        return L + [f"v_and_b32 v{t}, 1, v{t}", f"v_cmp_ne_u32 vcc, 0, v{t}"]
    KMC = tagc(list(range(KM, KM + 16)), O)
    VMC = tagc([VM + 4*w + x for w in range(4) for x in range(2)], O)
    def qkv_dma(out):
        out(f"s_lshl_b32 s{sT2}, s{sW}, 11\ns_add_u32 s{sT2}, s{sT2}, s{sBUF}")
        for hh in range(2):
            for wh in range(3):
                out(f"s_add_u32 m0, s{sT2}, {hh*24576 + wh*8192}\ns_add_u32 s{sT1}, s{sQ}, {wh*32*MB + hh*8192}")
                for t in range(2): out(f"buffer_load_dwordx4 v{vL16}, {WS}, s{sT1} offen offset:{t*1024} sc1 lds")
        out(f"s_add_u32 s{sQ}, s{sQ}, 524288")
    def rd(dst, va, off, tag):
        e(f"ds_read_b128 {vr(dst,4)}, v{va} offset:{off}"); lg.issue(tag)
    S0, S1, S2 = S + 8, S, S + 4
    mx, t0, A0, A1 = 248, 249, 246, 247
    def sx(side=(), bar=True):
        e(("s_barrier\n" if bar else "") + f"v_add_u32 v{A0}, s{sBUF}, v{vHA}\nv_add_u32 v{A1}, s{sBUF}, v{vQA}\ns_xor_b32 s{sBUF}, s{sBUF}, {BUFSZ}")
        lg.set([]); side = list(side)
        for w in range(4):
            rd(Q + 4*w, A1, w*2048, ("q", w)); rd(K + 8*w, A0, 8192 + w*2048, ("k", w)); rd(K + 8*w + 4, A0, 8192 + w*2048 + 1024, ("k", w))
        for w in range(4):
            lg.wait(("k", w))
            for D, A in ((S1, K + 8*w), (S2, K + 8*w + 4)):
                e(f"{MF} {vr(D,4)}, {vr(A,4)}, {vr(Q+4*w,4)}, {'0' if w == 0 else vr(D,4)}")
            if w in (0, 3) and side: e(side.pop(0))
        for w in range(4):
            rd(V + 8*w, A0, 16384 + w*2048, ("v", w)); rd(V + 8*w + 4, A0, 16384 + w*2048 + 1024, ("v", w))
        for t, D in enumerate((S1, S2)):
            for r in range(4): e(f"v_cndmask_b32 v{D+r}, v{vNEG}, v{D+r}, s[{sMK+2*(t*4+r)}:{sMK+2*(t*4+r)+1}]")
            if t == 0 and side: e(side.pop(0))
        e(f"v_max3_f32 v{mx}, v{S1}, v{S1+1}, v{S1+2}\nv_max3_f32 v{t0}, v{S1+3}, v{S2}, v{S2+1}\nv_max3_f32 v{mx}, v{mx}, v{S2+2}, v{S2+3}")
        for x in side: e(x)
        if bar: lg.set([])
    e(f"v_and_b32 v{vFA}, 124, v{vFA}\n{FLD}\ns_waitcnt vmcnt(0)"); fl_check(); qkv_dma(e)
    e(f"s_add_u32 s{sFL}, s{sFL}, 4096\n{KMS(0)}\n{FLD}\n{KMP}\ns_mov_b32 s{sBK}, 0\ns_waitcnt vmcnt(5)")
    SXC = G.opt.get("sxc", 0)
    if SXC: sx(); e("s_waitcnt lgkmcnt(0)")
    else: e("s_barrier")
    e(f"L_att_loop_{m}:")
    G.stamp(0); G.mark(1)
    if not SXC: sx(bar=False)
    Lk, Lko, Lk2, Lv1, Lj = (a.lab(x) for x in ("L_km", "L_kmo", "L_km2", "L_kv", "L_kj"))
    e(f"s_cmp_eq_u32 s{sBK}, 1\ns_cbranch_scc1 {Lv1}\ns_cmp_lt_u32 s{sS}, 2\ns_cbranch_scc1 {Lk}\ns_waitcnt vmcnt(2)\n{Lko}:")
    smm = [f"{MF} {vr(S0,4)}, {vr(KM+4*w,4)}, {vr(Q+4*w,4)}, {'0' if w == 0 else vr(S0,4)}" for w in range(4)]
    F.add(*KMC)
    for x in smm: F.mf(x, 3, 3)
    F.flush()
    e(f"s_cbranch_vccnz {Lk2}\n{Lj}:")
    def slow():
        e(f"{Lk2}:"); G.timeout(1, far=True); e(f"{KMP}\n{Lk}:\ns_waitcnt vmcnt(0)"); R.flush_pend(); e(f"s_branch {Lko}")
        e(f"{Lv1}:\n" + "\n".join(smm) + f"\ns_branch {Lj}")
    R.cold.append(slow)
    G.stamp(1); G.stamp(10, True); G.mark()
    Lx = a.lab("L_vx")
    VREQ = f"s_cmp_eq_u32 s{sBK}, 1\ns_cbranch_scc1 {Lx}\n{VMP}\n{Lx}:"
    if G.opt.get("vq", 1) == 0: e(VREQ)
    Lsm, Lsb = a.lab("L_smx"), a.lab("L_smb")
    e(f"v_max3_f32 v{t0}, v{t0}, v{S0}, v{S0+1}\nv_max_f32 v{mx}, v{mx}, v{t0}\nv_cmp_gt_f32 vcc, abs(v{mx}), v{vLIM}\ns_cbranch_vccnz {Lsm}\n{Lsb}:")
    def slow():
        e(f"{Lsm}:"); G.x16(mx, t0, "v_max_f32"); G.x32(mx, t0, "v_max_f32")
        for r in range(10): e(f"v_sub_f32 v{S+r}, v{S+r}, v{mx}")
        e(f"s_branch {Lsb}")
    R.cold.append(slow)
    for r in range(10): e(f"v_mul_f32 v{S+r}, s{sC}, v{S+r}")
    if G.opt.get("vq", 1) == 1: e(VREQ)
    for r in range(10): e(f"v_exp_f32 v{S+r}, v{S+r}")
    for r in range(4): e(f"v_cvt_pk_bf16_f32 v{P+r}, v{S1+r}, v{S2+r}")
    e(f"v_cvt_pk_bf16_f32 v{PZ+3}, v{S0}, v{S0+1}")
    e(f"{MF} {vr(SU,4)}, {vr(ONES,4)}, {vr(P,4)}, 0\n{MF} {vr(SU,4)}, {vr(ONES,4)}, {vr(PZ+2,4)}, {vr(SU,4)}")
    for w in range(4):
        lg.wait(("v", w))
        for j in range(2): F.mf(f"{MF} {vr(O+8*w+4*j,4)}, {vr(V+8*w+4*j,4)}, {vr(P,4)}, 0", 3, 2)
        if w == 2: F.add(f"v_rcp_f32 v{SU}, v{SU}\nv_mul_f32 v{S0}, v{S0}, v{SU}\nv_mul_f32 v{S0+1}, v{S0+1}, v{SU}")
    F.add(f"v_cvt_pk_bf16_f32 v{PZ}, v{S0}, v{S0+1}\nv_cvt_pk_bf16_f32 v{PZ+3}, v{S0}, v{S0+1}")
    F.add(*[f"v_mul_f32 v{O+r}, v{O+r}, v{SU}" for r in range(32)]); F.flush()
    def norm(w):
        for r in range(4): F.add(f"v_cvt_pk_bf16_f32 v{OF+4*w+r}, v{O+8*w+r}, v{O+8*w+4+r}")
        F.add(f"ds_write_b128 v{vOW}, {vr(OF+4*w,4)} offset:{w*1024}")
    Lv, Lvo = a.lab("L_vm"), a.lab("L_vmo")
    VMC = tagc([VM + 4*w + x for w in range(4) for x in range(2)], K)
    Ly = a.lab("L_vy")
    e(f"s_waitcnt vmcnt({2})\ns_cmp_eq_u32 s{sBK}, 1\ns_cbranch_scc1 {Ly}\n{Lvo}:\ns_waitcnt vmcnt(0)\n{Ly}:\n" + "\n".join(VMC) + f"\ns_cbranch_vccnz {Lv}")
    def slow(): e(f"{Lv}:"); G.timeout(3); e(f"{VMP}\ns_branch {Lvo}")
    R.cold.append(slow)
    for w in range(4):
        for j in range(2): F.mf(f"{MF} {vr(O+8*w+4*j,4)}, {vr(VM+4*w,4)}, {vr(PZ+2*j,4)}, {vr(O+8*w+4*j,4)}", 3, 2)
        if w == 2: norm(0)
    F.flush()
    G.stamp(4); G.mark(3)
    ACC = [44, 76]; AR = 108; XA = [None, 244, 245, T]
    lg.set(["ow"])
    def nrm(w):
        for r in range(4): F.add(f"v_cvt_pk_bf16_f32 v{OF+4*w+r}, v{O+8*w+r}, v{O+8*w+4+r}")
        def wr(): e(f"ds_write_b128 v{vOW}, {vr(OF+4*w,4)} offset:{w*1024}"); lg.issue("ow")
        wr.cost = (3, 0); wr.text = "ds_write"; F.add(wr)
    for w in range(1, 4): nrm(w)
    F.add(*[f"v_xor_b32 v{XA[x]}, {x*4096}, v{vOW}" for x in (2, 1, 3)])
    frs = [(b, a_, kd) for b in range(2) for a_ in range(2) for kd in range(4)]
    def ord_(n):
        b, a_, kd = frs[n]
        rd(AR + 4*(n % 3), XA[2*a_ + b], kd*1024, ("o", n))
    AN = G.opt.get("an", 4); EN = G.opt.get("en", 99)
    for n, (t, hh, kd) in enumerate(frs):
        if n == 2: assert not F.q; lg.wait("ow"); e("s_barrier")
        if 4 <= n + 2 < 16: ord_(n + 2)
        if n == 2:
            fl_check()
            F.mem(f"s_cmp_ge_u32 s{sS}, 62\ns_cselect_b32 s{sT2}, 524288, 0\ns_sub_u32 s{sQ}, s{sQ}, s{sT2}")
            Lr_ = a.lab("L_rel")
            e(f"s_cmp_ge_u32 s{sS}, 56\ns_cbranch_scc1 {Lr_}\n{REL}\n{Lr_}:")
            F.mem(f"s_add_u32 s{sFL}, s{sFL}, 4096", R.x_load(S_B)); qkv_dma(F.mem)
            nm = sum(t_.startswith("buffer_") for t_, _ in F.m)
        if n == AN:
            e(f"s_waitcnt vmcnt({nm - sum(t_.startswith('buffer_') for t_, _ in F.m)})"); R.flush_pend()
            G.stamp(2)
        if n == 8: G.stamp(3)
        if 8 <= n < 12: F.add(R.out_pack(ACC[0], n - 8, 0, PK - 4*(n & 1)))
        if n == EN: F.mem(*R.early())
        lg.wait(("o", n))
        A_ = OF + 4*kd if n < 4 else AR + 4*(n % 3)
        for j in range(8):
            D = vr(ACC[t] + 4*j, 4)
            F.mf(f"{MF} {D}, {vr(A_,4)}, {ar((hh*4+kd)*32+4*j,4)}, {'0' if n % 8 == 0 else D}", 3 if j < 7 else 1, 2)
    F.flush()
    for r in range(4): e(R.out_pack(ACC[1], r, 1, PK + 4*(r & 1) - 4))
    if EN > 15: e("\n".join(R.early()))
    G.stamp(5); G.mark(4)
    def cover(): e(KMS(2)); sx(KMP.split("\n")); return 4
    def idle():
        Lr, Ld = a.lab("L_kr"), a.lab("L_kd")
        e(f"s_waitcnt vmcnt(0)\n{FLD}\n" + "\n".join(KMC) + f"\ns_mov_b32 s{sBK}, 0\ns_cbranch_vccnz {Lr}\ns_mov_b32 s{sBK}, 1\n{VMP}\ns_branch {Ld}\n{Lr}:\n{KMP}\n{Ld}:")
    if SXC: R.reduce_rows(cover=cover, idle=idle)
    elif G.opt.get("k1", 0): R.reduce_rows(cover=lambda: (e(f"{KMS(2)}\n{KMP}"), 4)[1], idle=idle)
    else: R.reduce_rows(after=lambda: e(f"{KMS(2)}\n{FLD}"), side=KMP.split("\n"))
    G.stamp(8); G.stamp(11, True); G.mark(2)
    R.advance()
    G.stamp(9)
    if G.ts: e(f"s_sub_u32 s{sT5}, s{sS}, 1"); G.ts_flush(sT5, 250)
    e(f"s_cmp_lt_u32 s{sS}, 64\ns_cbranch_scc1 L_att_loop_{m}\ns_waitcnt vmcnt(0)")
    R.flush_pend()
    G.wb_exit(m)
    e("s_endpgm")
    for f in R.cold: f()
    if m == "L": G.far_fallback("L_fb_att")
```

```python
from asmlib import *
from gen import *
MF = "v_mfma_f32_16x16x32_bf16"
SM = "v_smfmac_f32_16x16x64_bf16"
OFFS = [0, 1, 8, 9, 2, 3, 10, 11]
OFFM = [0, 1, 4, 5, 2, 3, 6, 7]

def emit(G, m):
    e = G.e; a = G.a; vm = a.vm; lg = a.lg
    LS = "" if m == "L" else " sc1"
    WS = f"s[{S_WS}:{S_WS+3}]"
    sI, sK, sV, sTAG, sKM, sFL, sKB, sKM0, sKT = 37, 38, 39, 28, 29, 30, 31, 84, 85
    sPs, sRs, sMr, sMp, sC, sUP, sM2, sLIM, sHI = 76, 77, 78, 79, 80, 82, 81, 90, 89
    vLO = 27
    SPLIT = G.opt.get('split', 0); REP = G.opt.get('rep', 1); RST = G.opt.get('rst', 2) * 16384; LP = G.opt.get('lp', 0)
    vFv, vLW, vLA, vST, vQW, vTR, vTK, vOW, vPst, vPub, vTS, vKM, vVM, vFl, IDX, vKR, vKW, vZ, vTO = 0, 3, 4, 5, 6, 7, 8, 9, 10, 11, 12, 14, 15, 16, 17, 18, 19, 21, 26
    PM, VB, SEL, ONES, VX = 20, 28, 32, 36, 40
    MEM, WR, AV, AQ, AK = 48, 80, 104, 112, 120
    WQ0, WO0 = 128, 192
    LB = 131072; MEMF, QX, KXX, OX, KB0 = 0, 8192, 8192 + 2112, 0, 16384
    F = Fill(a); cold = []
    stamp = G.stamp
    G.srd(S_A, P_WQ, 4*MB); G.srd(S_B, P_WK, 4*MB); G.srd(S_C, P_WV, 4*MB); G.srd(S_D, P_WO, 4*MB)
    sWB, sSC, sCO = 86, 87, 88
    e(f"""
    v_and_b32 v90, 15, v{vLANE}              ; rho
    v_lshrrev_b32 v91, 4, v{vLANE}           ; g
    v_lshrrev_b32 v94, 1, v91
    v_and_b32 v95, 1, v91
    v_lshlrev_b32 v95, 2, v95
    v_lshl_add_u32 v95, v94, 4, v95
    s_lshl_b32 s{sT0}, s{sRANK}, 8
    s_lshl_b32 s{sT1}, s{sW}, 6
    s_add_u32 s{sCO}, s{sT0}, s{sT1}
    s_lshl_b32 s{sT0}, s{sRANK}, 17
    s_lshl_b32 s{sT1}, s{sW}, 8
    s_add_u32 s{sT0}, s{sT0}, s{sT1}
    v_lshlrev_b32 v92, 4, v90
    v_lshl_add_u32 v93, v95, 10, v92
    v_add_u32 v88, s{sT0}, v93
    v_add_u32 v89, 8192, v88
    s_lshl_b32 s{sWB}, s{sW}, 15
    s_lshl_b32 s{sSC}, s{sW}, 13
    s_add_u32 s{sSC}, s{sSC}, {LB}
    v_add_u32 v{vLW}, s{sWB}, v{vL16}""")
    e("v_lshlrev_b32 v95, 3, v91")
    G.wdma_addr(80, 82, 8192, 95, 84)
    e(f"v_add_u32 v83, s{sSC}, v82\nv_add_u32 v82, s{sWB}, v82")
    pos = lambda k, j: (k >> 1) * 16 + j * 8 + (k & 1) * 4
    so = lambda k: f"s_add_u32 s{sT5}, s{sCO}, {k*262144}"
    blocks = [(S_B, so(k), G.sink_a(pos(k, 0)), G.sink_a(pos(k, 1))) for k in range(16)]
    blocks += [(S_C, so(k), G.sink_a(128 + pos(k, 0)), G.sink_a(128 + pos(k, 1))) for k in range(16)]
    blocks += [(S_A, so(k), G.sink_v(WQ0 + 4*k), G.sink_lds(vLW, k*1024)) for k in range(16)]
    slots = [(sWB, 16384 + i*2048, 82) for i in range(8)] + [(sSC, i*2048, 83) for i in range(4)]
    WST = [16, 48]
    def wo_issue(k):
        e(f"s_mov_b32 s{sT5}, {k*32768}")
        for i in range(8): e(f"buffer_load_dwordx4 {vr(WST[k%2]+4*i,4)}, v{88 + (OFFS[i] >> 3)}, s[{S_D}:{S_D+3}], s{sT5} offen offset:{(OFFS[i] & 7)*1024}")
    def wo_take(k):
        st = WST[k % 2]
        for u in range(4):
            for p in range(4): e(f"v_perm_b32 v{WO0+4*(u*4+k)+p}, v{st+4*(2*p+1)+u}, v{st+4*(2*p)+u}, s{sPLO}")
            for p in range(4): e(f"v_perm_b32 v{104+4*(u&1)+p}, v{st+4*(2*p+1)+u}, v{st+4*(2*p)+u}, s{sPHI}")
            e(f"ds_write_b128 v{vLW}, {vr(104+4*(u&1),4)} offset:{16384 + (u*4+k)*1024}")
    e(f"""
    s_lshl_b32 s{sT2}, s{sGRP}, 19
    s_add_u32 s{sPs}, s{sT2}, {CPART}
    s_and_b32 s{sT3}, s{sW}, 1
    s_lshl_b32 s{sT0}, s{sT3}, 17
    s_lshl_b32 s{sT1}, s{sRANK}, 12
    s_add_u32 s{sT0}, s{sT0}, s{sT1}
    s_add_u32 s{sRs}, s{sT0}, s{sPs}
    s_lshl_b32 s{sT2}, s{sGRP}, 14
    s_add_u32 s{sT2}, s{sT2}, {MEMR + 8192}
    s_lshl_b32 s{sT0}, s{sW}, {10 if SPLIT else 11}
    s_add_u32 s{sMr}, s{sT0}, s{sT2}
    s_and_b32 s{sT0}, s{sRANK}, {REP - 1}
    s_mul_i32 s{sT0}, s{sT0}, {RST}
    s_add_u32 s{sMr}, s{sMr}, s{sT0}
    s_lshr_b32 s{sT0}, s{sRANK}, 3
    s_lshl_b32 s{sT0}, s{sT0}, 11
    s_lshl_b32 s{sT1}, s{sT3}, 9
    s_add_u32 s{sT0}, s{sT0}, s{sT1}
    s_and_b32 s{sT1}, s{sRANK}, 1
    s_lshl_b32 s{sT1}, s{sT1}, 10
    s_add_u32 s{sT0}, s{sT0}, s{sT1}
    s_bfe_u32 s{sT1}, s{sRANK}, 0x20001
    s_lshl_b32 s{sT1}, s{sT1}, 7
    s_add_u32 s{sT0}, s{sT0}, s{sT1}
    s_add_u32 s{sMp}, s{sT0}, s{sT2}
    v_bfe_u32 v93, v90, 1, 2
    v_lshlrev_b32 v93, 5, v93
    v_and_b32 v95, 1, v91
    v_lshl_add_u32 v93, v95, 4, v93
    v_and_b32 v95, 1, v90
    v_lshl_add_u32 v93, v95, 3, v93
    v_lshl_add_u32 v{vPub}, v94, 2, v93
    v_and_b32 v93, 7, v90
    v_lshlrev_b32 v93, 4, v93                    ; (rho&7)*16""")
    Lg = a.lab("L_go")
    e("s_waitcnt vmcnt(0)\ns_barrier"); G.done_add(96, m)
    e(f"s_cmp_eq_u32 s{sGRP}, 0\ns_cbranch_scc1 {Lg}")
    G.warm(f"s_add_u32 s{sT0}, s{sRANK}, 128", 160, 104); G.srd(S_A, P_WQ, 4*MB)
    G.census_issue(96, m); G.census_check(96, "L_fb_chain", False, m)
    if G.opt.get("late", 1): G.ready_wait(96, 0, 0)
    e(f"{Lg}:")
    def h_issue(): G.census_issue(96, m)
    def h_arm():
        G.census_check(96, "L_fb_chain", True, m)
        for r in range(4): e(f"v_mov_b32 v{100+r}, -1")
        e(f"s_lshr_b32 s{sT1}, s{sW}, 1\ns_lshl_b32 s{sT0}, s{sT1}, 18\ns_xor_b32 s{sT0}, s{sT0}, s{sRs}")
        for i in range(4): e(f"buffer_store_dwordx4 v[100:103], v{vL16}, {WS}, s{sT0} offen offset:{i*1024}{LS}")
        e(f"s_lshl_b32 s{sT0}, s{sT1}, 13\ns_xor_b32 s{sT0}, s{sT0}, s{sMp}")
        for r in range(REP): e(f"buffer_store_dword v100, v{vPub}, {WS}, s{sT0} offen{LS}\ns_add_u32 s{sT0}, s{sT0}, {RST}")
    def h_ready(): e("s_barrier"); G.ready_add(100)
    LBK = G.opt.get('lb', 8)
    def h_first():
        G.srd(S_A, P_MEM0, 8192)
        e(f"""
    v_bfe_u32 v86, v{vLANE}, 3, 2
    v_and_b32 v85, 1, v{vLANE}
    v_lshl_add_u32 v86, v86, 1, v85
    v_lshlrev_b32 v86, 10, v86
    v_bfe_u32 v85, v{vLANE}, 1, 2
    v_lshl_add_u32 v86, v85, 5, v86
    v_lshrrev_b32 v85, 5, v{vLANE}
    v_lshl_add_u32 v85, v85, 3, v86
    s_lshl_b32 s{sT0}, s{sW}, 8
    buffer_load_dwordx2 v[120:121], v85, s[{S_A}:{S_A+3}], s{sT0} offen
    buffer_load_dwordx2 v[122:123], v85, s[{S_A}:{S_A+3}], s{sT0} offen offset:16
    buffer_load_dwordx2 v[124:125], v85, s[{S_A}:{S_A+3}], s{sT0} offen offset:128
    buffer_load_dwordx2 v[126:127], v85, s[{S_A}:{S_A+3}], s{sT0} offen offset:144
    s_lshl_b32 s{sT2}, s{sGRP}, 11
    s_add_u32 s{sT2}, s{sT2}, s{sRANK}
    s_lshl_b32 s{sT0}, s{sT2}, 6
    s_lshl_b32 s{sT1}, s{sW}, 2
    s_add_u32 s{sT0}, s{sT0}, s{sT1}
    s_add_u32 s{sFL}, s{sT0}, {FQ}
    v_and_b32 v85, 1, v{vLANE}
    v_lshlrev_b32 v86, 4, v85
    v_add_u32 v86, 16, v86
    v_lshlrev_b32 v85, 2, v85
    v_subrev_u32 v85, s{sT1}, v85
    v_add_u32 v85, 48, v85
    v_and_b32 v87, 2, v{vLANE}
    v_cmp_eq_u32 vcc, 0, v87
    v_cndmask_b32 v102, v85, v86, vcc
    buffer_load_dword v{vFv}, v102, {WS}, s{sFL} offen sc1
    s_lshl_b32 s{sT0}, s{sT2}, 13
    s_lshl_b32 s{sT1}, s{sW}, 11
    s_add_u32 s{sT0}, s{sT0}, s{sT1}
    s_add_u32 s{sK}, s{sT0}, {QKV + 32*MB}
    s_add_u32 s{sKB}, s{sT1}, {LB + KB0}""")
    def h_k():
        if G.ts: e("s_memrealtime s[52:53]")
        L = a.lab("L_f0"); Lo = a.lab("L_f0o")
        e(f"{L}:\nv_cmp_eq_u32 vcc, 0, v{vFv}\ns_cbranch_vccz {Lo}"); G.timeout(far=True)
        e(f"buffer_load_dword v{vFv}, v102, {WS}, s{sFL} offen sc1\ns_waitcnt vmcnt(0)\ns_branch {L}\n{Lo}:")
        e(f"s_mov_b32 m0, s{sKB}\ns_xor_b32 s{sKB}, s{sKB}, {KB0 ^ (KB0 + 8192)}")
        for t in range(2): e(f"buffer_load_dwordx4 v{vL16}, {WS}, s{sK} offen offset:{t*1024} sc1 lds")
        e(f"s_lshl_b32 s{sT0}, s{sGRP}, 5\nv_mov_b32 v99, s{sT0}\nbuffer_load_dword v103, v99, s[{S_DBG}:{S_DBG+3}], 0 offen offset:8 sc1")
    def tail(x):
        if x in (0, 4): wo_issue(x // 4); return 8
        return 0
    G.wdma(blocks, slots, 80, 104, OFFM, {LBK: h_issue, LBK + 13: h_arm, LBK + 26: h_ready, 35: h_first}, tail)
    e("s_waitcnt vmcnt(8)"); wo_take(0); wo_issue(2)
    e("s_waitcnt vmcnt(8)"); wo_take(1); wo_issue(3)
    e("s_barrier")
    h_k()
    e("s_waitcnt vmcnt(11)"); wo_take(2)
    e("s_waitcnt vmcnt(3)"); wo_take(3)
    e("s_waitcnt vmcnt(0)")
    if G.ts: e("s_memrealtime s[100:101]")
    e(f"""
    s_lshl_b32 s{sT0}, s{sRANK}, 12
    s_lshl_b32 s{sT1}, s{sGRP}, 20
    s_add_u32 s{sT0}, s{sT0}, s{sT1}
    s_lshl_b32 s{sT1}, s{sW}, 9
    s_add_u32 s{sT0}, s{sT0}, s{sT1}
    s_add_u32 s{sKM0}, s{sT0}, {KMVM}
    v_and_b32 v104, 1, v90
    v_bfe_u32 v105, v90, 1, 2
    v_and_b32 v106, 1, v91
    s_and_b32 s{sT0}, s{sW}, 1
    s_lshl_b32 s{sT0}, s{sT0}, 1
    v_add_u32 v107, s{sT0}, v94
    v_and_b32 v108, 2, v105
    v_xor_b32 v108, v108, v107
    v_lshl_add_u32 v108, v108, 1, v104
    v_lshl_add_u32 v108, v106, 3, v108
    v_lshl_add_u32 v108, v105, 4, v108
    v_lshlrev_b32 v96, 4, v108
    s_lshr_b32 s{sT0}, s{sW}, 1
    s_lshl_b32 s{sT0}, s{sT0}, 10
    s_add_u32 s{sT0}, s{sT0}, {LB + OX}
    v_add_u32 v{vOW}, s{sT0}, v96
    v_lshrrev_b32 v97, 2, v90                    ; rho>>2
    v_and_b32 v98, 1, v90                        ; rho&1
    v_lshl_add_u32 v96, v97, 1, v98
    v_lshlrev_b32 v96, 4, v96
    v_lshl_add_u32 v{vKM}, v91, 7, v96
    v_bfe_u32 v101, v90, 1, 1                    ; half
    v_lshl_add_u32 v{vKM}, v101, 30, v{vKM}
    v_lshlrev_b32 v{vVM}, 3, v{vLANE}
    v_and_b32 v108, 2, v97
    v_xor_b32 v108, v108, v91
    v_lshl_add_u32 v108, v108, 1, v98
    v_lshl_add_u32 v108, v101, 3, v108
    v_lshl_add_u32 v108, v97, 4, v108
    v_lshlrev_b32 v96, 4, v108
    v_add_u32 v{vLA}, {LB}, v96
    v_add_u32 v{vKR}, {LB + KB0}, v{vL16}
    v_and_b32 v104, 1, v{vLANE}
    v_bfe_u32 v105, v{vLANE}, 1, 2
    v_lshrrev_b32 v106, 5, v{vLANE}
    v_bfe_u32 v107, v{vLANE}, 3, 2
    v_and_b32 v108, 2, v107
    v_xor_b32 v108, v108, v105
    v_lshl_add_u32 v108, v108, 1, v104
    v_lshl_add_u32 v108, v106, 3, v108
    v_lshl_add_u32 v108, v107, 4, v108
    v_lshlrev_b32 v96, 4, v108
    s_lshl_b32 s{sT0}, s{sW}, 11
    s_add_u32 s{sT0}, s{sT0}, {LB}
    v_add_u32 v{vST}, s{sT0}, v96
    v_and_b32 v95, 1, v91
    v_lshlrev_b32 v96, 3, v90
    v_lshl_add_u32 v96, v95, 2, v96
    v_mul_u32_u24 v99, 1088, v94
    s_lshl_b32 s{sT0}, s{sW}, 8
    s_add_u32 s{sT0}, s{sT0}, {LB + QX}
    v_add3_u32 v{vQW}, v96, v99, s{sT0}
    v_mul_u32_u24 v96, 192, v91
    v_lshl_add_u32 v96, v90, 3, v96
    s_mul_i32 s{sT0}, s{sW}, 1488
    s_add_u32 s{sT0}, s{sT0}, {LB + KXX}
    v_add_u32 v{vKW}, s{sT0}, v96
    v_lshrrev_b32 v96, 1, v97
    v_lshl_add_u32 v96, v91, 2, v96
    v_lshlrev_b32 v96, 3, v96                    ; (4G + (r>>1))*8
    v_and_b32 v95, 1, v97
    v_lshl_add_u32 v99, v95, 7, v96
    v_mul_u32_u24 v100, 1088, v98
    v_add_u32 v99, v99, v100
    v_add_u32 v{vTR}, {LB + QX}, v99
    v_mul_u32_u24 v99, 784, v95
    v_and_b32 v95, 3, v90
    v_mul_u32_u24 v95, 192, v95
    v_add3_u32 v96, v96, v99, v95
    v_add_u32 v{vTK}, {LB + KXX}, v96
    v_add_u32 v{vTO}, s{sT0}, v96
    v_lshrrev_b32 v95, 3, v90
    v_lshl_add_u32 v96, v91, 1, v95
    v_lshlrev_b32 v96, 12, v96
    s_lshl_b32 s{sT0}, s{sW}, 15
    s_lshl_b32 s{sT1}, s{sRANK}, 7
    s_add_u32 s{sT0}, s{sT0}, s{sT1}
    v_add3_u32 v{vPst}, v96, v93, s{sT0}
    v_mul_u32_u24 v95, 0xaaaa, v101
    v_add_u32 v{IDX}, 0x4444, v95
    s_mov_b32 s{sC}, 0x3e0293ee
    s_mov_b64 s[{sLIM}:{sLIM+1}], -1
    s_mov_b32 s{sHI}, {0x5d800000 if not G.opt.get('lim0') else 0x41000000}
    v_mov_b32 v{vLO}, 0x2b800000
    s_mov_b32 s{sUP}, 0
    s_mov_b32 s{sUP+1}, -1
    s_mov_b32 s{sI}, 0
    v_and_b32 v94, 7, v90""")
    for p in range(4):
        e(f"""v_mov_b32 v{SEL+p}, 0
        v_cmp_eq_u32 vcc, {2*p}, v94
        v_mov_b32 v95, 0x3f80
        v_cndmask_b32 v{SEL+p}, v{SEL+p}, v95, vcc
        v_cmp_eq_u32 vcc, {2*p+1}, v94
        v_mov_b32 v95, 0x3f800000
        v_cndmask_b32 v{SEL+p}, v{SEL+p}, v95, vcc
        v_mov_b32 v{ONES+p}, 0x3f803f80""")
    for r in [12, 13, 30, 31] + list(range(20, 26)): e(f"v_mov_b32 v{r}, 0")
    FLD = f"buffer_load_dword v{vFv}, v{vFl}, {WS}, s{sFL} offen sc1"
    def fl_check(first=False):
        L = a.lab("L_fl"); Lo = a.lab("L_flo")
        e(f"v_cmp_eq_u32 vcc, 0, v{vFv}\ns_cbranch_vccnz {L}\n{Lo}:")
        def slow():
            e(f"{L}:")
            if not first: e(f"s_cmp_eq_u32 s{sI}, 63\ns_cbranch_scc1 {Lo}")
            G.timeout(0, far=True)
            e(f"{FLD}\ns_waitcnt vmcnt(0)\nv_cmp_eq_u32 vcc, 0, v{vFv}\ns_cbranch_vccnz {L}\ns_branch {Lo}")
        cold.append(slow)
    def vmop(text, tag):
        def f(): e(text); vm.issue(tag)
        f.cost = Fill.cost(text); f.text = text; return f
    kx_ops = lambda: [f"s_mov_b32 m0, s{sKB}\ns_xor_b32 s{sKB}, s{sKB}, {KB0 ^ (KB0 + 8192)}"] + \
        [vmop(f"buffer_load_dwordx4 v{vL16}, {WS}, s{sK} offen offset:{t*1024} sc1 lds", "kx") for t in range(2)]
    vx_ops = lambda: [vmop(f"buffer_load_dwordx4 {vr(VX+4*t,4)}, v{vL16}, {WS}, s{sV} offen offset:{t*1024} sc1", "vx") for t in range(2)]
    def rdw(kp):
        for h in range(2):
            e(f"ds_read_b128 {vr(WR+8*(kp%3)+4*h,4)}, v{vLW} offset:{(2*kp+h)*1024}"); lg.issue(("w", kp))
    NEXT = f"""s_and_b32 s{sKM}, s{sI}, 7
    s_lshl_b32 s{sKM}, s{sKM}, 17
    s_add_u32 s{sKM}, s{sKM}, s{sKM0}
    s_bfe_u32 s{sKT}, s{sI}, 0x10003
    s_add_u32 s{sFL}, s{sFL}, 2048
    s_add_u32 s{sV}, s{sK}, {32*MB}
    s_add_u32 s{sK}, s{sK}, 262144"""
    def pre_qk():
        e(f"{NEXT}\nv_mov_b32 v{VX}, -1")
        for r in range(AV, 128): e(f"v_mov_b32 v{r}, 0")
        for kp in range(3): rdw(kp)
    for r in range(72, 76): e(f"v_mov_b32 v{r}, 0")
    for i in range(2): e(f"ds_write_b128 v{vST}, v[72:75] offset:{QX + i*1024}")
    e(f"v_mov_b32 v{vFl}, v102")
    for i in range(2): e(f"ds_write_b128 v{vST}, {vr(120+4*i,4)} offset:{MEMF + i*1024}")
    Lr = a.lab("L_rdy")
    e(f"v_cmp_ne_u32 vcc, 32, v103\ns_cbranch_vccz {Lr}"); G.ready_wait(100); e(f"{Lr}:")
    pre_qk()
    e("s_waitcnt lgkmcnt(0)\ns_barrier")
    if SPLIT:
        e(f"""s_lshl_b32 s{sT0}, s{sW}, 10
        v_subrev_u32 v{vST}, s{sT0}, v{vST}
        ds_read_b128 {vr(VX,4)}, v{vST} offset:{MEMF + 4096}
        s_xor_b32 s{sMr}, s{sMr}, 0x2000
        s_add_u32 s{sM2}, s{sMr}, 4096
        s_waitcnt lgkmcnt(0)""")
        for r in range(4): e(f"v_min_u32 v{VX+r}, -2, v{VX+r}")
    if G.ts:
        e("s_waitcnt lgkmcnt(0)\ns_mov_b32 s48, s98\ns_mov_b32 s50, s100"); stamp(11, True); G.ts_flush(sI, vTS, store=False)
    e(f".p2align 5\nL_ch_loop_{m}:")
    vm.set([]); lg.set([])
    stamp(0)
    FLP = G.opt.get('flp', 0)
    SEC = f"buffer_load_dwordx4 {vr(VX,4)}, v{vL16}, {WS}, s{sM2} offen sc1"
    def mrd(kp): e(f"ds_read_b128 {vr(MEM+4*kp,4)}, v{vLA} offset:{MEMF + kp*1024}"); lg.issue(("m", kp))
    for kp in range(4 if SPLIT else 8): mrd(kp)
    if SPLIT:
        L2, L2t = a.lab("L_g1"), a.lab("L_g1t")
        e(f"{L2}:\ns_waitcnt vmcnt(0)\nv_max3_u32 v{VX+4}, v{VX}, v{VX+1}, v{VX+2}\nv_max_u32 v{VX+4}, v{VX+4}, v{VX+3}\nv_cmp_eq_u32 vcc, -1, v{VX+4}\ns_cbranch_vccnz {L2t}")
        def slow(): e(f"{L2t}:"); G.timeout(1); e(f"{SEC}\ns_branch {L2}")
        cold.append(slow)
        e(f"ds_write_b128 v{vST}, {vr(VX,4)} offset:{MEMF + 4096}"); lg.issue("st")
    if LP: e(f"buffer_store_dword v{VX}, v{vPub}, {WS}, s{sMp} offen{LS}")
    F.mem(*([vmop(FLD, "fl")] if FLP == 0 else []), *vx_ops())
    def lop(text, tag):
        def f(): e(text); lg.issue(tag)
        f.cost = Fill.cost(text); f.text = text; return f
    s1 = lambda k: stamp(1) if G.opt.get('s1', 0) == k else None
    def mq(kp):
        M = vr(MEM + 4*kp, 4)
        lg.wait(("m", 7 if kp == 2 and not SPLIT else kp))
        F.mf(f"{SM} {vr(AQ,4)}, {M}, {vr(WQ0+8*kp,8)}, v{IDX}", 0, 0)
        lg.wait(("w", kp))
        e(f"{SM} {vr(AQ+4,4)}, {M}, {vr(WR+8*(kp%3),8)}, v{IDX}")
        if kp + 3 < 8:
            x = kp + 3
            lop(f"ds_read_b128 {vr(WR+8*(x%3),4)}, v{vLW} offset:{2*x*1024}", ("w", x))()
            second = lop(f"ds_read_b128 {vr(WR+8*(x%3)+4,4)}, v{vLW} offset:{(2*x+1)*1024}", ("w", x))
            if kp < 4: F.q.insert(0, (second.text, second))
            else: second()
    def mk(kp, sl=None):
        if sl is None:
            e(f"{SM} {vr(AK,4)}, {vr(MEM+4*kp,4)}, {ar(16*kp,8)}, v{IDX}"); F._drain(F.q, 1, 1, False)
            F.mf(f"{SM} {vr(AK+4,4)}, {vr(MEM+4*kp,4)}, {ar(16*kp+8,8)}, v{IDX}", 2, 0); F.since += 3
            return
        for j in range(2): F.mf(f"{SM} {vr(AK+4*j,4)}, {vr(MEM+4*kp,4)}, {ar(16*kp+8*j,8)}, v{IDX}", *sl)
    vs = {"n": 0}
    def vstep(n, sl=0, va=0):
        for _ in range(n):
            if vs["n"] < 16:
                kp, j = vs["n"] >> 1, vs["n"] & 1; vs["n"] += 1
                e(f"{SM} {vr(AV+4*j,4)}, {vr(MEM+4*kp,4)}, {ar(128+16*kp+8*j,8)}, v{IDX}")
            F.drain(sl, va)
    def fold(A0, D):
        return [f"v_add_f32 v{A0+4*j+r}, v{A0+4*j+r}, v{A0+4*j+2+r}" for j in range(2) for r in range(2)] + [f"v_cvt_pk_bf16_f32 v{D+j}, v{A0+4*j}, v{A0+4*j+1}" for j in range(2)]
    KXR = lambda kd, t: (WR + 8*kd + 4*t) if kd < 3 else (MEM + 12 + 4*t)
    krd = lambda kd, t: lop(f"ds_read_b128 {vr(KXR(kd,t),4)}, v{vKR} offset:{kd*2048 + t*1024}", ("kx", kd))
    MEMQ = list(F.m); F.m.clear() if SPLIT else None
    for kp in range(4):
        mq(kp); mk(kp)
        if SPLIT and kp == 0:
            lg.wait("st"); e(f"s_barrier\ns_xor_b32 s{sMr}, s{sMr}, 0x2000\ns_xor_b32 s{sM2}, s{sM2}, 0x2000")
            for x in range(4, 8): mrd(x)
            F.m += MEMQ
    F.flush(); s1(0); G.ts_store(vTS)
    if FLP == 1: vmop(FLD, "fl")()
    for kp in range(4, 8): mq(kp)
    if FLP == 2: vmop(FLD, "fl")()
    F.add(krd(0, 0), krd(0, 1), "s_nop 1"); mk(4, (1, 0)); F.flush()
    fq = fold(AQ, AQ)
    fq = fq[:4] + [f"v_mul_f32 v{AQ+x}, s{sC}, v{AQ+x}" for x in (0, 1, 4, 5)] + fq[4:]
    F.add(*fq, lop(f"ds_write2_b32 v{vQW}, v{AQ}, v{AQ+1} offset0:0 offset1:32", "qw"))
    mk(5, (1, 1)); mk(6, (1, 1)); mk(7, (1, 1))
    stamp(2)
    vstep(2, 3, 2); F.flush()
    e("\n".join(fold(AK, AK)))
    lop(f"ds_write2_b32 v{vKW}, v{AK}, v{AK+1} offset0:0 offset1:196", "qw")()
    F.add(krd(1, 0), krd(1, 1), krd(2, 0), krd(2, 1))
    vstep(4, 1, 0); F.flush()
    lg.wait("qw"); e("s_barrier")
    stamp(3)
    S1, S2, S0, KOWN, P = MEM, MEM + 4, MEM + 8, WR, MEM + 28
    def trd(kd):
        sl = AQ + 8*(kd & 1)
        for x in range(2):
            for h in range(2):
                e(f"ds_read_b64_tr_b16 {vr(sl+4*x+2*h,2)}, v{(vTR, vTK)[x]} offset:{kd*(256, 1488)[x] + h*16}"); lg.issue(("t", kd, x))
    trd(0); trd(1)
    vstep(10 - vs["n"])
    krd(3, 0)(); krd(3, 1)(); s1(6)
    WOR = WR
    def wro(n):
        for h in range(2):
            e(f"ds_read_b128 {vr(WOR+8*(n%4)+4*h,4)}, v{vLW} offset:{16384 + (2*n+h)*1024}"); lg.issue(("o", n))
    kx = kx_ops()
    for kd in range(4):
        sl = AQ + 8*(kd & 1); c = lambda D: "0" if kd == 0 else vr(D, 4)
        lg.wait(("t", kd, 0)); lg.wait(("kx", kd))
        bf = lambda r: e(f"v_bfi_b32 v{KOWN+r}, 1, s{sKT}, v{KOWN+r}\nv_bfi_b32 v{KOWN+r+1}, 1, s{sKT}, v{KOWN+r+1}") if kd == 3 else None
        if kd == 3: lg.wait("ko")
        e(f"{MF} {vr(S1,4)}, {vr(KXR(kd,0),4)}, {vr(sl,4)}, {c(S1)}"); bf(0)
        if kd == 2: s1(2); vm.wait("fl"); s1(3); fl_check()
        e(f"{MF} {vr(S2,4)}, {vr(KXR(kd,1),4)}, {vr(sl,4)}, {c(S2)}"); bf(2)
        if kd == 2: e(kx[0])
        if kd == 1:
            for h in range(2):
                e(f"ds_read_b64_tr_b16 {vr(KOWN+2*h,2)}, v{vTO} offset:{h*16}"); lg.issue("ko")
        lg.wait(("t", kd, 1))
        e(f"{MF} {vr(S0,4)}, {vr(sl+4,4)}, {vr(sl,4)}, {c(S0)}")
        if kd + 2 < 4: trd(kd + 2)
        if kd == 2: kx[1]()
        if kd in (1, 2): vstep(1)
    s1(1); [G.mark(k) for k in range(5)]
    vstep(1)
    vmop(f"buffer_store_dwordx4 {vr(KOWN,4)}, v{vKM}, {WS}, s{sKM} offen sc1", "km")()
    e(f"s_bfe_u32 s{sTAG}, s{sI}, 0x10001")
    vstep(1)
    wro(1); e("s_nop 0")
    ZERO = lambda D: f"v_mfma_f32_16x16x16_bf16 {vr(D,4)}, v[24:25], v[24:25], 0"
    AC = [[MEM + 12, MEM + 16, MEM + 20, MEM + 24], [MEM, MEM + 4, MEM + 8, MEM + 28]]
    order = [S1, S2, S1 + 1, S2 + 1, S1 + 2, S2 + 2, S1 + 3, S2 + 3, S0, S0 + 1]
    E = {r: AQ + n for n, r in enumerate(order)}
    mx, t0 = S0 + 2, S0 + 3
    Lsm, Lsb = a.lab("L_smx"), a.lab("L_smb")
    for n, r in enumerate(order):
        e(f"v_exp_f32 v{E[r]}, v{r}")
        if n in (0, 1): vstep(1)
        if n == 3: kx[2]()
    assert vs["n"] == 16
    def slow():
        e(f"""{Lsm}:
        v_max3_f32 v{mx}, v{S1}, v{S1+1}, v{S1+2}
        v_max3_f32 v{mx}, v{mx}, v{S1+3}, v{S2}
        v_max3_f32 v{mx}, v{mx}, v{S2+1}, v{S2+2}
        v_max3_f32 v{mx}, v{mx}, v{S2+3}, v{S0}
        v_max_f32 v{mx}, v{mx}, v{S0+1}""")
        G.x16(mx, t0, "v_max_f32"); G.x32(mx, t0, "v_max_f32")
        for r in order: e(f"v_sub_f32 v{r}, v{r}, v{mx}")
        for r in order: e(f"v_exp_f32 v{E[r]}, v{r}")
        e(f"s_mov_b32 s{sLIM}, 0\ns_mov_b32 s{sLIM+1}, 0\ns_branch {Lsb}")
    cold.append(slow)
    e(f"{Lsb}:")
    stamp(4)
    O0, O1, SU, OB = AQ, AQ + 4, AK, AK + 4
    for r in range(4): e(f"v_cvt_pk_bf16_f32 v{P+r}, v{E[S1+r]}, v{E[S2+r]}")
    fv = [f"v_add_f32 v{OB+2*j+r}, v{AV+4*j+r}, v{AV+4*j+2+r}" for j in range(2) for r in range(2)] + [f"v_cvt_pk_bf16_f32 v{VB+j}, v{OB+2*j}, v{OB+2*j+1}" for j in range(2)]
    e(f"v_cvt_pk_bf16_f32 v{PM+3}, v{E[S0]}, v{E[S0+1]}\nv_cvt_pk_bf16_f32 v{PM}, v{E[S0]}, v{E[S0+1]}"); s1(4); vm.wait("vx"); s1(5)
    e(f"{MF} {vr(SU,4)}, {vr(ONES,4)}, {vr(P,4)}, 0\n{fv[0]}\n{fv[1]}")
    e(f"{MF} {vr(SU,4)}, {vr(ONES,4)}, {vr(PM+2,4)}, {vr(SU,4)}\n{fv[2]}\n{fv[3]}")
    e(f"{MF} {vr(O0,4)}, {vr(VX,4)}, {vr(P,4)}, 0\n{fv[4]}\n{fv[5]}")
    e(f"{MF} {vr(O1,4)}, {vr(VX+4,4)}, {vr(P,4)}, 0")
    e(f"v_bfi_b32 v{mx}, 1, s{sKT}, v{VB}\nv_bfi_b32 v{t0}, 1, s{sKT}, v{VB+1}")
    e(f"{MF} {vr(O0,4)}, {vr(VB,4)}, {vr(PM,4)}, {vr(O0,4)}")
    vmop(f"buffer_store_dwordx2 {vr(mx,2)}, v{vVM}, {WS}, s{sKM} offen offset:2048 sc1", "vmst")()
    e(f"v_med3_f32 v{SU+1}, v{SU}, v{vLO}, s{sHI}")
    e(f"{MF} {vr(O1,4)}, {vr(VB,4)}, {vr(PM+2,4)}, {vr(O1,4)}")
    e(f"v_cmp_lg_f32 vcc, v{SU+1}, v{SU}\nv_rcp_f32 v{SU}, v{SU}\ns_cmp_eq_u32 s{sI}, 63\ns_cbranch_scc1 L_ch_last_{m}")
    e(f"s_and_b64 vcc, vcc, s[{sLIM}:{sLIM+1}]\ns_cbranch_vccnz {Lsm}\n{ZERO(AC[0][0])}")
    wro(0)
    for r in range(4): e(f"v_mul_f32 v{O0+r}, v{O0+r}, v{SU}")
    for r in range(4): e(f"v_mul_f32 v{O1+r}, v{O1+r}, v{SU}\nv_cvt_pk_bf16_f32 v{OB+r}, v{O0+r}, v{O1+r}")
    e(f"ds_write_b128 v{vOW}, {vr(OB,4)}"); lg.issue("ow")
    e(ZERO(AC[0][1])); wro(2)
    e(ZERO(AC[0][2])); wro(3)
    e(f"{ZERO(AC[0][3])}\ns_mov_b64 s[{sLIM}:{sLIM+1}], -1")
    lg.wait("ow"); e("s_barrier")
    stamp(5)
    OF = AQ
    for kk in range(2):
        e(f"ds_read_b128 {vr(OF+4*kk,4)}, v{vLA} offset:{OX + kk*1024}"); lg.issue(("f", kk))
    ZM = G.opt.get("zm", 2)
    if ZM == 0:
        for x in range(4): e(ZERO(AC[1][x]))
    elif ZM == 1:
        for x in range(2): e(ZERO(AC[1][x]))
        F.add(*[f"v_mov_b32 v{AC[1][x]+r}, 0" for x in (2, 3) for r in range(4)])
    else:
        for x in range(3): e(ZERO(AC[1][x]))
        F.add(*[f"v_mov_b32 v{AC[1][3]+r}, 0" for r in range(4)])
    PK = OB
    def wo_out(sg):
        A = AC[sg]
        if sg == 0: L = [f"v_add_f32 v{t+r}, v{t+r}, v{t+2+r}" for t in A for r in range(2)]
        else: L = [f"v_pk_add_f32 v[{t}:{t+1}], v[{t}:{t+1}], v[{t+2}:{t+3}]" for t in A]
        return L + [f"v_cvt_pk_bf16_f32 v{PK+2*hr+sd}, v{A[sd]+hr}, v{A[2+sd]+hr}" for hr in range(2) for sd in range(2)] + [f"s_add_u32 s{sT0}, s{sPs}, {sg*131072}"] + \
               [f"v_bfi_b32 v{PK+r}, 1, s{sTAG}, v{PK+r}" for r in range(4)] + [f"buffer_store_dwordx4 {vr(PK,4)}, v{vPst}, {WS}, s{sT0} offen{LS}"]
    for sg in range(2):
        for kk in range(2):
            for sd in range(2):
                n = (sg*2 + sd)*2 + kk
                lg.wait(("f", kk))
                if sg == 1 and (kk, sd) == (0, 1): F.add(*wo_out(0))
                F.mf(f"{SM} {vr(AC[sg][sd],4)}, {vr(OF+4*kk,4)}, {vr(WO0+8*n,8)}, v{IDX}", 3, 2 if sg else 1)
                lg.wait(("o", n))
                e(f"{SM} {vr(AC[sg][2+sd],4)}, {vr(OF+4*kk,4)}, {vr(WOR+8*(n%4),8)}, v{IDX}")
                if n + 4 < 8: wro(n + 4); F.drain(1, 1)
                else: F.drain(3, 2)
    F.flush()
    e("\n".join(wo_out(1)))
    stamp(6)
    RD = AQ; SA = [MEM + 4*i for i in range(4)]; SB = [MEM + 16 + 4*i for i in range(4)]; t1, t2 = AQ + 4, AQ + 5
    Lw = a.lab("L_nored"); Ld = a.lab("L_redd"); La = a.lab("L_and"); Lo_ = a.lab("L_or")
    lg.set([])
    R2 = G.opt.get("red2", 0)
    def rpoll(S):
        for i in range(4): e(f"buffer_load_dwordx4 {vr(S[i],4)}, v{vL16}, {WS}, s{sRs} offen offset:{i*1024} sc1")
    HK = [f"s_add_u32 s{sI}, s{sI}, 1"] + [x.strip() for x in NEXT.split(chr(10))] + [f"v_xor_b32 v{vKR}, {KB0 ^ (KB0 + 8192)}, v{vKR}", f"v_mov_b32 v{VX}, -1"]
    HK += [f"ds_read_b128 {vr(WR+4*x,4)}, v{vLW} offset:{x*1024}" for x in range(6)]
    HK += [f"v_mov_b32 v{r}, 0" for r in list(range(AV, AQ)) + list(range(AK, 128))]
    GD = G.opt.get("gd", 12)
    e("\n".join(HK[:len(HK) - GD]))
    e(f"s_cmp_ge_u32 s{sW}, 2\ns_cbranch_scc1 {Lw}\nv_mov_b32 v{AQ+6}, -1")
    if R2: rpoll(SA); e("s_waitcnt vmcnt(4)"); rpoll(SB)
    elif G.opt.get("redwait", 1) == 1: e("s_waitcnt vmcnt(0)")
    elif G.opt.get("redwait", 1) == 2:
        L1 = a.lab("L_w1")
        e(f"s_waitcnt vmcnt(1)\ns_cmp_eq_u32 s{sW}, 0\ns_cbranch_scc1 {L1}\ns_waitcnt vmcnt(0)\n{L1}:")
    e(f"s_cmp_eq_u32 s{sTAG}, 1\ns_cbranch_scc1 {La}")
    for lab, op, cmp_ in ((Lo_, "v_or3_b32 {d}, {a}, {b}, {c}", "ne"), (La, "v_bitop3_b32 {d}, {a}, {b}, {c} bitop3:0x80", "eq")):
        e(f"{lab}:")
        for S in ((SA, SB) if R2 else (SA,)):
            if not R2: rpoll(S)
            for i in range(4):
                e(f"s_waitcnt vmcnt({(7 if R2 else 3)-i})\n{MF} {vr(RD,4)}, {vr(SEL,4)}, {vr(S[i],4)}, {'0' if i == 0 else vr(RD,4)}")
                b = S[i]
                if i == 0: e(op.format(d=f"v{t1}", a=f"v{b}", b=f"v{b+1}", c=f"v{b+2}") + "\n" + op.format(d=f"v{t2}", a=f"v{b+3}", b=f"v{b+3}", c=f"v{b+3}"))
                else: e(op.format(d=f"v{t1}", a=f"v{t1}", b=f"v{b}", c=f"v{b+1}") + "\n" + op.format(d=f"v{t2}", a=f"v{t2}", b=f"v{b+2}", c=f"v{b+3}"))
            e(op.format(d=f"v{t1}", a=f"v{t1}", b=f"v{t2}", c=f"v{t2}") + f"\nv_and_b32 v{t1}, 1, v{t1}\nv_cmp_{cmp_}_u32 vcc, 0, v{t1}\ns_cbranch_vccz {Ld}")
            G.timeout(2)
            if R2: rpoll(S)
        e(f"s_branch {lab}")
    e(f"{Ld}:")
    stamp(7)
    e(f"""v_cndmask_b32 v{RD}, v{RD}, v{RD+2}, s[{sUP}:{sUP+1}]
    v_cndmask_b32 v{RD+1}, v{RD+1}, v{RD+3}, s[{sUP}:{sUP+1}]
    v_add_f32_dpp v{RD}, v{RD}, v{RD} row_ror:8 row_mask:0xf bank_mask:0xf
    v_add_f32_dpp v{RD+1}, v{RD+1}, v{RD+1} row_ror:8 row_mask:0xf bank_mask:0xf
    v_cvt_pk_bf16_f32 v{t1}, v{RD}, v{RD+1}
    v_min_u32 v{t1}, -2, v{t1}
    buffer_store_dword v{t1}, v{vPub}, {WS}, s{sMp} offen{LS}""")
    for r in range(1, REP): e(f"s_add_u32 s{sT0}, s{sMp}, {r*RST}\nbuffer_store_dword v{t1}, v{vPub}, {WS}, s{sT0} offen{LS}")
    if not LP:
        e(f"s_xor_b32 s{sMp}, s{sMp}, 0x2000")
        for r in range(REP): e(f"s_add_u32 s{sT0}, s{sMp}, {r*RST}\nbuffer_store_dword v{AQ+6}, v{vPub}, {WS}, s{sT0} offen{LS}")
    if G.opt.get("pubwait"): e("s_waitcnt vmcnt(0)")
    e(f"""{Lw}:
    {f's_xor_b32 s{sMp}, s{sMp}, 0x2000' if LP else ''}
    s_xor_b32 s{sRs}, s{sRs}, 0x40000
    s_xor_b32 s{sPs}, s{sPs}, 0x40000
    s_barrier""")
    stamp(8)
    if GD: e("\n".join(HK[len(HK) - GD:]))
    if SPLIT:
        L = a.lab("L_g0"); Lt = a.lab("L_g0t"); b = MEM + 16
        e(f"{L}:\nbuffer_load_dwordx4 {vr(b,4)}, v{vL16}, {WS}, s{sMr} offen sc1")
        for r in range(AQ, AK): e(f"v_mov_b32 v{r}, 0")
        e(f"""{SEC}
        s_waitcnt vmcnt(1)
        v_max3_u32 v{MEM}, v{b}, v{b+1}, v{b+2}
        v_max_u32 v{MEM}, v{MEM}, v{b+3}
        v_cmp_eq_u32 vcc, -1, v{MEM}
        s_cbranch_vccnz {Lt}""")
        def slow(L=L, Lt=Lt): e(f"{Lt}:"); G.timeout(3); e(f"s_branch {L}")
        cold.append(slow)
        stamp(9)
        e(f"ds_write_b128 v{vST}, {vr(b,4)} offset:{MEMF}\ns_waitcnt lgkmcnt(0)")
    else:
        L = a.lab("L_g0"); G2 = G.opt.get("g2", 0); sets = (MEM + 16, VX) if G2 else (MEM + 16,)
        def gpoll(b):
            for i in range(2): e(f"buffer_load_dwordx4 {vr(b+4*i,4)}, v{vL16}, {WS}, s{sMr} offen offset:{i*1024} sc1")
        Ls = [a.lab("L_st") for _ in sets]; Le = a.lab("L_ste")
        if not G2:
            for r in range(AQ, AK): e(f"v_mov_b32 v{r}, 0")
        e(f"{L}:")
        gpoll(sets[0])
        if G2:
            for r in range(AQ, AK): e(f"v_mov_b32 v{r}, 0")
            for r in range(8*(G2 - 1)): e(f"v_mov_b32 v{AQ + r % 8}, 0")
            gpoll(sets[1])
        for n, (b, l_) in enumerate(zip(sets, Ls)):
            y = 2*(len(sets) - 1 - n)
            e(f"""s_waitcnt vmcnt({y+1})
            v_max3_u32 v{MEM}, v{b}, v{b+1}, v{b+2}
            s_waitcnt vmcnt({y})
            v_max3_u32 v{MEM+1}, v{b+3}, v{b+4}, v{b+5}
            v_max3_u32 v{MEM}, v{MEM}, v{b+6}, v{b+7}
            v_max_u32 v{MEM}, v{MEM}, v{MEM+1}
            v_cmp_eq_u32 vcc, -1, v{MEM}
            s_cbranch_vccz {l_}""")
            G.timeout(3)
        e(f"s_branch {L}")
        for b, l_ in reversed(list(zip(sets, Ls))):
            e(f"{l_}:"); stamp(9)
            for i in range(2): e(f"ds_write_b128 v{vST}, {vr(b+4*i,4)} offset:{MEMF + i*1024}")
            if b != sets[0]: e(f"s_branch {Le}")
        e(f"{Le}:\ns_xor_b32 s{sMr}, s{sMr}, 0x2000\ns_waitcnt lgkmcnt(0)")
    stamp(10)
    stamp(11, True); G.ts_flush(sI, vTS, store=False)
    e(f"s_barrier\ns_branch L_ch_loop_{m}")
    for f in cold: f()
    e(f"L_ch_last_{m}:"); G.wb_exit(m); e("s_endpgm")
    if m == "L": G.far_fallback("L_fb_chain")
```

```python
import sys
from asmlib import *

KNAME = "interleave_layers__memory_aug_recurrent_mem_tr__glu_gated_swiglu__prompt_kernel"
KB = 1024; MB = 1 << 20
FN    = 16 * KB
FQ    = 128 * KB
MEMR  = 512 * KB
CPART = 1 * MB
APART = 2 * MB
NB    = 10 * MB
XB    = 18 * MB
KMVM  = 24 * MB
QKV   = 40 * MB
TSB   = 140 * MB
WS_BYTES = 268435456

S_WS, S_DBG, S_A, S_B, S_C, S_D = 4, 8, 12, 16, 20, 24
sW, sXCC, sRANK, sGRP, sTO = 32, 33, 34, 35, 36
P_X, P_MEM0, P_WQ, P_WK, P_WV, P_WO = 48, 50, 52, 54, 56, 58
P_W1, P_W3, P_W2, P_OUT, P_DBG, P_WSP = 64, 66, 68, 70, 72, 74
sT0, sT1, sT2, sT3, sT4, sT5 = 40, 41, 42, 43, 44, 45
sPLO, sPHI = 46, 47
vTID, vLANE, vL16 = 0, 1, 2
XV = 32

class Gen:
    def __init__(self, LAG=14, roles="cqaf", force_fallback=False, ts='', emit_global=True, dbgdump=False, opt=None):
        self.a = Asm(); self.LAG = LAG; self.roles = roles; self.ff = force_fallback; self.ts = ts
        self.emit_global = emit_global; self.endlab = 'L_end0'; self.vxk = 5; self.P = LAG; self.opt = opt or {}; self.dbgdump = dbgdump
    def e(self, s): self.a.e(s)
    def srd(self, d, p, nbytes):
        self.e(f"s_mov_b32 s{d}, s{p}\ns_mov_b32 s{d+1}, s{p+1}\ns_mov_b32 s{d+2}, {nbytes}\ns_mov_b32 s{d+3}, 0x20000")
    def timeout(self, cnt=None, far=False):
        if far and self.opt.get("sl", 0): self.e(f"s_sleep {self.opt['sl']}")
        if self.ts and cnt is not None: self.e(f"s_add_u32 s{72+cnt}, s{72+cnt}, 1")
        self.e(f"s_sub_u32 s{sTO}, s{sTO}, 1\ns_cbranch_scc1 {self.endlab}")
    def row_sum(self, v, op="v_add_f32"):
        for r in (8, 4, 2, 1):
            self.e(f"{op}_dpp v{v}, v{v}, v{v} row_ror:{r} row_mask:0xf bank_mask:0xf")
    def x16(self, v, t, op="v_add_f32"):
        self.e(f"v_mov_b32 v{t}, v{v}\nv_permlane16_swap_b32 v{v}, v{t}\n{op} v{v}, v{v}, v{t}")
    def x32(self, v, t, op="v_add_f32"):
        self.e(f"v_mov_b32 v{t}, v{v}\nv_permlane32_swap_b32 v{v}, v{t}\n{op} v{v}, v{v}, v{t}")

    def prologue(self):
        e = self.e
        e(f"""
        s_cmp_ge_u32 s2, 256
        s_cbranch_scc1 L_end0
        s_load_dwordx16 s[48:63], s[0:1], 0
        s_load_dwordx8 s[64:71], s[0:1], 64
        s_load_dwordx4 s[72:75], s[0:1], 96
        s_getreg_b32 s{sXCC}, hwreg(HW_REG_XCC_ID, 0, 4)
        v_lshrrev_b32 v3, 6, v0
        v_and_b32 v{vLANE}, 63, v0
        v_readfirstlane_b32 s{sW}, v3
        v_lshlrev_b32 v{vL16}, 4, v{vLANE}
        s_and_b32 s{sXCC}, s{sXCC}, 7
        s_mov_b32 s{sTO}, 0x100000
        s_mov_b32 s{sPLO}, 0x05040100
        s_mov_b32 s{sPHI}, 0x07060302
        s_waitcnt lgkmcnt(0)""")
        self.srd(S_WS, P_WSP, WS_BYTES); self.srd(S_DBG, P_DBG, 256)
        if self.ts:
            e("s_memrealtime s[98:99]\ns_memrealtime s[96:97]\ns_memtime s[94:95]\ns_waitcnt lgkmcnt(0)\ns_mov_b32 s73, s96\ns_mov_b32 s72, s94")
        e(f"""
        s_cmp_lg_u32 s{sW}, 0
        s_cbranch_scc1 L_noatom
        v_mov_b32 v4, 1
        s_lshl_b32 s{sT3}, s{sXCC}, 5
        v_mov_b32 v5, s{sT3}
        s_mov_b64 exec, 1
        buffer_atomic_add v4, v5, s[{S_DBG}:{S_DBG+3}], 0 offen sc0
        s_mov_b64 exec, -1
        L_noatom:""")
        self.n1_part()
        e(f"""s_cmp_lg_u32 s{sW}, 0
        s_cbranch_scc1 L_norank
        v_mov_b32 v5, 0
        s_mov_b64 exec, 1
        ds_write_b32 v5, v4
        s_mov_b64 exec, -1
        s_waitcnt lgkmcnt(0)
        L_norank:
        s_barrier
        v_mov_b32 v5, 0
        ds_read_b32 v4, v5
        s_waitcnt lgkmcnt(0)
        v_readfirstlane_b32 s{sRANK}, v4
        s_mov_b32 s{sGRP}, s{sXCC}
        s_barrier
        s_cmp_ge_u32 s{sRANK}, 32
        s_cbranch_scc1 L_wait_fallback""")
        if self.ff: e("s_branch L_wait_fallback")
        self.dispatch("L")
        e("L_wait_fallback:\ns_waitcnt vmcnt(0)\ns_barrier")
        self.done_add(4, "L")
        self.census_issue(4); self.census_check(4, None)
        e("L_fallback:")
        if self.emit_global:
            e(f"""s_waitcnt vmcnt(0) lgkmcnt(0)
            s_barrier
            s_lshr_b32 s{sGRP}, s2, 5
            s_and_b32 s{sRANK}, s2, 31""")
            self.dispatch("G")
        else:
            e("s_endpgm")
    def n1_part(self):
        e = self.e; d = XV + 16; t = XV + 24
        self.srd(S_A, P_X, 2 * MB)
        e(f"""s_lshl_b32 s{sT0}, s2, 2
        s_add_u32 s{sT0}, s{sT0}, s{sW}
        s_lshl_b32 s{sT1}, s{sT0}, 10""")
        for k in range(2):
            e(f"s_add_u32 s{sT2}, s{sT1}, {k*MB}\nbuffer_load_dwordx4 {vr(XV+4*k,4)}, v{vL16}, s[{S_A}:{S_A+3}], s{sT2} offen")
        e(f"""v_mov_b32 v{d}, 0
        v_mov_b32 v{d+1}, 0
        v_lshlrev_b32 v{t}, 3, v{vLANE}
        s_lshl_b32 s{sT2}, s{sT0}, 9
        buffer_store_dwordx2 {vr(d,2)}, v{t}, s[{S_WS}:{S_WS+3}], s{sT2} offen sc1
        s_add_u32 s{sT1}, s{sT1}, {NB}
        s_bfe_u32 s{sT0}, s{sT0}, 0x40001
        v_xor_b32 v{t+3}, s{sT0}, v{vLANE}
        v_lshlrev_b32 v{t+3}, 4, v{t+3}""")
        for k in range(2):
            src = XV + 4*k
            e("s_waitcnt vmcnt(2)")
            for i in range(4):
                e(f"v_lshlrev_b32 v{d+2*i}, 16, v{src+i}\nv_and_b32 v{d+2*i+1}, 0xffff0000, v{src+i}")
            e(f"v_add_f32 v{t}, v{d}, v{d+1}")
            for i in range(2, 8): e(f"v_add_f32 v{t}, v{t}, v{d+i}")
            self.row_sum(t); self.x16(t, t + 1); self.x32(t, t + 1)
            e(f"v_mul_f32 v{t}, 0x3b000000, v{t}")
            for i in range(8): e(f"v_sub_f32 v{d+i}, v{d+i}, v{t}")
            e(f"v_mul_f32 v{t+2}, v{d}, v{d}")
            for i in range(1, 8): e(f"v_fmac_f32 v{t+2}, v{d+i}, v{d+i}")
            self.row_sum(t + 2); self.x16(t + 2, t + 1); self.x32(t + 2, t + 1)
            e(f"v_mov_b32 v{t+1}, 0x3727c5ac\nv_fmac_f32 v{t+1}, 0x3b000000, v{t+2}\nv_rsq_f32 v{t+1}, v{t+1}")
            for i in range(8): e(f"v_mul_f32 v{d+i}, v{d+i}, v{t+1}")
            for i in range(4): e(f"v_cvt_pk_bf16_f32 v{src+i}, v{d+2*i}, v{d+2*i+1}")
            e(f"buffer_store_dwordx4 v[{src}:{src+3}], v{t+3}, s[{S_WS}:{S_WS+3}], s{sT1} offen sc1\ns_add_u32 s{sT1}, s{sT1}, {MB}")
    def done_add(self, v, m):
        L = self.a.lab("L_da")
        self.e(f"""s_cmp_lg_u32 s{sW}, 0
        s_cbranch_scc1 {L}
        v_mov_b32 v{v}, 1
        s_lshl_b32 s{sT0}, s{sXCC}, 5
        v_mov_b32 v{v+1}, s{sT0}
        s_mov_b64 exec, 1
        buffer_atomic_add v{v}, v{v+1}, s[{S_DBG}:{S_DBG+3}], 0 offen offset:{4 if m == "L" else 12}
        s_mov_b64 exec, -1
        {L}:""")
    def warm(self, idx_expr, nwg, XV):
        if not self.opt.get("warm", 1): return
        e = self.e; per = -(-4096 // (nwg * 4))
        e(f"{idx_expr}\ns_lshl_b32 s{sT0}, s{sT0}, 2\ns_add_u32 s{sT0}, s{sT0}, s{sW}")
        if self.opt.get("warm", 1) == 2:
            e(f"v_lshrrev_b32 v{XV+4}, 4, v{vLANE}\nv_and_b32 v{XV+5}, 15, v{vLANE}\nv_lshlrev_b32 v{XV+5}, 4, v{XV+5}\nv_lshl_add_u32 v{XV+4}, v{XV+4}, 10, v{XV+5}\ns_lshl_b32 s{sT1}, s{sT0}, 13")
            for p in (P_WK, P_WV, P_WQ):
                self.srd(S_A, p, 4*MB)
                for i in range(2): e(f"s_add_u32 s{sT2}, s{sT1}, {i*4096}\nbuffer_load_dwordx4 v[{XV}:{XV+3}], v{XV+4}, s[{S_A}:{S_A+3}], s{sT2} offen offset:256")
        e(f"s_mul_i32 s{sT0}, s{sT0}, {per*1024}")
        for p in (P_WK, P_WV, P_WQ, P_WO):
            self.srd(S_A, p, 4*MB)
            for i in range(per):
                if i % 4 == 0: e(f"s_add_u32 s{sT1}, s{sT0}, {i*1024}")
                e(f"buffer_load_dwordx4 v[{XV}:{XV+3}], v{vL16}, s[{S_A}:{S_A+3}], s{sT1} offen offset:{(i%4)*1024}")
    def dispatch(self, m):
        e = self.e
        tab = self.opt.get("map", 3)
        T = {0: [(g, h) for g in range(8) for h in range(2)],
             1: [(0, 0), (0, 1), (1, 0), (1, 1), (2, 0), (4, 0), (2, 1), (5, 0), (3, 0), (4, 1), (3, 1), (5, 1), (6, 0), (7, 0), (6, 1), (7, 1)],
             2: [(0, 0), (0, 1), (1, 0), (1, 1), (2, 0), (4, 0), (2, 1), (6, 0), (3, 0), (4, 1), (3, 1), (6, 1), (5, 0), (7, 0), (5, 1), (7, 1)],
             3: [(0, 0), (0, 1), (1, 0), (1, 1), (2, 0), (4, 0), (2, 1), (7, 0), (3, 0), (4, 1), (3, 1), (7, 1), (5, 0), (6, 0), (5, 1), (6, 1)],
             4: [(0, 0), (0, 1), (1, 0), (1, 1), (2, 0), (6, 0), (2, 1), (7, 0), (3, 0), (6, 1), (3, 1), (7, 1), (4, 0), (5, 0), (4, 1), (5, 1)]}[tab]
        word = sum((g*2 + h) << (4*i) for i, (g, h) in enumerate(T))
        e(f"""s_lshl_b32 s{sT0}, s{sGRP}, 1
        s_lshr_b32 s{sT1}, s{sRANK}, 4
        s_add_u32 s{sT0}, s{sT0}, s{sT1}
        s_lshl_b32 s{sT0}, s{sT0}, 2
        s_mov_b32 s{sT2}, {word & 0xffffffff}
        s_mov_b32 s{sT3}, {word >> 32}
        s_lshr_b64 s[{sT2}:{sT3}], s[{sT2}:{sT3}], s{sT0}
        s_bfe_u32 s{sGRP}, s{sT2}, 0x30001
        s_and_b32 s{sT2}, s{sT2}, 1
        s_lshl_b32 s{sT2}, s{sT2}, 4
        s_and_b32 s{sRANK}, s{sRANK}, 15
        s_or_b32 s{sRANK}, s{sRANK}, s{sT2}""")
        e(f"s_cmp_le_u32 s{sGRP}, 1\ns_cbranch_scc1 L_go_chain_{m}")
        e(f"s_cmp_le_u32 s{sGRP}, 3\ns_cbranch_scc1 L_go_qkv_{m}")
        e(f"s_bitcmp1_b32 s{sGRP}, 0\ns_cbranch_scc1 L_go_ffn_{m}")
        for r in ("att", "chain", "qkv", "ffn"):
            if r != "att": e(f"L_go_{r}_{m}:")
            if r[0] in self.roles:
                e(f"s_getpc_b64 s[{sT0}:{sT0+1}]\nL_pc_{r}_{m}:\ns_add_u32 s{sT0}, s{sT0}, R_{r}_{m}-L_pc_{r}_{m}\ns_addc_u32 s{sT0+1}, s{sT0+1}, 0\ns_setpc_b64 s[{sT0}:{sT0+1}]")
            else:
                e("s_endpgm")
    def census_ld(self, v, m):
        if m == "L": return f"buffer_load_dwordx2 v[{v}:{v+1}], v{v+2}, s[{S_DBG}:{S_DBG+3}], 0 offen sc1"
        return f"buffer_load_dword v{v+1}, v{v+2}, s[{S_DBG}:{S_DBG+3}], 0 offen offset:12 sc1"
    def census_issue(self, v, m="L"):
        self.e(f"v_lshlrev_b32 v{v+2}, 5, v{vLANE}\n" + self.census_ld(v, m))
    def census_check(self, v, fail, waited=False, m="L"):
        e = self.e; L = self.a.lab("L_cen"); Lok = self.a.lab("L_cenok")
        if not waited: e("s_waitcnt vmcnt(0)")
        e(f"{L}:\ns_mov_b32 s{sT0}, 0")
        for l in range(8):
            e(f"v_readlane_b32 s{sT1}, v{v+1}, {l}\ns_add_u32 s{sT0}, s{sT0}, s{sT1}")
        e(f"s_cmp_eq_u32 s{sT0}, 256\ns_cbranch_scc1 {Lok}")
        self.timeout()
        e(f"s_sleep 4\n{self.census_ld(v, m)}\ns_waitcnt vmcnt(0)\ns_branch {L}\n{Lok}:")
        if fail and m == "L":
            e(f"v_cmp_ne_u32 vcc, {33 if self.opt.get('failc') else 32}, v{v}\ns_and_b32 s{sT0}, vcc_lo, 0xff\ns_cbranch_scc1 {fail}")
    def ready_add(self, v):
        L = self.a.lab("L_ra")
        self.e(f"""s_cmp_lg_u32 s{sW}, 0
        s_cbranch_scc1 {L}
        v_mov_b32 v{v}, 1
        s_lshl_b32 s{sT0}, s{sGRP}, 5
        v_mov_b32 v{v+1}, s{sT0}
        s_mov_b64 exec, 1
        buffer_atomic_add v{v}, v{v+1}, s[{S_DBG}:{S_DBG+3}], 0 offen offset:8
        s_mov_b64 exec, -1
        {L}:""")
    def ready_wait(self, v, mul=32, add=0):
        L = self.a.lab("L_rw"); Lo = self.a.lab("L_rwo")
        self.e(f"""s_mul_i32 s{sT0}, s{sGRP}, {mul}
        s_add_u32 s{sT0}, s{sT0}, {add}
        v_mov_b32 v{v+1}, s{sT0}
        {L}:
        buffer_load_dword v{v}, v{v+1}, s[{S_DBG}:{S_DBG+3}], 0 offen offset:8 sc1
        s_waitcnt vmcnt(0)
        v_cmp_ne_u32 vcc, 32, v{v}
        s_cbranch_vccz {Lo}""")
        self.timeout()
        self.e(f"s_sleep 2\ns_branch {L}\n{Lo}:")
    def far_fallback(self, name):
        self.e(f"{name}:\ns_getpc_b64 s[{sT0}:{sT0+1}]\n{name}_pc:\ns_add_u32 s{sT0}, s{sT0}, L_fallback-{name}_pc\ns_addc_u32 s{sT0+1}, s{sT0+1}, -1\ns_setpc_b64 s[{sT0}:{sT0+1}]")

    def wstream(self, blocks, stage0, depth, hooks=None):
        e = self.e; hooks = hooks or {}
        n = len(blocks); T = stage0 + 8 * depth
        for b in range(n + depth - 1):
            if b in hooks: hooks[b]()
            if b < n:
                srd, addrs, so, _, _ = blocks[b]
                st = stage0 + 8 * (b % depth)
                e(so)
                for i, (va, imm) in enumerate(addrs):
                    e(f"buffer_load_dword v{st+i}, v{va}, s[{srd}:{srd+3}], s{sT5} offen" + (f" offset:{imm}" if imm else ""))
            c = b - (depth - 1)
            if c >= 0:
                later = min(n - 1, b) - c
                e(f"s_waitcnt vmcnt({8*later})")
                st = stage0 + 8 * (c % depth)
                for p in range(4):
                    e(f"v_perm_b32 v{T+p}, v{st+2*p+1}, v{st+2*p}, s{sPLO}")
                    e(f"v_perm_b32 v{T+4+p}, v{st+2*p+1}, v{st+2*p}, s{sPHI}")
                blocks[c][3](T); blocks[c][4](T + 4)
    def wdma(self, blocks, slots, vD, T, offs, hooks=None, tail=None):
        e = self.e; hooks = hooks or {}; n = len(blocks); ns = len(slots)
        def issue(b):
            srd, so = blocks[b][:2]; sb, off, _ = slots[b % ns]
            e(f"{so}\ns_add_u32 m0, s{sb}, {off}")
            for x in range(2): e(f"buffer_load_dwordx4 v{vD+x}, s[{srd}:{srd+3}], s{sT5} offen offset:{x*1024} lds")
        for b in range(min(ns, n)): issue(b)
        extra = 0
        for c in range(n):
            if c in hooks: hooks[c]()
            e(f"s_waitcnt vmcnt({2*(min(n, c + ns) - 1 - c) + extra})")
            _, off, va = slots[c % ns]
            for i in range(8): e(f"ds_read_b32 v{T+8+i}, v{va} offset:{off + offs[i]*64}")
            for p in range(4):
                e(f"s_waitcnt lgkmcnt({6-2*p})\nv_perm_b32 v{T+p}, v{T+9+2*p}, v{T+8+2*p}, s{sPLO}\nv_perm_b32 v{T+4+p}, v{T+9+2*p}, v{T+8+2*p}, s{sPHI}")
            if c + ns < n: issue(c + ns)
            elif tail: extra += tail(c + ns - n)
            blocks[c][2](T); blocks[c][3](T + 4)
    def wdma_addr(self, vD, vR, stride, rows, tmp):
        self.e(f"""v_lshrrev_b32 v{tmp}, 2, v{vLANE}
        v_mul_u32_u24 v{tmp}, {stride}, v{tmp}
        v_and_b32 v{vD}, 3, v{vLANE}
        v_lshl_add_u32 v{vD}, v{vD}, 4, v{tmp}
        v_add_u32 v{vD+1}, {16*stride - 1024}, v{vD}
        v_and_b32 v{tmp}, 15, v{vLANE}
        v_lshlrev_b32 v{tmp}, 2, v{tmp}
        v_lshl_add_u32 v{vR}, v{rows}, 6, v{tmp}""")
    def sink_a(self, base):
        return lambda T: [self.e(f"v_accvgpr_write_b32 a{base+p}, v{T+p}") for p in range(4)]
    def sink_v(self, base):
        return lambda T: [self.e(f"v_mov_b32 v{base+p}, v{T+p}") for p in range(4)]
    def sink_lds(self, va, off):
        return lambda T: self.e(f"ds_write_b128 v{va}, v[{T}:{T+3}] offset:{off}")

    def dump(self, base, n, slot, scond=None, val=0, cls="v"):
        if not self.dbgdump: return
        L = self.a.lab("L_dump")
        if scond is not None: self.e(f"s_cmp_lg_u32 s{scond}, {val}\ns_cbranch_scc1 {L}")
        self.e(f"""s_lshl_b32 s100, s{sRANK}, 2
        s_add_u32 s100, s100, s{sW}
        s_lshl_b32 s100, s100, 13
        s_add_u32 s100, s100, {TSB + 16*MB + slot*MB}
        s_mov_b64 s[96:97], exec
        s_mov_b64 exec, -1
        s_nop 15
        v_lshrrev_b32 v{vL16}, 2, v{vL16}""")
        for r in range(n):
            self.e(f"buffer_store_dword {cls}{base+r}, v{vL16}, s[{S_WS}:{S_WS+3}], s100 offen offset:{(r%16)*256}")
            if r % 16 == 15: self.e("s_add_u32 s100, s100, 4096")
        self.e(f"v_lshlrev_b32 v{vL16}, 2, v{vL16}\ns_waitcnt vmcnt(0)\ns_mov_b64 exec, s[96:97]\n{L}:")
    def stamp(self, k, real=False):
        if self.ts: self.e(f"{'s_memrealtime' if real else 's_memtime'} s[{48+2*k}:{49+2*k}]")
    def mark(self, k=0, sreg=37, add=0):
        if self.tse and self.opt.get("mk", 0) == k:
            L = self.a.lab("L_mk"); ms = self.opt.get("ms", 63)
            self.e(f"s_cmp_lg_u32 s{sreg}, {ms + add}\ns_cbranch_scc1 {L}\ns_memrealtime s[74:75]\n{L}:")
    def ts_store(self, v):
        if self.ts: self.e(f"s_mov_b64 exec, 0xffff\nbuffer_store_dword v{v}, v{v+1}, s[{S_WS}:{S_WS+3}], s100 offen\ns_mov_b64 exec, -1")
    def ts_flush(self, sitem, v, n=12, store=True):
        if not self.ts: return
        e = self.e
        e("s_waitcnt lgkmcnt(0)")
        for k in range(n): e(f"v_writelane_b32 v{v}, s{48+2*k}, {k}")
        for k in range(4): e(f"v_writelane_b32 v{v}, s{72+k}, {12+k}\ns_mov_b32 s{72+k}, 0")
        e(f"""s_mul_i32 s100, s{sGRP}, 80
        s_add_u32 s100, s100, s{sitem}
        s_lshl_b32 s100, s100, 5
        s_add_u32 s100, s100, s{sRANK}
        s_lshl_b32 s100, s100, 2
        s_add_u32 s100, s100, s{sW}
        s_lshl_b32 s100, s100, 6
        s_add_u32 s100, s100, {TSB}
        v_lshlrev_b32 v{v+1}, 2, v{vLANE}""")
        if store: self.ts_store(v)
    def wb_exit(self, m):
        if m == "L" and self.opt.get("wb", 0) & 1:
            L = self.a.lab("L_wb")
            self.e(f"s_and_b32 s{sT0}, s{sRANK}, 15\ns_or_b32 s{sT0}, s{sT0}, s{sW}\ns_cbranch_scc1 {L}\nbuffer_wbl2 sc1\n{L}:")
    def wb_mid(self, m, sS):
        if m == "L" and self.opt.get("wb", 0) & 2:
            L = self.a.lab("L_wb")
            self.e(f"s_and_b32 s{sT0}, s{sRANK}, 15\ns_cmp_lg_u32 s{sT0}, 15\ns_cbranch_scc1 {L}\ns_cmp_lg_u32 s{sW}, 0\ns_cbranch_scc1 {L}\ns_and_b32 s{sT0}, s{sS}, 62\ns_cmp_lg_u32 s{sT0}, 62\ns_cbranch_scc1 {L}\nbuffer_wbl2 sc1\n{L}:")
    def finish(self):
        e = self.e
        e(f""".section .rodata,"a"
        .p2align 6
        .amdhsa_kernel {KNAME}
        .amdhsa_next_free_vgpr 512
        .amdhsa_next_free_sgpr 102
        .amdhsa_accum_offset 256
        .amdhsa_group_segment_fixed_size 0
        .amdhsa_kernarg_size 112
        .amdhsa_user_sgpr_count 2
        .amdhsa_user_sgpr_kernarg_segment_ptr 1
        .amdhsa_system_sgpr_workgroup_id_x 1
        .end_amdhsa_kernel""")

    def build(self):
        import role_qkv, role_chain, role_att, role_ffn
        e = self.e
        e("""; One persistent launch, one workgroup per CU, weights resident in registers / LDS.
        ; 4/6 token attention + output projection, 5/7 SwiGLU.  Segments flow through the groups via d_ws.
        ; @launch grid=(256,1,1) block=(256,1,1) lds=163840""")
        e(f""".amdgcn_target "amdgcn-amd-amdhsa--gfx950"
        .text
        .globl {KNAME}
        .p2align 8
        .type {KNAME},@function
        {KNAME}:""")
        self.prologue()
        e("L_end0:\ns_endpgm")
        for m in (["L", "G"] if self.emit_global else ["L"]):
            for r, mod in (("chain", role_chain), ("qkv", role_qkv), ("att", role_att), ("ffn", role_ffn)):
                if r[0] in self.roles:
                    e(f".p2align 6\nR_{r}_{m}:")
                    self.endlab = f"L_end_{r}_{m}"
                    if self.opt.get("quit"): e("s_waitcnt vmcnt(0)\ns_endpgm")
                    tsall = self.ts; self.ts = r[0] in tsall; self.tsi = 'i' in tsall; self.tse = 'e' in tsall
                    mod.emit(self, m)
                    self.ts = tsall
                    e(f"{self.endlab}:\ns_endpgm")
        self.finish()
        if 'e' in self.ts:
            out = []
            for l in self.a.lines:
                if l.strip() == "s_endpgm" and any(x.startswith("R_") for x in out):
                    out += [x.strip() for x in f"""s_mov_b64 exec, -1
                    s_memrealtime s[94:95]
                    {'s_memtime s[74:75]' if self.opt.get('mk') == 9 else 's_nop 0'}
                    s_lshl_b32 s100, s2, 2
                    s_add_u32 s100, s100, s{sW}
                    s_lshl_b32 s100, s100, 4
                    s_add_u32 s100, s100, {TSB + 8*MB}
                    s_waitcnt lgkmcnt(0)
                    {'s_sub_u32 s74, s74, s72' if self.opt.get('mk') == 9 else 's_nop 0'}
                    v_mov_b32 v4, s94
                    v_mov_b32 v5, s73
                    v_mov_b32 v6, s{sGRP}
                    v_mov_b32 v7, s74
                    v_mov_b32 v3, 0
                    buffer_store_dwordx4 v[4:7], v3, s[{S_WS}:{S_WS+3}], s100 offen""".split(chr(10))]
                out.append(l)
            self.a.lines = out
        return self.a.text()

if __name__ == "__main__":
    import argparse
    ap = argparse.ArgumentParser()
    ap.add_argument("-o", default="k.s"); ap.add_argument("--lag", type=int, default=14); ap.add_argument("--opt", default="")
    ap.add_argument("--roles", default="cqaf"); ap.add_argument("--ff", action="store_true")
    ap.add_argument("--ts", default=""); ap.add_argument("--noglobal", action="store_true"); ap.add_argument("--dump", action="store_true")
    A = ap.parse_args()
    t = Gen(A.lag, A.roles, A.ff, A.ts, not A.noglobal, A.dump, {k: int(v) for k, v in (x.split('=') for x in A.opt.split(',') if x)}).build()
    open(A.o, "w").write(t)
    print(A.o, len(t), "bytes", t.count("\n"), "lines")
```
